```python
import torch

def _softmax(x, axis=-1):
    return torch.softmax(x, dim=axis)
def _gelu(x):
    return torch.nn.functional.gelu(x, approximate="tanh")
def _silu(x):
    return torch.nn.functional.silu(x)
def _sigmoid(x):
    return torch.sigmoid(x)
def _layernorm(x, axis=-1, eps=1e-5):
    m = x.mean(dim=axis, keepdim=True)
    v = x.var(dim=axis, keepdim=True, unbiased=False)
    return (x - m) / torch.sqrt(v + eps)
def _scatter_add(tgt, idx, src, axis=0):
    return tgt.clone().index_add_(axis, idx, src)
def _segment_sum(src, seg, n):
    out = torch.zeros((n,) + src.shape[1:], dtype=src.dtype)
    return out.index_add_(0, seg, src)
def _pad(x, pw):
    flat = tuple(v for pair in reversed(pw) for v in pair)
    return torch.nn.functional.pad(x, flat)

kernel_name = 'parallel_sum__sliding_local_dilated__glu_gated_bilinear__prompt'

def setup_inputs():

    _w = (lambda a: (lambda t: t.to(torch.bfloat16) if t.is_floating_point() else t)(torch.as_tensor(a)))
    def _A_setup():
        B, S, D = 1, 2048, 640
        return {
            "x": _w((lambda *s: torch.randn(*s, dtype=torch.bfloat16) * 0.05)(B, S, D)),
            "wqkv": _w((lambda *s: torch.randn(*s, dtype=torch.bfloat16) * 0.05)(D, 3 * D)),
            "wo": _w((lambda *s: torch.randn(*s, dtype=torch.bfloat16) * 0.05)(D, D)),
        }
    _A_in = _A_setup()

    def _B_setup():
        B, S, D, F = 1, 2048, 640, 1536
        return {
            "x": _w((lambda *s: torch.randn(*s, dtype=torch.bfloat16) * 0.05)(B, S, D)),
            "w_gate": _w((lambda *s: torch.randn(*s, dtype=torch.bfloat16) * 0.8)(D, F) * (D ** -0.5)),
            "w_up": _w((lambda *s: torch.randn(*s, dtype=torch.bfloat16) * 0.8)(D, F) * (D ** -0.5)),
            "w_down": _w((lambda *s: torch.randn(*s, dtype=torch.bfloat16) * 0.8)(F, D) * (F ** -0.5)),
        }
    _B_in = _B_setup()

    return {
        "A_x": _A_in["x"],
        "A_wqkv": _A_in["wqkv"],
        "A_wo": _A_in["wo"],
        "B_x": _B_in["x"],
        "B_w_gate": _B_in["w_gate"],
        "B_w_up": _B_in["w_up"],
        "B_w_down": _B_in["w_down"],
    }

def reference(A_x, A_wqkv, A_wo, B_x, B_w_gate, B_w_up, B_w_down):
    def _A_ref(x, wqkv, wo):
        B, S, D = x.shape
        H = 32; Dh = D // H
        W, dil = 8, 2
        qkv = (lambda x, *d: x.permute(*d))((x @ wqkv).reshape(B, S, 3, H, Dh), 2, 0, 3, 1, 4)
        q, k, v = qkv[0], qkv[1], qkv[2]
        scale = Dh ** -0.5
        pos = torch.arange(S)
        off = torch.arange(W) * dil
        idx = pos[:, None] - off[None, :]
        mask = idx >= 0
        idx_c = torch.where(mask, idx, 0).reshape(-1)
        kg = k[:, :, idx_c, :].reshape(B, H, S, W, Dh)
        vg = v[:, :, idx_c, :].reshape(B, H, S, W, Dh)
        logits = torch.einsum("bhsd,bhswd->bhsw", q, kg) * scale
        logits = torch.where(mask[None, None, :, :], logits, -1e9)
        attn = _softmax(logits, axis=-1)
        o = torch.einsum("bhsw,bhswd->bhsd", attn, vg)
        return (lambda x, *d: x.permute(*d))(o, 0, 2, 1, 3).reshape(B, S, D) @ wo

    def _B_ref(x, w_gate, w_up, w_down):
        g = torch.einsum("bsd,df->bsf", x, w_gate)
        u = torch.einsum("bsd,df->bsf", x, w_up)
        h = g * u
        return torch.einsum("bsf,fd->bsd", h, w_down)

    x = A_x
    xn = _layernorm(x, axis=-1)
    return x + _A_ref(xn, A_wqkv, A_wo) + _B_ref(xn, B_w_gate, B_w_up, B_w_down)
```

```python
NAME = "parallel_sum__sliding_local_dilated__glu_gated_bilinear__prompt"

class Asm:
    def __init__(self):
        self.lines = []
    def __call__(self, s=""):
        for l in s.split("\n"):
            self.lines.append(l)
    def text(self):
        return "\n".join(self.lines) + "\n"

def header(launch_lines):
    s = ""
    for l in launch_lines:
        s += "; " + l + "\n"
    s += '.amdgcn_target "amdgcn-amd-amdhsa--gfx950"\n.text\n'
    return s

def kbegin(name):
    return f".globl {name}\n.p2align 8\n.type {name},@function\n{name}:\n"

def kdesc(name, vgpr=256, sgpr=102, accum=256):
    return f""".section .rodata,"a"
.p2align 6
.amdhsa_kernel {name}
  .amdhsa_next_free_vgpr {vgpr}
  .amdhsa_next_free_sgpr {sgpr}
  .amdhsa_accum_offset {accum}
  .amdhsa_group_segment_fixed_size 0
  .amdhsa_kernarg_size 80
  .amdhsa_user_sgpr_count 2
  .amdhsa_user_sgpr_kernarg_segment_ptr 1
  .amdhsa_system_sgpr_workgroup_id_x 1
.end_amdhsa_kernel
.text
"""
```

```python
import sys
from gen_common import *

XN = 0
C1 = 4 << 20
A2 = 32 << 20
KA = dict(x=0, wqkv=8, wo=16, bx=24, wg=32, wu=40, wd=48, out=56, dbg=64, ws=72)

def srd(a, d, base, nbytes, add=0):
    if add:
        a(f"s_add_u32 s{d}, s{base}, {add}\ns_addc_u32 s{d+1}, s{base+1}, 0")
    else:
        a(f"s_mov_b32 s{d}, s{base}\ns_mov_b32 s{d+1}, s{base+1}")
    a(f"s_mov_b32 s{d+2}, {nbytes}\ns_mov_b32 s{d+3}, 0x20000")

def wave_sum(a, v, t):
    for off in (0x041F, 0x081F, 0x101F, 0x201F, 0x401F):
        a(f"ds_swizzle_b32 v{t}, v{v} offset:{off:#x}\ns_waitcnt lgkmcnt(0)\nv_add_f32 v{v}, v{v}, v{t}")
    a(f"v_mov_b32 v{t}, v{v}\ns_nop 1\nv_permlane32_swap_b32 v{t}, v{v}\ns_nop 1\nv_add_f32 v{v}, v{v}, v{t}")

def k_ln(a):
    k = "ln_kernel"
    a(kbegin(k))
    a("s_cmp_ge_u32 s2, 512\ns_cbranch_scc1 Lln_end")
    a(f"s_load_dwordx2 s[4:5], s[0:1], {KA['x']}\ns_load_dwordx2 s[6:7], s[0:1], {KA['ws']}")
    a("v_lshrrev_b32 v1, 6, v0\nv_and_b32 v2, 63, v0")
    a("s_lshl_b32 s3, s2, 2\nv_add_u32 v1, s3, v1")
    a("v_mul_u32_u24 v1, 1280, v1\nv_lshl_add_u32 v1, v2, 2, v1")
    a("s_waitcnt lgkmcnt(0)")
    srd(a, 8, 4, 2048 * 1280)
    srd(a, 12, 6, 2048 * 1280, XN)
    for j in range(5):
        a(f"buffer_load_dword v{4+j}, v1, s[8:11], 0 offen offset:{j*256}")
    a("s_waitcnt vmcnt(0)")
    for j in range(5):
        a(f"v_lshlrev_b32 v{10+2*j}, 16, v{4+j}\nv_and_b32 v{11+2*j}, 0xffff0000, v{4+j}")
    a("v_mov_b32 v20, v10")
    for j in range(1, 10):
        a(f"v_add_f32 v20, v20, v{10+j}")
    wave_sum(a, 20, 21)
    a(f"s_mov_b32 s16, {hex(0x3acccccd)}")
    a("v_mul_f32 v20, s16, v20")
    for j in range(10):
        a(f"v_sub_f32 v{10+j}, v{10+j}, v20")
    a("v_mul_f32 v22, v10, v10")
    for j in range(1, 10):
        a(f"v_fmac_f32 v22, v{10+j}, v{10+j}")
    wave_sum(a, 22, 21)
    a("v_mov_b32 v23, 0x3727c5ac")
    a("v_fmac_f32 v23, s16, v22")
    a("v_rsq_f32 v23, v23\ns_nop 0")
    for j in range(10):
        a(f"v_mul_f32 v{10+j}, v{10+j}, v23")
    for j in range(5):
        a(f"v_cvt_pk_bf16_f32 v{4+j}, v{10+2*j}, v{11+2*j}")
        a(f"buffer_store_dword v{4+j}, v1, s[12:15], 0 offen offset:{j*256}")
    a("s_waitcnt vmcnt(0)")
    a("Lln_end:\ns_endpgm")
    return kdesc(k, 32, 32, 32)

def k_gemm(a, k, which):
    L = k
    if which == 1:
        MT, NT, K, lda, ldc = 32, 39, 640, 1280, 4992 * 2
    else:
        MT, NT, K, lda, ldc = 32, 5, 2176, 2176 * 2, 1280
    a(kbegin(k))
    a(f"s_cmp_ge_u32 s2, {MT*NT}\ns_cbranch_scc1 L{L}_end")
    a("s_load_dwordx16 s[16:31], s[0:1], 0\ns_load_dwordx4 s[32:35], s[0:1], 64")
    a("s_and_b32 s4, s2, 31\ns_lshr_b32 s5, s2, 5")
    a("v_lshrrev_b32 v1, 6, v0\nv_and_b32 v2, 63, v0\ns_nop 0\nv_readfirstlane_b32 s3, v1")
    a("s_waitcnt lgkmcnt(0)")
    if which == 1:
        srd(a, 8, 34, 2048 * 1280, XN)
        srd(a, 36, 34, 2048 * 4992 * 2, C1)
        a("s_cmp_lt_u32 s5, 15\ns_cbranch_scc1 L%s_q" % L)
        a("s_cmp_lt_u32 s5, 27\ns_cbranch_scc1 L%s_g" % L)
        srd(a, 12, 26, 640 * 3072); a("s_sub_u32 s6, s5, 27\ns_mov_b32 s7, 3072\ns_branch L%s_s" % L)
        a("L%s_g:" % L); srd(a, 12, 24, 640 * 3072); a("s_sub_u32 s6, s5, 15\ns_mov_b32 s7, 3072\ns_branch L%s_s" % L)
        a("L%s_q:" % L); srd(a, 12, 18, 640 * 3840); a("s_mov_b32 s6, s5\ns_mov_b32 s7, 3840")
        a("L%s_s:" % L)
    else:
        srd(a, 8, 34, 2048 * 2176 * 2, A2)
        srd(a, 36, 30, 2048 * 1280)
        srd(a, 12, 20, 640 * 1280)
        srd(a, 40, 16, 2048 * 1280)
        a("s_mov_b32 s6, s5\ns_mov_b32 s7, 1280")
    a("v_lshrrev_b32 v3, 4, v2\nv_and_b32 v4, 15, v2")
    a("v_lshlrev_b32 v5, 1, v3\nv_xor_b32 v5, v5, v4")
    a("v_xor_b32 v6, 8, v5")
    a("s_lshl_b32 s44, s3, 4\nv_add_u32 v3, s44, v3")
    a("v_mul_lo_u32 v3, v3, s7")
    a("s_lshl_b32 s45, s6, 8\nv_add_u32 v3, s45, v3")
    a("v_lshl_add_u32 v5, v5, 4, v3\nv_lshl_add_u32 v6, v6, 4, v3")
    a("s_lshl_b32 s46, s7, 2\ns_lshl_b32 s47, s7, 6")
    a("s_and_b32 s48, s3, 1\ns_lshl_b32 s48, s48, 5\ns_lshl_b32 s49, s4, 6\ns_add_u32 s48, s48, s49")
    a("v_add_u32 v7, s48, v4")
    a(f"s_mov_b32 s50, {lda}\nv_mul_lo_u32 v8, v7, s50\nv_lshrrev_b32 v9, 4, v2\nv_lshl_add_u32 v8, v9, 4, v8")
    a(f"v_add_u32 v10, {16*lda}, v8")
    a("v_lshrrev_b32 v11, 2, v4\nv_and_b32 v12, 3, v2")
    a("v_and_b32 v13, 1, v9\nv_lshlrev_b32 v13, 2, v13\nv_or_b32 v13, v13, v11\nv_lshlrev_b32 v13, 1, v13")
    a("v_lshl_add_u32 v14, v9, 3, v11\nv_lshlrev_b32 v14, 8, v14")
    a("v_and_b32 v15, 1, v12\nv_lshl_add_u32 v14, v15, 3, v14")
    a("v_lshrrev_b32 v15, 1, v12")
    a("s_lshr_b32 s51, s3, 1\ns_lshl_b32 s51, s51, 3")
    for tt in range(4):
        a(f"v_add_u32 v16, s51, v15\nv_add_u32 v16, {2*tt}, v16\nv_xor_b32 v16, v16, v13\nv_lshl_add_u32 v{20+tt}, v16, 4, v14")
    for i in range(32):
        a(f"v_mov_b32 v{64+i}, 0")
    a("s_mov_b32 s52, 0\ns_mov_b32 s53, 0\ns_mov_b32 s54, 0")
    a("s_lshl_b32 s55, s3, 12")
    a(f"L{L}_loop:")
    if which == 2:
        a(f"s_cmp_lg_u32 s52, 640\ns_cbranch_scc1 L{L}_nosw")
        srd(a, 12, 28, 1536 * 1280); a("s_mov_b32 s53, 0")
        a(f"L{L}_nosw:")
    a("s_mov_b32 s56, s53")
    for i in range(4):
        a(f"s_add_u32 m0, s55, {i*1024}\ns_nop 0")
        a(f"buffer_load_dwordx4 v{5 if i<2 else 6}, s[12:15], s56 offen lds")
        a("s_add_u32 s56, s56, s46")
    for ks in range(2):
        a(f"buffer_load_dwordx4 v[{32+ks*8}:{35+ks*8}], v8, s[8:11], s54 offen offset:{ks*64}")
        a(f"buffer_load_dwordx4 v[{36+ks*8}:{39+ks*8}], v10, s[8:11], s54 offen offset:{ks*64}")
    a("s_waitcnt vmcnt(0)\ns_barrier")
    for ks in range(2):
        for tt in range(4):
            a(f"ds_read_b64_tr_b16 v[{48+tt*4}:{49+tt*4}], v{20+tt} offset:{ks*32*256}")
            a(f"ds_read_b64_tr_b16 v[{50+tt*4}:{51+tt*4}], v{20+tt} offset:{ks*32*256+4*256}")
        a("s_waitcnt lgkmcnt(0)")
        for tt in range(4):
            for mm in range(2):
                c = 64 + (mm * 4 + tt) * 4
                a(f"v_mfma_f32_16x16x32_bf16 v[{c}:{c+3}], v[{48+tt*4}:{51+tt*4}], v[{32+ks*8+mm*4}:{35+ks*8+mm*4}], v[{c}:{c+3}]")
        a("s_nop 7")
    a("s_barrier")
    a("s_add_u32 s52, s52, 64\ns_add_u32 s53, s53, s47\ns_add_u32 s54, s54, 128")
    a(f"s_cmp_lt_u32 s52, {K}\ns_cbranch_scc1 L{L}_loop")
    a("s_nop 15")
    a(f"s_mov_b32 s50, {ldc}\nv_mul_lo_u32 v3, v7, s50")
    a("s_lshl_b32 s57, s5, 8\ns_lshl_b32 s58, s51, 4\ns_add_u32 s57, s57, s58")
    a("v_lshl_add_u32 v3, v9, 3, v3\nv_add_u32 v3, s57, v3")
    a(f"v_add_u32 v4, {16*ldc}, v3")
    for mm in range(2):
        for tt in range(4):
            c = 64 + (mm * 4 + tt) * 4
            if which == 2:
                a(f"buffer_load_dwordx2 v[32:33], v{3+mm}, s[40:43], 0 offen offset:{tt*32}\ns_waitcnt vmcnt(0)")
                a("v_lshlrev_b32 v34, 16, v32\nv_and_b32 v35, 0xffff0000, v32\nv_lshlrev_b32 v36, 16, v33\nv_and_b32 v37, 0xffff0000, v33")
                for r in range(4):
                    a(f"v_add_f32 v{c+r}, v{c+r}, v{34+r}")
            a(f"v_cvt_pk_bf16_f32 v{c}, v{c}, v{c+1}\nv_cvt_pk_bf16_f32 v{c+1}, v{c+2}, v{c+3}")
            a(f"buffer_store_dwordx2 v[{c}:{c+1}], v{3+mm}, s[36:39], 0 offen offset:{tt*32}")
    a("s_waitcnt vmcnt(0)")
    a(f"L{L}_end:\ns_endpgm")
    return kdesc(k, 96, 64, 96)

def k_attn(a):
    k = "attn_kernel"
    a(kbegin(k))
    a("s_cmp_ge_u32 s2, 256\ns_cbranch_scc1 Lat_end")
    a(f"s_load_dwordx2 s[6:7], s[0:1], {KA['ws']}")
    a("v_lshrrev_b32 v1, 5, v0\nv_and_b32 v2, 31, v0")
    a("s_lshl_b32 s3, s2, 3\nv_add_u32 v1, s3, v1")
    a("s_waitcnt lgkmcnt(0)")
    srd(a, 8, 6, 2048 * 4992 * 2, C1)
    srd(a, 12, 6, 2048 * 2176 * 2, A2)
    a("v_mul_u32_u24 v3, 40, v2")
    a("v_mul_u32_u24 v4, 9984, v1\nv_add_u32 v4, v4, v3")
    def load20(dst, voff, off):
        for j in range(5):
            a(f"buffer_load_dwordx2 v[{dst+2*j}:{dst+2*j+1}], v{voff}, s[8:11], 0 offen offset:{off+8*j}")
    load20(10, 4, 0)
    for w in range(8):
        a(f"v_subrev_u32 v5, {2*w}, v1\nv_max_i32 v6, 0, v5\nv_mul_u32_u24 v6, 9984, v6\nv_add_u32 v6, v6, v3")
        load20(30, 6, 1280)
        load20(64 + w * 10, 6, 2560)
        a("s_waitcnt vmcnt(0)")
        a(f"v_mov_b32 v{20+w}, 0")
        for j in range(10):
            a(f"v_dot2_f32_bf16 v{20+w}, v{10+j}, v{30+j}, v{20+w}\ns_nop 2")
        a("s_nop 2")
        sc = 20 ** -0.5 * 1.4426950408889634
        import struct
        a(f"v_mul_f32 v{20+w}, {hex(struct.unpack('<I', struct.pack('<f', sc))[0])}, v{20+w}")
        a(f"v_cmp_gt_i32 vcc, 0, v5\nv_mov_b32 v7, 0xce6e6b28\ns_nop 1\nv_cndmask_b32 v{20+w}, v{20+w}, v7, vcc")
    a("v_max3_f32 v8, v20, v21, v22\nv_max3_f32 v8, v8, v23, v24\nv_max3_f32 v8, v8, v25, v26\nv_max_f32 v8, v8, v27")
    for w in range(8):
        a(f"v_sub_f32 v{20+w}, v{20+w}, v8\nv_exp_f32 v{20+w}, v{20+w}")
    a("s_nop 0\nv_add_f32 v8, v20, v21")
    for w in range(2, 8):
        a(f"v_add_f32 v8, v8, v{20+w}")
    a("v_rcp_f32 v8, v8\ns_nop 0")
    for w in range(8):
        a(f"v_mul_f32 v{20+w}, v{20+w}, v8")
    for d in range(20):
        a(f"v_mov_b32 v{40+d}, 0")
    for w in range(8):
        for j in range(10):
            s = 64 + w * 10 + j
            a(f"v_lshlrev_b32 v9, 16, v{s}\nv_fmac_f32 v{40+2*j}, v9, v{20+w}")
            a(f"v_and_b32 v9, 0xffff0000, v{s}\nv_fmac_f32 v{41+2*j}, v9, v{20+w}")
    a("v_mul_u32_u24 v5, 4352, v1\nv_add_u32 v5, v5, v3")
    for j in range(10):
        a(f"v_cvt_pk_bf16_f32 v{30+j}, v{40+2*j}, v{41+2*j}")
    for j in range(5):
        a(f"buffer_store_dwordx2 v[{30+2*j}:{31+2*j}], v5, s[12:15], 0 offen offset:{8*j}")
    a("v_mul_u32_u24 v3, 96, v2")
    a("v_mul_u32_u24 v4, 9984, v1\nv_add_u32 v4, v4, v3\nv_add_u32 v4, 3840, v4")
    a("v_mul_u32_u24 v5, 4352, v1\nv_add_u32 v5, v5, v3")
    for j in range(6):
        a(f"buffer_load_dwordx4 v[12:15], v4, s[8:11], 0 offen offset:{16*j}")
        a(f"buffer_load_dwordx4 v[16:19], v4, s[8:11], 0 offen offset:{3072+16*j}")
        a("s_waitcnt vmcnt(0)")
        for r in range(4):
            a(f"v_lshlrev_b32 v20, 16, v{12+r}\nv_lshlrev_b32 v21, 16, v{16+r}\nv_mul_f32 v20, v20, v21")
            a(f"v_and_b32 v22, 0xffff0000, v{12+r}\nv_and_b32 v23, 0xffff0000, v{16+r}\nv_mul_f32 v22, v22, v23")
            a(f"v_cvt_pk_bf16_f32 v{24+r}, v20, v22")
        a(f"buffer_store_dwordx4 v[24:27], v5, s[12:15], 0 offen offset:{1280+16*j}\ns_nop 2")
    a("s_waitcnt vmcnt(0)")
    a("Lat_end:\ns_endpgm")
    return kdesc(k, 160, 32, 160)

def k_probe(a, n, stride):
    k = "probe_kernel"
    a(kbegin(k))
    a("s_cmp_ge_u32 s2, 256\ns_cbranch_scc1 Lpr_end")
    a(f"s_load_dwordx2 s[4:5], s[0:1], {KA['bx']}")
    a("s_mul_i32 s3, s2, 10240\nv_mov_b32 v1, s3")
    a("s_waitcnt lgkmcnt(0)")
    srd(a, 8, 4, 2048 * 1280)
    for i in range(n):
        a("buffer_load_dword v2, v1, s[8:11], 0 offen\ns_waitcnt vmcnt(0)")
        a(f"v_and_b32 v2, 0, v2\nv_add_u32 v1, v1, v2\nv_add_u32 v1, {stride}, v1")
    a("Lpr_end:\ns_endpgm")
    return kdesc(k, 8, 16, 8)

def gen(fname, probe=None):
    a = Asm()
    ll = []
    if probe:
        ll.append("@launch kernel=probe_kernel grid=(256,1,1) block=(64,1,1) lds=0")
    ll += ["@launch kernel=ln_kernel grid=(512,1,1) block=(256,1,1) lds=0",
           "@launch kernel=gemm1_kernel grid=(1248,1,1) block=(256,1,1) lds=16384",
           "@launch kernel=attn_kernel grid=(256,1,1) block=(256,1,1) lds=0",
           "@launch kernel=gemm2_kernel grid=(160,1,1) block=(256,1,1) lds=16384"]
    a(header(ll))
    d = ""
    if probe:
        d += k_probe(a, *probe)
    d += k_ln(a)
    d += k_gemm(a, "gemm1_kernel", 1)
    d += k_attn(a)
    d += k_gemm(a, "gemm2_kernel", 2)
    a(d)
    open(fname, "w").write(a.text())

if __name__ == "__main__":
    gen("simple.s")
    gen("simple_p0.s", probe=(0, 256))
    gen("simple_p40.s", probe=(40, 256))
```

```python
import sys, struct
from gen_common import *

def f2u(x):
    return hex(struct.unpack('<I', struct.pack('<f', x))[0])

A2F = 0
W2P = 16 << 20
STATS = 20 << 20
CS = 21 << 20
FLAGS = 22 << 20
TS = 24 << 20
WSN = 32 << 20
OOB = 0x80000000
SPIN = 200000

P_X, P_QKV, P_WO, P_BX, P_WG, P_WU, P_WD, P_OUT, P_DBG, P_WS = 4, 6, 8, 10, 12, 14, 16, 18, 20, 22
SX, SB, SW, SD, SA = 24, 28, 32, 36, 40
S_C, S_MT, S_ROW = 44, 45, 46
S_KB, S_A2, S_LB, S_LA = 50, 51, 52, 53
S_FLAG = 54
S_HM = 56
T0 = 60
TSB = 80

def srd(r):
    return f"s[{r}:{r+3}]"

class VM:
    def __init__(self):
        self.q = []
    def issue(self, tag, optional=False):
        self.q.append((tag, optional))
    def wait(self, pred):
        last = -1
        for i, (t, o) in enumerate(self.q):
            if pred(t):
                last = i
        if last < 0:
            return None
        rest = self.q[last + 1:]
        n = sum(1 for t, o in rest if not o)
        self.q = rest
        assert len(rest) <= 63
        return n

class G:
    def __init__(self, instr=False, opts=None):
        self.a = Asm()
        self.instr = instr
        self.o = opts or {}
        self.lab = 0

    def __call__(self, s=""):
        self.a(s)

    def label(self, p="L"):
        self.lab += 1
        return f"{p}{self.lab}"

    def ts(self, i):
        if self.instr:
            self(f"s_memtime s[{TSB+2*i}:{TSB+2*i+1}]")

    def mk_srd(self, d, base, n):
        self(f"s_mov_b32 s{d}, s{base}\ns_mov_b32 s{d+1}, s{base+1}\ns_mov_b32 s{d+2}, {n}\ns_mov_b32 s{d+3}, 0x20000")

    def wave_sum(self, v, t):
        for d in ("quad_perm:[1,0,3,2]", "quad_perm:[2,3,0,1]", "row_half_mirror", "row_mirror"):
            self(f"s_nop 1\nv_add_f32_dpp v{v}, v{v}, v{v} {d} row_mask:0xf bank_mask:0xf")
        self(f"v_mov_b32 v{t}, v{v}\ns_nop 1\nv_permlane16_swap_b32 v{t}, v{v}\ns_nop 0\nv_add_f32 v{v}, v{v}, v{t}")
        self(f"v_mov_b32 v{t}, v{v}\ns_nop 1\nv_permlane32_swap_b32 v{t}, v{v}\ns_nop 0\nv_add_f32 v{v}, v{v}, v{t}")

    def px_pre(self):
        self(f"s_lshl3_add_u32 s{S_ROW}, s2, s3")
        self(f"s_mul_i32 s{T0}, s{S_ROW}, 1280")
        self("v_lshlrev_b32 v2, 4, v0\nv_lshlrev_b32 v3, 2, v0")

    def px_load(self, vm):
        self(f"buffer_load_dwordx4 v[20:23], v2, {srd(SX)}, s{T0} offen"); vm.issue("px")
        self(f"buffer_load_dword v24, v3, {srd(SX)}, s{T0} offen offset:1024"); vm.issue("px")

    def stats(self, vm, typ):
        n = vm.wait(lambda t: t == "px")
        self(f"s_waitcnt vmcnt({n})")
        for j in range(5):
            self(f"v_lshlrev_b32 v{26+2*j}, 16, v{20+j}\nv_and_b32 v{27+2*j}, 0xffff0000, v{20+j}")
        self("v_add_f32 v36, v26, v27\nv_add_f32 v37, v28, v29\nv_add_f32 v38, v30, v31\nv_add_f32 v39, v32, v33\nv_add_f32 v25, v34, v35")
        self("v_add_f32 v36, v36, v37\nv_add_f32 v38, v38, v39\nv_add_f32 v36, v36, v25\nv_add_f32 v36, v36, v38")
        self.wave_sum(36, 37)
        self(f"v_mul_f32 v36, {f2u(-1.0/640)}, v36")
        for j in range(10):
            self(f"v_add_f32 v{26+j}, v{26+j}, v36")
        self("v_mul_f32 v38, v26, v26\nv_mul_f32 v39, v27, v27")
        for j in range(2, 10):
            self(f"v_fmac_f32 v{38+(j&1)}, v{26+j}, v{26+j}")
        self("v_add_f32 v38, v38, v39")
        self.wave_sum(38, 39)
        self(f"v_mov_b32 v37, {f2u(1e-5)}")
        self(f"v_fmac_f32 v37, {f2u(1.0/640)}, v38")
        self("v_rsq_f32 v37, v37")
        self(f"s_lshl_b32 s{T0}, s{S_ROW}, 3\ns_add_u32 s{T0}, s{T0}, {STATS}")
        self("v_lshlrev_b32 v25, 26, v0")
        self(f"buffer_store_dwordx2 v[36:37], v25, {srd(SW)}, s{T0} offen sc1"); vm.issue("early")
        self(f"v_add_lshl_u32 v19, v0, s3, 25\nv_mov_b32 v38, 0")
        self(f"s_lshl_b32 s{S_FLAG}, s{S_MT}, 7\ns_lshl3_add_u32 s{S_FLAG}, s{S_C}, s{S_FLAG}\ns_add_u32 s{S_FLAG}, s{S_FLAG}, {FLAGS + 4*typ}")
        self(f"buffer_store_dword v38, v19, {srd(SW)}, s{S_FLAG} offen sc1"); vm.issue("early")

    def atomic(self, vm, off):
        return [f"v_mov_b32 v18, 1\ns_nop 0", f"buffer_atomic_add v18, v19, {srd(SD)}, 0 offen offset:{off} sc1"]

    def poll_check(self, off, cnt, vreg):
        L = self.label(); Ld = self.label()
        s = f"s_mov_b32 s{T0+19}, 0\n{L}:\nv_readfirstlane_b32 s{T0+10}, v{vreg}\ns_nop 0\ns_cmp_ge_u32 s{T0+10}, {cnt}\ns_cbranch_scc1 {Ld}\n"
        s += f"s_addk_i32 s{T0+19}, 1\ns_cmp_ge_u32 s{T0+19}, {SPIN}\ns_cbranch_scc1 {Ld}\n"
        s += f"s_sleep 2\nbuffer_load_dword v{vreg}, off, {srd(SD)}, 0 offset:{off} sc1\ns_waitcnt vmcnt(0)\ns_branch {L}\n{Ld}:"
        return s

    def interleave(self, mf, lists):
        items = []
        for idx, (L, lo, hi) in enumerate(lists):
            for i, it in enumerate(L):
                items.append((lo + (i + 0.5) / len(L) * (hi - lo), idx, i, it))
        items.sort(key=lambda z: z[:3])
        pos = [[] for _ in mf]
        for f, _, _, it in items:
            pos[min(len(mf) - 1, int(f * len(mf)))].append(it)
        out = []
        for i, m in enumerate(mf):
            out.append(m)
            out += pos[i]
        res = []
        for it in out:
            if isinstance(it, tuple):
                if res and not res[-1][1]:
                    prev = res.pop()
                    res += [(it[0], True), prev, (it[1], True)]
                else:
                    res += [(it[0], True), ("s_nop 0\ns_nop 0", True), (it[1], True)]
            else:
                res.append((it, False))
        for it, _ in res:
            self(it)

    def a_addr(self, abase):
        self("v_and_b32 v4, 31, v0\nv_lshrrev_b32 v5, 5, v0\nv_bfe_u32 v6, v0, 1, 3\nv_xor_b32 v6, v6, v5")
        self(f"s_lshr_b32 s{T0+1}, s3, 2\ns_lshl_b32 s{T0+1}, s{T0+1}, 13\ns_add_u32 s{T0+1}, s{T0+1}, {abase}")
        self(f"v_lshlrev_b32 v6, 4, v6\nv_lshl_add_u32 v6, v4, 7, v6\nv_add_u32 v8, s{T0+1}, v6")
        for q in range(1, 4):
            self(f"v_xor_b32 v{8+q}, {q<<5}, v8")

    def a_dma_addr(self, row_add):
        self(f"s_lshl_b32 s{T0+1}, s{S_MT}, 7\ns_lshl3_add_u32 s{T0+1}, s3, s{T0+1}")
        if row_add:
            self(f"s_add_u32 s{T0+1}, s{T0+1}, {row_add}")
        self(f"v_lshrrev_b32 v4, 3, v0\nv_add_u32 v4, s{T0+1}, v4\nv_mul_u32_u24 v4, 1280, v4")
        self(f"s_lshl_b32 s{T0+2}, s3, 2\nv_lshrrev_b32 v5, 4, v0\nv_add_u32 v5, s{T0+2}, v5\nv_xor_b32 v5, v5, v0\nv_and_b32 v5, 7, v5")
        self("v_lshl_add_u32 v12, v5, 4, v4")

    def div24(self, j, dk, du):
        self(f"v_add_u32 v{du}, {64*j}, v0\nv_mul_u32_u24 v{dk}, 2731, v{du}\nv_lshrrev_b32 v{dk}, 16, v{dk}")
        self(f"v_mul_u32_u24 v7, 24, v{dk}\nv_sub_u32 v{du}, v{du}, v7")

    def h_path(self):
        vm = VM()
        AB = 98304
        CSL = AB + 2 * 16384
        self.px_pre()
        self("v_mul_u32_u24 v4, 43, v0\nv_lshrrev_b32 v4, 8, v4\nv_mul_u32_u24 v5, 6, v4\nv_sub_u32 v5, v0, v5")
        self("v_lshrrev_b32 v6, 1, v5\nv_and_b32 v5, 1, v5\nv_mul_u32_u24 v6, 1280, v6\nv_mul_u32_u24 v5, 156, v5")
        self("v_mul_u32_u24 v4, 3840, v4\nv_add3_u32 v4, v4, v5, v6")
        self(f"v_cmp_gt_u32 vcc, 30, v0\nv_mov_b32 v5, {OOB}")
        self(f"s_mul_i32 s{T0+3}, s{S_MT}, {40*3840}\ns_mul_i32 s{T0+4}, s3, {5*3840}\ns_add_u32 s{T0+3}, s{T0+3}, s{T0+4}")
        self(f"s_mul_i32 s{T0+4}, s{S_C}, 160\ns_add_u32 s{T0+3}, s{T0+3}, s{T0+4}")
        self("v_cndmask_b32 v17, v5, v4, vcc")
        self("s_waitcnt lgkmcnt(0)")
        self.ts(1)
        self.mk_srd(SX, P_X, 2048 * 1280)
        self.px_load(vm)
        self.mk_srd(SA, P_QKV, 640 * 3840)
        self(f"buffer_load_dword v40, v17, {srd(SA)}, s{T0+3} offen nt"); vm.issue("p")
        if self.o.get("codepf", True):
            self(f"s_getpc_b64 s[{T0+4}:{T0+5}]")
            self(f"s_lshl3_add_u32 s{T0+6}, s{S_MT}, s3\ns_lshl_b32 s{T0+6}, s{T0+6}, 9")
            self(f"v_and_b32 v4, 3, v0\nv_lshlrev_b32 v4, 7, v4\nv_add_u32 v4, s{T0+6}, v4")
            self(f"v_min_u32 v4, CODE_SPAN, v4")
            self(f"global_load_dword v41, v4, s[{T0+4}:{T0+5}]"); vm.issue("p")
        self.mk_srd(SW, P_WS, WSN)
        self.mk_srd(SD, P_DBG, 256)
        self(f"s_cmp_lt_u32 s3, 4\ns_cselect_b64 s[{SB}:{SB+1}], s[{P_WG}:{P_WG+1}], s[{P_WU}:{P_WU+1}]")
        self(f"s_mov_b32 s{SB+2}, {640*3072}\ns_mov_b32 s{SB+3}, 0x20000")
        self.a_dma_addr(0)
        self(f"s_and_b32 s{T0+1}, s3, 3\ns_mul_i32 s{T0+1}, s{T0+1}, {8*3072}\ns_mul_i32 s{T0+2}, s{S_C}, 384\ns_add_u32 s{T0+1}, s{T0+1}, s{T0+2}")
        self(f"s_and_b32 s{T0+2}, s3, 4")
        for j in range(3):
            self.div24(j, 4, 5)
            self(f"v_and_b32 v6, 2, v4\nv_or_b32 v6, s{T0+2}, v6\nv_xor_b32 v5, v5, v6")
            self(f"v_mul_u32_u24 v4, 3072, v4\nv_lshl_add_u32 v4, v5, 4, v4\nv_add_u32 v{13+j}, s{T0+1}, v4")
        self(f"s_mov_b32 s{S_KB}, 0\ns_mov_b32 s{S_A2}, 81920")
        self(f"s_mul_i32 s{S_LB}, s3, 3072\ns_lshl_b32 s{S_LA}, s3, 10")
        self.stats(vm, 0)
        self.ts(2)

        def dmaB(s):
            out = []
            for j in range(3):
                out.append((f"s_add_u32 m0, s{S_LB}, {lit((s%4)*24576 + j*1024)}",
                            f"buffer_load_dwordx4 v{13+j}, {srd(SB)}, s{S_KB} offen lds" + (f"\ns_add_u32 s{S_KB}, s{S_KB}, 98304" if j == 2 else ""),
                            ("B", s)))
            return out
        def dmaA(S, i):
            return (f"s_add_u32 m0, s{S_LA}, {lit(AB + (S%4)*16384 + i*8192 - S*128)}",
                    f"buffer_load_dwordx4 v12, {srd(SX)}, {'s%d' % S_A2 if i else '0'} offen offset:{S*128} lds",
                    ("A", S))
        def emit_dma(d):
            self(d[0] + "\ns_nop 0\n" + d[1]); vm.issue(d[2])
        for d in dmaB(0) + [dmaA(0, 0), dmaA(0, 1)] + dmaB(1):
            emit_dma(d)
        self.a_addr(AB)
        self("v_bfe_u32 v4, v0, 4, 1\nv_lshrrev_b32 v5, 5, v0\nv_bfe_u32 v6, v0, 2, 2")
        self("v_lshl_add_u32 v5, v5, 3, v6\nv_mul_u32_u24 v5, 384, v5\nv_mul_u32_u24 v7, 12288, v4\nv_add_u32 v5, v5, v7")
        self("v_and_b32 v7, 1, v0\nv_lshl_add_u32 v5, v7, 3, v5")
        self("v_and_b32 v6, 2, v6\nv_lshl_or_b32 v6, v4, 2, v6\nv_bfe_u32 v7, v0, 1, 1")
        self(f"s_and_b32 s{T0+1}, s3, 3\ns_mul_i32 s{T0+1}, s{T0+1}, 6\nv_add_u32 v7, s{T0+1}, v7")
        for n in range(3):
            self(f"v_add_u32 v4, {2*n}, v7\nv_xor_b32 v4, v4, v6\nv_lshl_add_u32 v{60+n}, v4, 4, v5\nv_add_u32 v{63+n}, 49152, v{60+n}")
        for d in dmaB(2) + [dmaA(1, 0), dmaA(1, 1)] + dmaB(3) + [dmaA(2, 0), dmaA(2, 1), dmaA(3, 0), dmaA(3, 1)]:
            emit_dma(d)

        def reads(s, Y):
            S = s >> 1
            rd = []
            for sub in range(2):
                for m in range(2):
                    r = Y + (sub * 2 + m) * 4
                    rd.append(f"ds_read_b128 v[{r}:{r+3}], v{8 + (s&1)*2 + sub} offset:{(S%4)*16384 + m*4096}")
                for n in range(3):
                    r = Y + 16 + (sub * 3 + n) * 4
                    base = 60 + n + (3 if (s % 4) >= 2 else 0)
                    o = (s % 2) * 24576 + sub * 6144
                    rd.append(f"ds_read_b64_tr_b16 v[{r}:{r+1}], v{base} offset:{o}")
                    rd.append(f"ds_read_b64_tr_b16 v[{r+2}:{r+3}], v{base} offset:{o+1536}")
            return rd
        def need(s):
            return lambda t: t == ("B", s) or t == ("A", s >> 1)
        n = vm.wait(need(0))
        self(f"s_waitcnt vmcnt({n})\ns_barrier")
        self.ts(3)
        for r in reads(0, 80):
            self(r)
        self("s_waitcnt lgkmcnt(0)")
        self.align8()
        pendA = []
        for s in range(20):
            X = 80 + (s & 1) * 40; Y = 80 + ((s + 1) & 1) * 40
            pre = []
            extra = []
            pred = need(s + 1) if s < 19 else (lambda t: False)
            if s == 13:
                p0 = pred; pred = lambda t, p0=p0: p0(t) or t == "poll"
            if s == 16:
                p0 = pred; pred = lambda t, p0=p0: p0(t) or t == "cs"
            if s == 19:
                pred = lambda t: t in ("poll2",)
            n = vm.wait(pred)
            self(f"s_waitcnt vmcnt({n})" if n is not None else "s_nop 0")
            self("s_barrier")
            if s == 13:
                self(self.poll_check(0, 256, 42)); self.align8()
            if s == 19:
                self(self.poll_check(128, 128, 43)); self.align8()
            dm = []
            if s + 4 < 20:
                dm += dmaB(s + 4)
            if s & 1 and (s >> 1) + 4 < 10:
                pendA += [dmaA((s >> 1) + 4, 0), dmaA((s >> 1) + 4, 1)]
            if pendA:
                dm.append(pendA.pop(0))
            fill = []
            for d in dm:
                fill.append((d[0], d[1])); vm.issue(d[2])
            if s == 1:
                fill += self.atomic(vm, 0); vm.issue("at")
            if s == 10:
                fill.append(f"buffer_load_dword v42, off, {srd(SD)}, 0 sc1"); vm.issue("poll")
            if s == 16:
                fill.append(f"buffer_load_dword v43, off, {srd(SD)}, 0 offset:128 sc1"); vm.issue("poll2")
            if s == 12:
                extra += [f"s_lshl_b32 s{T0+1}, s3, 8\ns_nop 0", f"v_add_u32 v44, s{T0+1}, v3\nv_and_b32 v4, 31, v0",
                          f"s_mul_i32 s{T0+2}, s{S_C}, {8*1536}", f"s_add_u32 s{T0+2}, s{T0+2}, {CS}",
                          f"s_cmp_lt_u32 s3, 6\ns_nop 0\ns_cselect_b32 s{T0+2}, s{T0+2}, {OOB}",
                          f"s_add_u32 s{T0+3}, s{T0+2}, {3*1536}", f"s_add_u32 s{T0+4}, s{T0+2}, {6*1536}",
                          f"s_lshr_b32 s{T0+5}, s3, 2\ns_lshl1_add_u32 s{T0+5}, s{S_MT}, s{T0+5}",
                          f"s_lshl_b32 s{T0+5}, s{T0+5}, 9\nv_lshlrev_b32 v45, 3, v4", f"s_add_u32 s{T0+5}, s{T0+5}, {STATS}",
                          f"v_add_u32 v46, {CSL}, v44"]
            if s == 13:
                for p in range(8):
                    fill.append(f"buffer_load_dword v{48+p}, v44, {srd(SW)}, s{T0+2+p//3} offen offset:{(p%3)*1536} sc1"); vm.issue("cs")
                for m in range(2):
                    fill.append(f"buffer_load_dwordx2 v[{56+2*m}:{57+2*m}], v45, {srd(SW)}, s{T0+5} offen offset:{m*256} sc1"); vm.issue("cs")
            if s == 16:
                extra += ["v_add_f32 v48, v48, v49\nv_add_f32 v50, v50, v51", "v_add_f32 v52, v52, v53\nv_add_f32 v54, v54, v55",
                          "v_add_f32 v48, v48, v50\nv_add_f32 v52, v52, v54", "v_add_f32 v48, v48, v52\nv_mul_f32 v57, v57, v57",
                          "ds_write_b32 v46, v48", "v_mul_f32 v59, v59, v59\nv_lshrrev_b32 v5, 5, v0"]
            if s == 17:
                extra += [f"s_and_b32 s{T0+6}, s3, 3\ns_nop 0", f"s_mul_i32 s{T0+7}, s{T0+6}, 192", f"s_add_u32 s{T0+7}, s{T0+7}, {CSL}",
                          f"v_lshl_add_u32 v47, v5, 4, s{T0+7}",
                          "v_bfe_u32 v6, v0, 4, 1", "v_and_b32 v7, 15, v0\nv_lshlrev_b32 v6, 10, v6", "v_lshl_add_u32 v6, v5, 8, v6", "v_lshl_add_u32 v16, v7, 4, v6",
                          f"s_lshr_b32 s{T0+7}, s3, 2\ns_lshl1_add_u32 s{T0+7}, s{S_MT}, s{T0+7}", f"s_mul_i32 s{T0+7}, s{T0+7}, {68*4096}",
                          f"s_mul_i32 s{T0+8}, s{S_C}, {6*4096}", f"s_add_u32 s{T0+7}, s{T0+7}, s{T0+8}\ns_mul_i32 s{T0+6}, s{T0+6}, 3"]
            if s == 18:
                for n_ in range(3):
                    extra += [f"s_add_u32 s{T0+8}, s{T0+6}, {n_}\ns_lshr_b32 s{T0+9}, s{T0+8}, 1", f"s_lshl_b32 s{T0+9}, s{T0+9}, 12\ns_and_b32 s{T0+8}, s{T0+8}, 1",
                              f"s_lshl_b32 s{T0+8}, s{T0+8}, 9\ns_add_u32 s{T0+9}, s{T0+9}, s{T0+8}", f"s_add_u32 s{T0+1+n_}, s{T0+9}, s{T0+7}\ns_nop 0"]
            if s < 19:
                rd = reads(s + 1, Y)
            else:
                rd = []
                for n_ in range(3):
                    for mat in range(2):
                        for a_ in range(2):
                            r = self.csr(n_) + (mat * 2 + a_) * 4
                            rd.append(f"ds_read_b128 v[{r}:{r+3}], v47 offset:{n_*64 + a_*32 + mat*768}")
            mf = []
            for sub in range(2):
                for n_ in range(3):
                    for m in range(2):
                        c = 160 + (m * 3 + n_) * 16
                        cin = "0" if (s == 0 and sub == 0) else f"v[{c}:{c+15}]"
                        b = X + 16 + (sub * 3 + n_) * 4; a_ = X + (sub * 2 + m) * 4
                        mf.append(f"v_mfma_f32_32x32x16_bf16 v[{c}:{c+15}], v[{b}:{b+3}], v[{a_}:{a_+3}], {cin}")
            lists = [(rd, 0.0, 0.8)]
            if fill: lists.append((fill, 0.0, 1.0))
            if extra: lists.append((extra, 0.0, 0.9))
            self.interleave(mf, lists)
            self("s_waitcnt lgkmcnt(0)\ns_nop 0")
        self.ts(4)
        self("s_nop 7")
        for n_ in range(3):
            for m in range(2):
                c = 160 + (m * 3 + n_) * 16
                cs = self.csr(n_)
                nm, r2 = 56 + 2 * m, 57 + 2 * m
                if n_ == 2 and m == 0:
                    pass
                for r in range(16):
                    self(f"v_fmac_f32 v{c+r}, v{nm}, v{cs+r}")
                for r in range(8):
                    self(f"v_mul_f32 v{c+r}, v{c+r}, v{r2}")
                for r in range(8):
                    self(f"v_mul_f32 v{c+r}, v{c+r}, v{c+8+r}")
                for r in range(4):
                    self(f"v_cvt_pk_bf16_f32 v{c+8+r}, v{c+2*r}, v{c+2*r+1}")
                self(f"buffer_store_dwordx4 v[{c+8}:{c+11}], v16, {srd(SW)}, s{T0+1+n_} offen offset:{m*2048} sc1"); vm.issue("st")
        self.ts(5)
        self("s_branch P2_START")

    def csr(self, n):
        return [80, 96, 20][n]

    def align8(self):
        self(".p2align 3")

    def q_path(self):
        vm = VM()
        AB = 65536
        SCR = 122880
        CSL = SCR
        QS = 520
        self("Q_START:")
        self.px_pre()
        self(f"s_lshr_b32 s{T0+1}, s{S_MT}, 1\ns_mul_i32 s{T0+1}, s{T0+1}, {80*3072}\ns_mul_i32 s{T0+2}, s{S_C}, 384\ns_add_u32 s{T0+1}, s{T0+1}, s{T0+2}")
        self(f"s_mul_i32 s{T0+2}, s3, {8*3072}\ns_add_u32 s{T0+1}, s{T0+1}, s{T0+2}")
        for j in range(3):
            self.div24(j, 4, 5)
            self(f"v_mul_u32_u24 v4, 3072, v4\nv_lshl_add_u32 v{13+j}, v5, 4, v4")
        self(f"s_mul_i32 s{T0+2}, s3, 3072\ns_add_u32 s{T0+2}, s{T0+2}, {SCR}")
        self("s_waitcnt lgkmcnt(0)")
        self.ts(1)
        self.mk_srd(SX, P_X, 2048 * 1280)
        self.px_load(vm)
        self(f"s_bitcmp0_b32 s{S_MT}, 0\ns_cselect_b64 s[{SA}:{SA+1}], s[{P_WG}:{P_WG+1}], s[{P_WU}:{P_WU+1}]")
        self(f"s_mov_b32 s{SA+2}, {640*3072}\ns_mov_b32 s{SA+3}, 0x20000")
        for j in range(3):
            self(f"s_add_u32 m0, s{T0+2}, {j*1024}\ns_nop 0")
            self(f"buffer_load_dwordx4 v{13+j}, {srd(SA)}, s{T0+1} offen nt lds"); vm.issue("p")
        L = self.label()
        self(f"s_cmp_ge_u32 s3, 2\ns_cbranch_scc1 {L}")
        self(f"s_add_u32 s{T0+1}, s{T0+1}, {64*3072}")
        for j in range(3):
            self(f"s_add_u32 m0, s{T0+2}, {8*3072 + j*1024}\ns_nop 0")
            self(f"buffer_load_dwordx4 v{13+j}, {srd(SA)}, s{T0+1} offen nt lds"); vm.issue("p", True)
        self(f"{L}:")
        self.mk_srd(SW, P_WS, WSN)
        self.mk_srd(SD, P_DBG, 256)
        self.mk_srd(SB, P_QKV, 640 * 3840)
        self.a_dma_addr(0)
        self("v_subrev_u32 v15, 61440, v12")
        self(f"s_lshl_b32 s{T0+1}, s3, 7\ns_mul_i32 s{T0+2}, s{S_C}, 160")
        for j in range(2):
            self(f"v_add_u32 v5, s{T0+1}, v0")
            if j: self("v_add_u32 v5, 64, v5")
            self("v_mul_u32_u24 v4, 2185, v5\nv_lshrrev_b32 v4, 16, v4\nv_mul_u32_u24 v6, 30, v4\nv_sub_u32 v5, v5, v6")
            self("v_cmp_gt_u32 vcc, 32, v4")
            self("v_and_b32 v6, 24, v4\nv_bfe_u32 v7, v4, 1, 2\nv_add_u32 v6, v6, v7\nv_and_b32 v7, 1, v4\nv_lshl_add_u32 v6, v7, 2, v6")
            self("v_mul_u32_u24 v6, 3840, v6\nv_lshl_add_u32 v6, v5, 4, v6")
            self("v_mul_u32_u24 v7, 26, v5\nv_lshrrev_b32 v7, 8, v7\nv_mul_u32_u24 v7, 1120, v7")
            self(f"v_add3_u32 v6, v6, v7, s{T0+2}\nv_mov_b32 v7, {OOB}\nv_cndmask_b32 v{13+j}, v7, v6, vcc")
        self(f"s_mov_b32 s{S_KB}, 0\ns_mov_b32 s{S_A2}, 81920")
        self(f"s_lshl_b32 s{S_LB}, s3, 11\ns_lshl_b32 s{S_LA}, s3, 10")
        self(f"s_mov_b64 s[{S_HM}:{S_HM+1}], 0\ns_cmp_eq_u32 s3, 5\ns_cselect_b64 s[{S_HM}:{S_HM+1}], -1, s[{S_HM}:{S_HM+1}]")
        self(f"s_cmp_eq_u32 s3, 4\ns_cselect_b32 s{S_HM}, 0xffffff00, s{S_HM}\ns_cselect_b32 s{S_HM+1}, -1, s{S_HM+1}")
        for r in range(4):
            self(f"v_mov_b32 v{76+r}, 0x3f803f80")
        self(f"v_lshrrev_b32 v4, 3, v0\nv_min_u32 v4, 2, v4\nv_mul_u32_u24 v4, 18432, v4\nv_and_b32 v5, 7, v0\nv_lshl_add_u32 v4, v5, 4, v4\nv_add_u32 v4, {AB}, v4")
        self("ds_write_b128 v4, v[76:79]")
        self.stats(vm, 1)
        self.ts(2)
        self.a_addr(AB)
        self("v_bfe_u32 v4, v0, 4, 1\nv_lshrrev_b32 v5, 5, v0\nv_bfe_u32 v6, v0, 2, 2\nv_and_b32 v7, 3, v0")
        self("v_lshlrev_b32 v7, 3, v7\nv_lshl_add_u32 v7, v4, 5, v7")
        self("v_lshlrev_b32 v4, 3, v5\nv_lshl_add_u32 v5, v6, 1, v4\nv_add_u32 v4, v4, v6")
        self(f"s_and_b32 s{T0+1}, s3, 3\ns_lshl_b32 s{T0+1}, s{T0+1}, 7\ns_lshl_b32 s{T0+2}, s3, 6\ns_add_u32 s{T0+2}, s{T0+2}, {SCR}")
        self(f"v_mul_u32_u24 v5, 480, v5\nv_add3_u32 v60, v5, v7, s{T0+1}")
        self(f"v_mul_u32_u24 v4, 384, v4\nv_add3_u32 v61, v4, v7, s{T0+2}")
        self("s_cmp_ge_u32 s3, 4\ns_cbranch_scc1 Q_WM1")
        import copy
        vm1 = copy.deepcopy(vm)
        self.q_main(vm, 0, AB, SCR, CSL, QS)
        self("s_branch Q_ATT")
        self("Q_WM1:")
        self.q_main(vm1, 1, AB, SCR, CSL, QS)
        self("Q_ATT:")
        self.attention(QS)

    def q_main(self, vm, wm, AB, SCR, CSL, QS):
        NM = 3 if wm == 0 else 2
        toff = [0, 2048, 6144] if wm == 0 else [2048, 6144]
        def dmaB(s):
            return [(f"s_add_u32 m0, s{S_LB}, {lit((s%4)*16384 + j*1024)}",
                     f"buffer_load_dwordx4 v{13+j}, {srd(SB)}, s{S_KB} offen lds" + (f"\ns_add_u32 s{S_KB}, s{S_KB}, {32*3840}" if j == 1 else ""),
                     ("B", s), False) for j in range(2)]
        def dmaA(S):
            out = [(f"s_add_u32 m0, s{S_LA}, {lit(AB + (S%3)*18432 + 2048 + i*8192 - S*128)}",
                    f"buffer_load_dwordx4 v12, {srd(SX)}, {'s%d' % S_A2 if i else '0'} offen offset:{S*128} lds",
                    ("A", S), False) for i in range(2)]
            if wm == 1:
                L = self.label()
                out.insert(0, (f"s_add_u32 m0, s{S_LA}, {lit(AB + (S%3)*18432 - 4096 - S*128)}",
                            f"s_mov_b64 exec, s[{S_HM}:{S_HM+1}]\ns_cbranch_execz {L}\nbuffer_load_dwordx4 v15, {srd(SX)}, 0 offen offset:{S*128} lds\n{L}:\ns_mov_b64 exec, -1\ns_nop 0",
                            ("A", S), True))
            return out
        for d in dmaB(0) + dmaA(0) + dmaB(1) + dmaB(2) + dmaA(1) + dmaB(3) + dmaA(2):
            self(d[0] + "\ns_nop 0\n" + d[1]); vm.issue(d[2], d[3])
        def reads(s, Y):
            S = s >> 1
            rd = []
            for sub in range(2):
                for m in range(NM):
                    r = Y + (sub * 3 + m) * 4
                    rd.append(f"ds_read_b128 v[{r}:{r+3}], v{8 + (s&1)*2 + sub} offset:{(S%3)*18432 + toff[m]}")
                for n in range(2):
                    r = Y + 24 + (sub * 2 + n) * 4
                    o = (s % 4) * 16384 + sub * 7680 + n * 64
                    rd.append(f"ds_read_b64_tr_b16 v[{r}:{r+1}], v60 offset:{o}")
                    rd.append(f"ds_read_b64_tr_b16 v[{r+2}:{r+3}], v60 offset:{o+480}")
            return rd
        def need(s):
            return lambda t: t == ("B", s) or t == ("A", s >> 1)
        n = vm.wait(need(0))
        self(f"s_waitcnt vmcnt({n}) lgkmcnt(0)\ns_barrier")
        self.ts(3)
        for sub in range(5):
            r = 20 + sub * 4
            self(f"ds_read_b64_tr_b16 v[{r}:{r+1}], v61 offset:{sub*6144}")
            self(f"ds_read_b64_tr_b16 v[{r+2}:{r+3}], v61 offset:{sub*6144+1536}")
        for r in reads(0, 80):
            self(r)
        self(f"s_lshr_b32 s{T0+1}, s{S_MT}, 1\ns_lshl3_add_u32 s{T0+1}, s{S_C}, s{T0+1}\ns_mul_i32 s{T0+1}, s{T0+1}, 1536")
        self(f"s_and_b32 s{T0+2}, s{S_MT}, 1\ns_mul_i32 s{T0+2}, s{T0+2}, 768\ns_add_u32 s{T0+1}, s{T0+1}, s{T0+2}")
        self(f"s_lshl_b32 s{T0+2}, s3, 7\ns_add_u32 s{T0+1}, s{T0+1}, s{T0+2}\ns_add_u32 s{T0+1}, s{T0+1}, {CS}")
        self(f"s_cmp_lt_u32 s3, 6\ns_cselect_b32 s{T0+1}, s{T0+1}, {OOB}")
        self("v_lshrrev_b32 v4, 5, v0\nv_lshl_add_u32 v4, v4, 26, v3")
        self("s_waitcnt lgkmcnt(0)")
        for sub in range(5):
            r = 20 + sub * 4
            self(f"v_mfma_f32_32x32x16_bf16 v[40:55], v[76:79], v[{r}:{r+3}], {'0' if sub == 0 else 'v[40:55]'}")
        self.align8()
        pendA = []
        for s in range(20):
            X = 80 + (s & 1) * 40; Y = 80 + ((s + 1) & 1) * 40
            pred = need(s + 1) if s < 19 else (lambda t: False)
            also = {3: ("early",), 5: ("pk",), 8: ("pkst",), 15: ("poll",), 19: ("stat", "poll2")}.get(s, ())
            p0 = pred
            pred = lambda t, p0=p0, also=also: p0(t) or t in also
            n = vm.wait(pred)
            self(f"s_waitcnt vmcnt({n})" if n is not None else "s_nop 0")
            self("s_barrier")
            if s == 15:
                self(self.poll_check(0, 256, 42)); self.align8()
            if s == 19:
                self(self.poll_check(128, 128, 43)); self.align8()
            fill = []; extra = []
            if s == 0:
                u, ks, Lc, base, al, be, ga = (T0 + i for i in range(2, 9))
                extra += [f"s_add_u32 s{u}, s3, 4\ns_and_b32 s{u}, s{u}, 7", f"s_lshl_b32 s{u}, s{u}, 4\ns_add_u32 s{u}, s{u}, s{S_MT}",
                          f"s_lshl3_add_u32 s{u}, s{u}, s{S_C}\ns_nop 0", f"s_mul_i32 s{ks}, s{u}, 6554", f"s_lshr_b32 s{ks}, s{ks}, 16\ns_mul_i32 s{Lc}, s{ks}, 10",
                          f"s_sub_u32 s{Lc}, s{u}, s{Lc}\ns_lshl_b32 s{base}, s{ks}, 5",
                          f"s_sub_u32 s{al}, s{ks}, 48\ns_mul_i32 s{al}, s{al}, 40",
                          f"s_mov_b32 s{T0+9}, {640*1280}",
                          f"s_cmp_lt_u32 s{ks}, 48\ns_cselect_b32 s{base}, s{base}, s{al}\n"
                          f"s_cselect_b32 s{al}, 16, 8\ns_cselect_b32 s{ga}, 8, 20\n"
                          f"s_cselect_b64 s[{SA}:{SA+1}], s[{P_WD}:{P_WD+1}], s[{P_WO}:{P_WO+1}]\ns_mov_b32 s{be}, 4\n"
                          f"s_cselect_b32 s{SA+2}, {1536*1280}, s{T0+9}",
                          f"s_sub_u32 s{T0+9}, s{ks}, 64\ns_nop 0", f"s_mul_i32 s{T0+9}, s{T0+9}, 160",
                          f"s_add_u32 s{T0+9}, s{T0+9}, 16\ns_cmp_ge_u32 s{ks}, 64\n"
                          f"s_cselect_b32 s{base}, s{T0+9}, s{base}\ns_cselect_b32 s{be}, 40, s{be}\ns_cselect_b32 s{al}, 80, s{al}",
                          f"s_cmp_ge_u32 s{ks}, 68\ns_cselect_b32 s{SA+2}, 0, s{SA+2}\ns_nop 0"]
                self.pk = (u, ks, Lc, base, al, be, ga)
            if s == 1:
                u, ks, Lc, base, al, be, ga = self.pk
                fill.append(f"buffer_store_dword v40, v4, {srd(SW)}, s{T0+1} offen sc1"); vm.issue("early")
                extra += [f"s_mul_i32 s{base}, s{base}, 1280", f"s_lshl_b32 s{T0+9}, s{Lc}, 7\ns_add_u32 s{base}, s{base}, s{T0+9}",
                          f"s_mul_i32 s{al}, s{al}, 1280", f"s_mul_i32 s{be}, s{be}, 1280",
                          f"s_add_u32 s{al}, s{al}, s{base}\ns_add_u32 s{u}, s{al}, s{be}", f"s_add_u32 s{be}, s{be}, s{base}\nv_lshrrev_b32 v5, 5, v0",
                          f"v_mul_u32_u24 v5, s{ga}, v5\nv_and_b32 v7, 7, v0", "v_bfe_u32 v6, v0, 3, 2", "v_add_u32 v5, v5, v6\nv_lshlrev_b32 v7, 4, v7",
                          "v_mul_u32_u24 v5, 1280, v5", f"v_add_u32 v62, v5, v7\ns_lshl_b32 s{ga}, s3, 12", f"s_add_u32 s{ga}, s{ga}, {SCR}"]
            dm = []
            if s + 4 < 20:
                dm += dmaB(s + 4)
            if s & 1 and (s >> 1) + 3 < 10:
                dm += dmaA((s >> 1) + 3)
            for d in dm:
                fill.append((d[0], d[1])); vm.issue(d[2], d[3])
            if s == 2:
                u, ks, Lc, base, al, be, ga = self.pk
                for i, so in enumerate((base, be, al, u)):
                    fill.append((f"s_add_u32 m0, s{ga}, {lit(i*1024)}", f"buffer_load_dwordx4 v62, {srd(SA)}, s{so} offen nt lds")); vm.issue("pk")
            if s == 3:
                fill += self.atomic(vm, 0); vm.issue("at")
                u, ks, Lc, base, al, be, ga = self.pk
                extra += ["v_lshrrev_b32 v5, 4, v0\nv_and_b32 v7, 3, v0", "v_bfe_u32 v6, v0, 2, 2", "v_lshl_add_u32 v5, v5, 3, v6",
                          "v_lshlrev_b32 v5, 7, v5\nv_lshlrev_b32 v7, 3, v7", f"v_add3_u32 v63, v5, v7, s{ga}"]
            if s == 4:
                u, ks, Lc, base, al, be, ga = self.pk
                dst = (base, be, al, u)
                extra += [f"s_mul_i32 s{T0+9}, s{ks}, 5120", f"s_add_u32 s{T0+9}, s{T0+9}, {W2P}", f"s_cmp_ge_u32 s{ks}, 68\ns_cselect_b32 s{T0+9}, {OOB}, s{T0+9}"]
                for i in range(4):
                    d = dst[i]
                    extra += [f"s_lshl2_add_u32 s{d}, s{Lc}, {i}\ns_mul_i32 s{T0+11}, s{d}, 52", f"s_lshr_b32 s{T0+11}, s{T0+11}, 8\ns_lshl_b32 s{d}, s{d}, 10",
                              f"s_mul_i32 s{T0+11}, s{T0+11}, {67*5120}", f"s_add_u32 s{d}, s{d}, s{T0+11}\ns_add_u32 s{d}, s{d}, s{T0+9}"]
            if s == 5:
                for i in range(4):
                    r = 20 + i * 4
                    extra += [f"ds_read_b64_tr_b16 v[{r}:{r+1}], v63 offset:{i*32}", f"ds_read_b64_tr_b16 v[{r+2}:{r+3}], v63 offset:{i*32+512}"]
            if s == 6:
                u, ks, Lc, base, al, be, ga = self.pk
                for i, so in enumerate((base, be, al, u)):
                    fill.append(f"buffer_store_dwordx4 v[{20+4*i}:{23+4*i}], v2, {srd(SW)}, s{so} offen sc1"); vm.issue("pkst")
            if s == 8:
                fill += self.atomic(vm, 128); vm.issue("at")
            if s == 12:
                fill.append(f"buffer_load_dword v42, off, {srd(SD)}, 0 sc1"); vm.issue("poll")
            if s == 16:
                fill.append(f"buffer_load_dword v43, off, {srd(SD)}, 0 offset:128 sc1"); vm.issue("poll2")
            if s == 14:
                extra += [f"s_lshl_b32 s{T0+5}, s{S_MT}, 7\nv_and_b32 v4, 31, v0", f"v_add_u32 v5, s{T0+5}, v4\nv_lshlrev_b32 v45, 3, v5",
                          "v_subrev_u32 v5, 16, v5\nv_max_i32 v5, 0, v5", f"v_lshlrev_b32 v44, 3, v5\ns_nop 0", f"s_mov_b32 s{T0+5}, {STATS}"]
            if s == 15:
                k = 0
                if wm == 0:
                    fill.append(f"buffer_load_dwordx2 v[48:49], v44, {srd(SW)}, s{T0+5} offen sc1"); vm.issue("stat"); k = 1
                for m in range(2):
                    fill.append(f"buffer_load_dwordx2 v[{48+2*(k+m)}:{49+2*(k+m)}], v45, {srd(SW)}, s{T0+5} offen offset:{wm*512 + m*256} sc1"); vm.issue("stat")
            if s == 17:
                extra += [f"s_and_b32 s{T0+6}, s3, 3\nv_lshrrev_b32 v5, 5, v0", f"s_lshl_b32 s{T0+7}, s{T0+6}, 8\nv_and_b32 v4, 31, v0", f"s_add_u32 s{T0+7}, s{T0+7}, {CSL}",
                          f"v_lshl_add_u32 v46, v5, 4, s{T0+7}", f"v_mul_u32_u24 v4, {QS}, v4", f"s_lshl_b32 s{T0+6}, s{T0+6}, 7\nv_lshlrev_b32 v5, 3, v5",
                          f"v_add3_u32 v47, v4, v5, s{T0+6}"]
            rd = reads(s + 1, Y) if s < 19 else []
            mf = []
            order = [(sub, n_, m) for sub in range(2) for n_ in range(2) for m in range(NM)]
            if s == 19:
                order = sorted(order, key=lambda z: (z[2], z[0], z[1]))
            for sub, n_, m in order:
                c = 160 + (m * 2 + n_) * 16
                cin = "0" if (s == 0 and sub == 0) else f"v[{c}:{c+15}]"
                b = X + 24 + (sub * 2 + n_) * 4; a_ = X + (sub * 3 + m) * 4
                mf.append(f"v_mfma_f32_32x32x16_bf16 v[{c}:{c+15}], v[{b}:{b+3}], v[{a_}:{a_+3}], {cin}")
            lists = []
            if rd: lists.append((rd, 0.0, 0.8))
            if fill: lists.append((fill, 0.0, 1.0))
            if extra: lists.append((extra, 0.0, 0.9))
            self.interleave(mf, lists)
            self("s_waitcnt lgkmcnt(0)\ns_nop 0")
        self.ts(4)
        if wm == 0:
            self("s_nop 3\ns_mov_b32 exec_lo, 1\ns_mov_b32 exec_hi, 1")
            for n_ in range(2):
                for a_ in range(4):
                    c = 160 + n_ * 16 + a_ * 4
                    self(f"ds_write_b128 v46, v[{c}:{c+3}] offset:{n_*128 + a_*32}")
            self("s_mov_b64 exec, -1")
        self("s_waitcnt lgkmcnt(0)\ns_barrier")
        for n_ in range(2):
            for a_ in range(4):
                r = 80 + n_ * 16 + a_ * 4
                self(f"ds_read_b128 v[{r}:{r+3}], v46 offset:{n_*128 + a_*32}")
        self("s_nop 7\ns_waitcnt lgkmcnt(0)")
        rowoff = [0, 16, 48] if wm == 0 else [80, 112]
        for m in range(NM):
            nm, rs = 48 + 2 * m, 49 + 2 * m
            for n_ in range(2):
                c = 160 + (m * 2 + n_) * 16
                for r in range(16):
                    self(f"v_fmac_f32 v{c+r}, v{nm}, v{80+n_*16+r}")
                for r in range(16):
                    self(f"v_mul_f32 v{c+r}, v{c+r}, v{rs}")
                for r in range(8):
                    self(f"v_cvt_pk_bf16_f32 v{c+r}, v{c+2*r}, v{c+2*r+1}")
                for a_ in range(4):
                    self(f"ds_write_b64 v47, v[{c+2*a_}:{c+2*a_+1}] offset:{rowoff[m]*QS + n_*64 + a_*16}")

    def attention(self, QS):
        self("v_and_b32 v4, 15, v0\nv_lshrrev_b32 v5, 4, v0")
        self(f"s_mul_i32 s{T0+1}, s3, {16*QS}")
        self(f"v_mul_u32_u24 v6, {QS}, v4\nv_add_u32 v9, s{T0+1}, v6\nv_lshl_add_u32 v8, v5, 3, v9")
        self(f"v_add_u32 v11, v9, v6\nv_lshl_add_u32 v10, v5, 3, v11")
        self(f"v_lshrrev_b32 v6, 2, v0\nv_mul_u32_u24 v6, {2*QS}, v6\nv_add_u32 v6, s{T0+1}, v6\nv_and_b32 v7, 3, v0")
        self("v_lshl_add_u32 v12, v7, 3, v6\nv_mad_u32_u24 v13, v7, 40, v6")
        self("v_and_b32 v6, 1, v0\nv_add_u32 v14, -1, v6\nv_sub_u32 v15, 0, v6")
        self("v_cmp_gt_u32 vcc, 16, v0\ns_nop 1\nv_cndmask_b32 v60, 0, v14, vcc\nv_cndmask_b32 v61, 0, v15, vcc")
        self(f"s_or_b32 s{T0+2}, s{S_MT}, s3\ns_cmp_eq_u32 s{T0+2}, 0\ns_cselect_b32 s{T0+2}, 8, 0")
        self(f"v_lshrrev_b32 v6, 1, v4\nv_add_u32 v7, 1, v6\nv_max_u32 v7, s{T0+2}, v7\nv_add_u32 v6, 8, v6\nv_mov_b32 v62, {f2u(-1e30)}")
        for r in range(4):
            self(f"v_lshl_add_u32 v63, v5, 2, {r}\nv_cmp_le_u32 vcc, v7, v63\nv_cmp_ge_u32_e64 s[{T0+4}:{T0+5}], v6, v63")
            self(f"s_nop 1\ns_and_b64 vcc, vcc, s[{T0+4}:{T0+5}]\ns_nop 1\nv_cndmask_b32 v{64+r}, v62, 0, vcc" .replace("v_cndmask_b32 v", "v_cndmask_b32_e64 v"))
        for h in range(1, 4):
            self(f"v_cmp_eq_u32_e64 s[{T0+4+2*h}:{T0+5+2*h}], {h}, v5")
        self(f"s_lshr_b32 s{T0+1}, s3, 2\ns_lshl1_add_u32 s{T0+1}, s{S_MT}, s{T0+1}\ns_mul_i32 s{T0+1}, s{T0+1}, {68*4096}")
        self(f"s_and_b32 s{T0+2}, s3, 3\ns_lshl_b32 s{T0+2}, s{T0+2}, 10\ns_add_u32 s{T0+1}, s{T0+1}, s{T0+2}")
        self(f"s_lshl_b32 s{T0+2}, s{S_C}, 13\ns_add_u32 s{T0+2}, s{T0+2}, s{T0+1}\ns_add_u32 s{T0+2}, s{T0+2}, {48*4096}\ns_add_u32 s{T0+3}, s{T0+2}, 4096")
        self(f"s_lshr_b32 s{T0+12}, s{S_C}, 1\ns_lshl_b32 s{T0+12}, s{T0+12}, 12\ns_add_u32 s{T0+1}, s{T0+1}, s{T0+12}")
        self(f"s_and_b32 s{T0+12}, s{S_C}, 1\ns_lshl_b32 s{T0+12}, s{T0+12}, 9\ns_add_u32 s{T0+1}, s{T0+1}, s{T0+12}\ns_add_u32 s{T0+1}, s{T0+1}, {64*4096}")
        self("v_lshrrev_b32 v6, 1, v5\nv_lshlrev_b32 v6, 8, v6\nv_lshl_add_u32 v6, v4, 4, v6\nv_and_b32 v7, 1, v5\nv_lshl_add_u32 v16, v7, 26, v6")
        self("s_waitcnt lgkmcnt(0)\ns_barrier")
        self.ts(5)
        Qr, Ke, Ko, Vf, Vr = 80, 96, 112, 128, 144
        Qe, Qo, Sx, Pf = 160, 176, 192, 208
        for h in range(4):
            self(f"ds_read_b64 v[{Qr+4*h}:{Qr+4*h+1}], v8 offset:{16*QS + 40*h}")
            self(f"ds_read_b64 v[{Qr+4*h+2}:{Qr+4*h+3}], v9 offset:{16*QS + 40*h + 32}")
            self(f"ds_read_b64 v[{Ke+4*h}:{Ke+4*h+1}], v10 offset:{160 + 40*h}")
            self(f"ds_read_b64 v[{Ke+4*h+2}:{Ke+4*h+3}], v11 offset:{160 + 40*h + 32}")
            self(f"ds_read_b64 v[{Ko+4*h}:{Ko+4*h+1}], v10 offset:{QS + 160 + 40*h}")
            self(f"ds_read_b64 v[{Ko+4*h+2}:{Ko+4*h+3}], v11 offset:{QS + 160 + 40*h + 32}")
        self("s_waitcnt lgkmcnt(0)")
        for h in range(4):
            self(f"ds_read_b64_tr_b16 v[{Vf+4*h}:{Vf+4*h+1}], v12 offset:{320 + 40*h}")
            self(f"ds_read_b64_tr_b16 v[{Vf+4*h+2}:{Vf+4*h+3}], v12 offset:{QS + 320 + 40*h}")
        self(f"ds_read_b64_tr_b16 v[{Vr}:{Vr+1}], v13 offset:{320 + 32}")
        self(f"ds_read_b64_tr_b16 v[{Vr+2}:{Vr+3}], v13 offset:{QS + 320 + 32}")
        for h in range(4):
            for r in range(4):
                self(f"v_and_b32 v{Qe+4*h+r}, v{Qr+4*h+r}, v{14 if r < 2 else 60}")
            for r in range(4):
                self(f"v_and_b32 v{Qo+4*h+r}, v{Qr+4*h+r}, v{15 if r < 2 else 61}")
        self("s_nop 1")
        for h in range(4):
            self(f"v_mfma_f32_16x16x32_bf16 v[{Sx+4*h}:{Sx+4*h+3}], v[{Ke+4*h}:{Ke+4*h+3}], v[{Qe+4*h}:{Qe+4*h+3}], v[64:67]")
        for h in range(4):
            self(f"v_mfma_f32_16x16x32_bf16 v[{Sx+4*h}:{Sx+4*h+3}], v[{Ko+4*h}:{Ko+4*h+3}], v[{Qo+4*h}:{Qo+4*h+3}], v[{Sx+4*h}:{Sx+4*h+3}]")
        self("s_nop 7")
        M = 68
        for h in range(4):
            s = Sx + 4 * h
            self(f"v_max3_f32 v{M+h}, v{s}, v{s+1}, v{s+2}\nv_max_f32 v{M+h}, v{M+h}, v{s+3}")
        sc = 20 ** -0.5 * 1.4426950408889634
        def red(op, post):
            self(f"s_nop 1\nv_permlane16_swap_b32 v{M}, v{M+1}\nv_permlane16_swap_b32 v{M+2}, v{M+3}\ns_nop 0")
            self(f"{op} v{M}, v{M}, v{M+1}\n{op} v{M+2}, v{M+2}, v{M+3}\ns_nop 1\nv_permlane32_swap_b32 v{M}, v{M+2}\ns_nop 0\n{op} v{M}, v{M}, v{M+2}")
            self(post)
            self(f"v_mov_b32 v{M+2}, v{M}\ns_nop 1\nv_permlane32_swap_b32 v{M}, v{M+2}\ns_nop 0")
            self(f"v_mov_b32 v{M+1}, v{M}\nv_mov_b32 v{M+3}, v{M+2}\ns_nop 1\nv_permlane16_swap_b32 v{M}, v{M+1}\nv_permlane16_swap_b32 v{M+2}, v{M+3}\ns_nop 0")
        red("v_max_f32", f"v_mul_f32 v{M}, {f2u(-sc)}, v{M}")
        self(f"s_mov_b32 s{T0+13}, {f2u(sc)}")
        for h in range(4):
            for r in range(4):
                self(f"v_fma_f32 v{Sx+4*h+r}, v{Sx+4*h+r}, s{T0+13}, v{M+h}")
        for h in range(4):
            for r in range(4):
                self(f"v_exp_f32 v{Sx+4*h+r}, v{Sx+4*h+r}")
        self("s_nop 0")
        for h in range(4):
            s = Sx + 4 * h
            self(f"v_add_f32 v{M+h}, v{s}, v{s+1}\nv_add_f32 v72, v{s+2}, v{s+3}\nv_add_f32 v{M+h}, v{M+h}, v72")
        red("v_add_f32", f"v_rcp_f32 v{M}, v{M}\ns_nop 0")
        for h in range(4):
            s = Sx + 4 * h
            for r in range(4):
                self(f"v_mul_f32 v{s+r}, v{s+r}, v{M+h}")
            self(f"v_cvt_pk_bf16_f32 v{s}, v{s}, v{s+1}\nv_cvt_pk_bf16_f32 v{s+1}, v{s+2}, v{s+3}")
            p = Pf + 4 * h
            self(f"v_and_b32 v{p}, v{s}, v14\nv_and_b32 v{p+1}, v{s+1}, v14\nv_and_b32 v{p+2}, v{s}, v15\nv_and_b32 v{p+3}, v{s+1}, v15")
        self("s_waitcnt lgkmcnt(0)\ns_nop 1")
        O, R = 224, 240
        for h in range(4):
            self(f"v_mfma_f32_16x16x32_bf16 v[{O+4*h}:{O+4*h+3}], v[{Vf+4*h}:{Vf+4*h+3}], v[{Pf+4*h}:{Pf+4*h+3}], 0")
        for h in range(4):
            self(f"v_mfma_f32_16x16x32_bf16 v[{R+4*h}:{R+4*h+3}], v[{Vr}:{Vr+3}], v[{Pf+4*h}:{Pf+4*h+3}], 0")
        self("s_nop 3")
        for k in range(2):
            d = 192 + 4 * k
            for q in range(4):
                self(f"v_cvt_pk_bf16_f32 v{d+q}, v{O+8*k+2*q}, v{O+8*k+2*q+1}")
            self(f"buffer_store_dwordx4 v[{d}:{d+3}], v2, {srd(SW)}, s{T0+2+k} offen sc1")
        for h in range(1, 4):
            for r in range(4):
                self(f"v_cndmask_b32_e64 v{R+r}, v{R+r}, v{R+4*h+r}, s[{T0+4+2*h}:{T0+5+2*h}]")
        self(f"v_cvt_pk_bf16_f32 v200, v{R}, v{R+1}\nv_cvt_pk_bf16_f32 v201, v{R+2}, v{R+3}")
        self("v_mov_b32 v202, v200\nv_mov_b32 v203, v201\ns_nop 1\nv_permlane16_swap_b32 v200, v202\nv_permlane16_swap_b32 v201, v203\ns_nop 0")
        self(f"buffer_store_dwordx4 v[200:203], v16, {srd(SW)}, s{T0+1} offen sc1")
        self("s_barrier")

    def p2(self):
        vm = VM()
        vm.issue("st")
        self("P2_START:")
        M2, N2, PH, WB, AB_, LW = T0 + 1, T0 + 2, T0 + 3, T0 + 4, T0 + 5, T0 + 6
        KS = T0 + 8
        self(f"s_bfe_u32 s{M2}, s2, 0x20003\ns_lshr_b32 s{N2}, s2, 5")
        self(f"s_mul_i32 s{PH}, s3, 9\ns_lshl3_add_u32 s{WB}, s3, 3\ns_cmp_lt_u32 s3, 4\ns_cselect_b32 s{PH}, s{PH}, s{WB}")
        self(f"s_lshl1_add_u32 s{WB}, s{M2}, s{N2}\ns_add_u32 s{PH}, s{PH}, s{WB}")
        self(f"s_lshl2_add_u32 s{M2}, s{S_C}, s{M2}")
        self(f"s_mul_i32 s{WB}, s{N2}, {68*5120}\ns_add_u32 s{WB}, s{WB}, {W2P}")
        self(f"s_mul_i32 s{AB_}, s{M2}, {68*4096}")
        self(f"s_mul_i32 s{LW}, s3, 20480")
        for i in range(9):
            self(f"s_add_u32 s{KS+i}, s{PH}, {i}\ns_cmp_ge_u32 s{KS+i}, 68\ns_cselect_b32 s{T0+7}, 68, 0\ns_sub_u32 s{KS+i}, s{KS+i}, s{T0+7}")
        WR = lambda i: 76 + (i % 5) * 20
        Ls = self.label()
        for i in range(9):
            if i == 0:
                self(f"s_cmp_ge_u32 s3, 4\ns_cbranch_scc1 {Ls}")
            self(f"s_mul_i32 s{T0+7}, s{KS+i}, 5120\ns_add_u32 s{T0+7}, s{T0+7}, s{WB}")
            for t in range(5):
                if t == 4:
                    self(f"s_add_u32 s{T0+7}, s{T0+7}, 4096")
                o = (t % 4) * 1024
                if i < 5:
                    r = WR(i) + 4 * t
                    self(f"buffer_load_dwordx4 v[{r}:{r+3}], v2, {srd(SW)}, s{T0+7} offen offset:{o} sc1")
                else:
                    self(f"s_add_u32 m0, s{LW}, {(i-5)*5120 + t*1024 - o}\ns_nop 0")
                    self(f"buffer_load_dwordx4 v2, {srd(SW)}, s{T0+7} offen offset:{o} sc1 lds")
                vm.issue(("W", i), i == 0)
            if i == 0:
                self(f"{Ls}:")
            if i == self.o.get("pub_after", 1):
                n = vm.wait(lambda t: t == "st")
                self(f"s_waitcnt vmcnt({n})\ns_barrier")
                self.ts(6)
                self(f"v_mov_b32 v18, 1\ns_nop 0\nbuffer_store_dword v18, v19, {srd(SW)}, s{S_FLAG} offen sc1"); vm.issue("fl")
        ACC = 176
        for r in range(80):
            self(f"v_mov_b32 v{ACC+r}, 0")
        for i in range(9):
            self(f"s_lshl_b32 s{KS+i}, s{KS+i}, 12\ns_add_u32 s{KS+i}, s{KS+i}, s{AB_}")
        self(f"v_add_u32 v11, s{LW}, v2")
        self.mk_srd(SA, P_OUT, 2048 * 1280)
        self(f"s_lshl_b32 s{T0+7}, s{M2}, 6\ns_lshl3_add_u32 s{T0+7}, s3, s{T0+7}\ns_mul_i32 s{T0+7}, s{T0+7}, 1280\ns_mul_i32 s{PH}, s{N2}, 160\ns_add_u32 s{PH}, s{PH}, s{T0+7}")
        for rnd in range(3):
            self(f"v_add_u32 v12, {64*rnd}, v0\nv_mul_u32_u24 v13, 3277, v12\nv_lshrrev_b32 v13, 16, v13\nv_mul_u32_u24 v14, 20, v13\nv_sub_u32 v12, v12, v14")
            self("v_bfe_u32 v14, v13, 1, 2\nv_xor_b32 v12, v12, v14\nv_mul_u32_u24 v13, 1280, v13")
            self(f"v_lshl_add_u32 v{4+rnd}, v12, 3, v13")
        self("v_lshrrev_b32 v12, 5, v0\nv_lshl_add_u32 v6, v12, 26, v6")
        self("v_and_b32 v12, 15, v0\nv_lshrrev_b32 v13, 4, v0\nv_bfe_u32 v14, v0, 1, 2\nv_xor_b32 v13, v13, v14\nv_mul_u32_u24 v12, 320, v12")
        self(f"v_lshl_add_u32 v12, v13, 4, v12\nv_add_u32 v7, s{LW}, v12")
        self(f"s_mul_i32 s{T0+7}, s3, 2560\nv_add_u32 v8, s{T0+7}, v2\nv_add_u32 v9, 61440, v8\nv_add_u32 v10, 122880, v8")
        Lp, Lw = self.label(), self.label()
        self(f"s_cmp_lg_u32 s3, 0\ns_cbranch_scc1 {Lw}")
        self(f"s_lshr_b32 s{T0+7}, s{M2}, 1\ns_lshl_b32 s{T0+7}, s{T0+7}, 7\ns_add_u32 s{T0+7}, s{T0+7}, {FLAGS}")
        self(f"v_and_b32 v12, 60, v3\ns_mov_b32 s{T0+19}, 0")
        self(f"{Lp}:\nbuffer_load_dword v13, v12, {srd(SW)}, s{T0+7} offen sc1\ns_waitcnt vmcnt(0)")
        self(f"v_cmp_ne_u32 vcc, 1, v13\ns_nop 4\ns_cbranch_vccz {Lw}\ns_addk_i32 s{T0+19}, 1\ns_cmp_ge_u32 s{T0+19}, {SPIN}\ns_cbranch_scc1 {Lw}\ns_sleep 1\ns_branch {Lp}")
        self(f"{Lw}:\ns_barrier")
        self.ts(7)
        NB = 4
        AR = lambda i: 12 + (i % NB) * 16
        def ldA(i):
            out = []
            for m in range(4):
                r = AR(i) + 4 * m
                out.append(f"buffer_load_dwordx4 v[{r}:{r+3}], v2, {srd(SW)}, s{KS+i} offen offset:{m*1024} sc1")
            return out
        Ls = self.label()
        self(f"s_cmp_ge_u32 s3, 4\ns_cbranch_scc1 {Ls}")
        for l in ldA(0):
            self(l); vm.issue(("A", 0), True)
        self(f"{Ls}:")
        for i in range(1, NB):
            for l in ldA(i):
                self(l); vm.issue(("A", i))
        XR = 76 + 4 * 20
        for i in range(9):
            n = vm.wait(lambda t: t == ("A", i) or (isinstance(t, tuple) and t[0] == "W"))
            Ls = None
            if i == 0:
                Ls = self.label()
                self(f"s_waitcnt vmcnt({n})\ns_cmp_ge_u32 s3, 4\ns_cbranch_scc1 {Ls}")
                self.align8()
            else:
                self(f"s_waitcnt vmcnt({n}) lgkmcnt(0)\ns_nop 0")
            mf = []
            for m in range(4):
                for t in range(5):
                    c = ACC + (m * 5 + t) * 4
                    mf.append(f"v_mfma_f32_16x16x32_bf16 v[{c}:{c+3}], v[{WR(i)+4*t}:{WR(i)+4*t+3}], v[{AR(i)+4*m}:{AR(i)+4*m+3}], v[{c}:{c+3}]")
            fill = []
            if i >= 1:
                if i - 1 + NB < 9:
                    fill += ldA(i - 1 + NB)
                    for _ in range(4): vm.issue(("A", i - 1 + NB))
                if i - 1 + 5 < 9:
                    for t in range(5):
                        r = WR(i - 1) + 4 * t
                        fill.append(f"ds_read_b128 v[{r}:{r+3}], v11 offset:{(i-1)*5120 + t*1024}")
                if i == 6:
                    for rnd in range(3):
                        fill.append(f"buffer_load_dwordx2 v[{XR+2*rnd}:{XR+2*rnd+1}], v{4+rnd}, {srd(SX)}, s{PH} offen"); vm.issue("x")
            self.interleave(mf, [(fill, 0.0, 0.7)] if fill else [])
            if Ls:
                self(f"{Ls}:")
                self.align8()
        self.ts(8)
        self("s_nop 7")
        for m in range(4):
            for t in range(5):
                c = ACC + (m * 5 + t) * 4
                self(f"ds_write_b128 v7, v[{c}:{c+3}] offset:{m*5120 + t*64}")
        self("s_waitcnt lgkmcnt(0)\ns_barrier")
        RB = 12
        for rnd in range(3):
            for src in range(8):
                r = (RB + rnd * 32 + src * 4) if rnd < 2 else (176 + src * 4)
                self(f"ds_read_b128 v[{r}:{r+3}], v{8 + src//3} offset:{(src%3)*20480 + rnd*1024}")
        self("s_waitcnt vmcnt(0)")
        for rnd in range(3):
            b = (RB + rnd * 32) if rnd < 2 else 176
            self(f"s_waitcnt lgkmcnt({[15,8,0][rnd]})" if (rnd > 0 and not self.instr) else ("s_waitcnt lgkmcnt(0)" if self.instr else "s_waitcnt lgkmcnt(15)\ns_waitcnt lgkmcnt(15)"))
            if rnd == 0 and not self.instr:
                pass
            x = XR + 2 * rnd
            self(f"v_lshlrev_b32 v{XR+8}, 16, v{x}\nv_and_b32 v{XR+9}, 0xffff0000, v{x}\nv_lshlrev_b32 v{XR+10}, 16, v{x+1}\nv_and_b32 v{XR+11}, 0xffff0000, v{x+1}")
            for st in (4, 8, 16):
                for k in range(0, 32, 2 * st):
                    for r in range(4):
                        self(f"v_add_f32 v{b+k+r}, v{b+k+r}, v{b+k+st+r}")
            for r in range(4):
                self(f"v_add_f32 v{b+r}, v{b+r}, v{XR+8+r}")
            self(f"v_cvt_pk_bf16_f32 v{b}, v{b}, v{b+1}\nv_cvt_pk_bf16_f32 v{b+1}, v{b+2}, v{b+3}")
            self(f"buffer_store_dwordx2 v[{b}:{b+1}], v{4+rnd}, {srd(SA)}, s{PH} offen")
        if self.instr:
            self("s_waitcnt vmcnt(0)")
            self.ts(9)
            self(f"s_memrealtime s[{T0+2}:{T0+3}]\ns_waitcnt lgkmcnt(0)")
            for i in range(1, 10):
                self(f"s_sub_u32 s{T0}, s{TSB+2*i}, s{TSB}\nv_mov_b32 v{20+i}, s{T0}")
            self(f"v_mov_b32 v20, s100\nv_mov_b32 v30, s{T0+2}\nv_mov_b32 v31, 0")
            self(f"s_lshl3_add_u32 s{T0}, s2, s3\ns_lshl_b32 s{T0}, s{T0}, 6\ns_add_u32 s{T0}, s{T0}, {TS}\nv_lshlrev_b32 v12, 26, v0")
            for q in range(3):
                self(f"buffer_store_dwordx4 v[{20+4*q}:{23+4*q}], v12, {srd(SW)}, s{T0} offen offset:{16*q}")

    def build(self):
        k = NAME + "_kernel"
        self(header([f"@launch grid=(256,1,1) block=(512,1,1) lds={160*1024}"]))
        self(kbegin(k))
        self.ts(0)
        if self.instr:
            self("s_memrealtime s[100:101]")
        self("s_load_dwordx16 s[4:19], s[0:1], 0\ns_load_dwordx4 s[20:23], s[0:1], 64")
        self("v_lshrrev_b32 v1, 6, v0\nv_and_b32 v0, 63, v0")
        self("s_cmp_ge_u32 s2, 256\ns_cbranch_scc1 K_END")
        self("v_readfirstlane_b32 s3, v1")
        self(f"s_and_b32 s{S_C}, s2, 7\ns_lshr_b32 s{S_MT}, s2, 4")
        self("s_bitcmp1_b32 s2, 3\ns_cbranch_scc1 Q_START")
        self.h_path()
        self.q_path()
        self.p2()
        self("K_END:\ns_endpgm")
        self("K_LAST:")
        self(f".set CODE_SPAN, K_LAST - {k} - 512")
        self(kdesc(k, 256, 102, 256))
        return self.a.text()

def lit(v):
    return str(v) + ("\ns_nop 0" if -16 <= v <= 64 else "")

if __name__ == "__main__":
    out = sys.argv[1]
    instr = "instr" in sys.argv[2:]
    opts = {}
    for x in sys.argv[2:]:
        if "=" in x:
            kk, vv = x.split("="); opts[kk] = int(vv)
    open(out, "w").write(G(instr, opts).build())
```

```python
import sys, struct, copy
from gen_common import *

def f2u(x):
    return hex(struct.unpack('<I', struct.pack('<f', x))[0])

A2F = 0
W2P = 16 << 20
STATS = 20 << 20
CS = 21 << 20
FLAGS = 22 << 20
TS = 24 << 20
WSN = 32 << 20
OOB = 0x80000000
SPIN = 200000

P_X, P_QKV, P_WO, P_BX, P_WG, P_WU, P_WD, P_OUT, P_DBG, P_WS = 4, 6, 8, 10, 12, 14, 16, 18, 20, 22
SX, SB, SW, SD, SA = 24, 28, 32, 36, 40
SP = 4
S_C, S_MT, S_ROW = 44, 45, 46
S_M2, S_N2, S_ROT = 47, 48, 49
S_KB, S_A2, S_LB, S_LA = 50, 51, 52, 53
S_FLAG, S_LW = 54, 55
S_N = 0
EFL = 65536
S_HM = 56
S_MULW, S_ADDW = 58, 59
T0 = 60
S_WB, S_L5 = 10, 11
TSB = 80
WR = [36, 56, 120, 140, 100]

def srd(r):
    return f"s[{r}:{r+3}]"

def lit(v):
    return str(v) + ("\ns_nop 0" if -16 <= v <= 64 else "")

class NH(str):
    pass

class VM:
    def __init__(self):
        self.q = []
    def issue(self, tag, optional=False):
        self.q.append((tag, optional))
        assert len(self.q) <= 63, self.q
    def wait(self, pred):
        last = -1
        for i, (t, o) in enumerate(self.q):
            if pred(t):
                last = i
        if last < 0:
            return None
        rest = self.q[last + 1:]
        n = sum(1 for t, o in rest if not o)
        self.q = rest
        return n
    def has(self, tag):
        return any(t == tag for t, o in self.q)

class G:
    def __init__(self, instr=False, opts=None):
        self.a = Asm()
        self.instr = instr
        self.o = opts or {}
        self.lab = 0

    def __call__(self, s=""):
        self.a(s)

    def label(self, p="L"):
        self.lab += 1
        return f"{p}{self.lab}"

    def tstep(self, s):
        if self.instr and self.o.get("steps"):
            m = {0: 1, 2: 2, 4: 3, 6: 4, 8: 5, 11: 6, 14: 7, 17: 8}
            if self.o.get("steps") == 2:
                m = {12: 1, 13: 2, 14: 3, 15: 4, 16: 5, 17: 6, 18: 7, 19: 8}
            if self.o.get("steps") == 3:
                m = {0: 1, 1: 2, 2: 3, 3: 4, 4: 5, 5: 6, 6: 7, 7: 8}
            if self.o.get("steps") == 4:
                m = {"a": 1, "b": 2, "c": 3, "d": 4, "e": 5, "f": 6, 0: 7, 2: 8}
            if s in m:
                self.ts(m[s], True)

    def ts(self, i, force=False):
        if self.o.get("steps") and not force and i not in (0, 9):
            return
        if self.instr:
            op = "s_memrealtime" if self.o.get("rt") else "s_memtime"
            self(f"{op} s[{TSB+2*i}:{TSB+2*i+1}]")

    def mk_srd(self, d, base, n):
        self(f"s_mov_b32 s{d}, s{base}\ns_mov_b32 s{d+1}, s{base+1}\ns_mov_b32 s{d+2}, {n}\ns_mov_b32 s{d+3}, 0x20000")

    def align8(self):
        self(".p2align 3")

    def wave_sum(self, v, t):
        for d in ("quad_perm:[1,0,3,2]", "quad_perm:[2,3,0,1]", "row_half_mirror", "row_mirror"):
            self(f"s_nop 1\nv_add_f32_dpp v{v}, v{v}, v{v} {d} row_mask:0xf bank_mask:0xf")
        self(f"v_mov_b32 v{t}, v{v}\ns_nop 1\nv_permlane16_swap_b32 v{t}, v{v}\ns_nop 0\nv_add_f32 v{v}, v{v}, v{t}")
        self(f"v_mov_b32 v{t}, v{v}\ns_nop 1\nv_permlane32_swap_b32 v{t}, v{v}\ns_nop 0\nv_add_f32 v{v}, v{v}, v{t}")

    def px_pre(self, typ):
        self(f"s_lshl3_add_u32 s{S_FLAG}, s{S_MT}, s{S_C}\ns_lshl1_add_u32 s{S_FLAG}, s{S_FLAG}, {typ}")
        self(f"s_lshl3_add_u32 s{S_ROW}, s{S_FLAG}, s3")
        self(f"s_mul_i32 s{T0}, s{S_ROW}, 1280")
        self("v_lshlrev_b32 v2, 4, v0\nv_lshlrev_b32 v3, 2, v0")

    def misc_pre(self):
        self(f"s_lshl_b32 s{S_FLAG}, s{S_FLAG}, 7\ns_add_u32 s{S_FLAG}, s{S_FLAG}, {FLAGS}")
        self(f"v_add_lshl_u32 v19, v0, s3, 25")
        self.mk_srd(SW, P_WS, WSN)

    def nonce_load(self):
        return f"buffer_load_dwordx2 v[30:31], off, {srd(SD)}, 0 sc1"

    def nonce_get(self):
        self.spin("v_cmp_eq_u64 vcc, 0, v[30:31]", self.nonce_load(), False, 8)
        self(f"v_readfirstlane_b32 s{S_N}, v30\nv_readfirstlane_b32 s{S_N+1}, v31")

    def early_flag(self):
        return [f"s_add_u32 s{T0}, s{S_FLAG}, {EFL}", f"buffer_store_dwordx2 v[30:31], v19, {srd(SW)}, s{T0} offen sc1"]

    def check_addr(self, v):
        t = T0 + 17
        L = [f"s_lshl_b32 s{t}, s{S_MT}, 4", f"s_sub_u32 s{t}, s{t}, 2", f"v_add_u32 v4, s{t}, v0", "v_max_i32 v4, 0, v4",
             f"s_lshl1_add_u32 s{t}, s{S_C}, {(1 - 18*16) & 0xffffffff}", f"v_lshl_add_u32 v5, v0, 4, s{t}",
             f"s_mul_i32 s{t}, s{S_N2}, 5", f"s_lshr_b32 s{t}, s{t}, 2", f"s_sub_u32 s{t}, s{t}, 170",
             "v_min_u32 v6, 57, v0", "v_lshrrev_b32 v7, 1, v6", "v_and_b32 v6, 1, v6", "v_mad_u32_u24 v6, v7, 10, v6",
             f"v_add_u32 v6, s{t}, v6", "v_lshlrev_b32 v6, 1, v6",
             "v_cmp_gt_u32 vcc, 34, v0\ns_nop 1\nv_cndmask_b32 v5, v6, v5, vcc",
             "v_cmp_gt_u32 vcc, 18, v0\ns_nop 1\nv_cndmask_b32 v5, v5, v4, vcc",
             "v_lshlrev_b32 v5, 7, v5", f"v_mov_b32 v{v}, v5", f"s_mov_b32 s{T0+18}, {FLAGS + EFL}"]
        return self.chunks(L, 10)

    def check_issue(self, vreg, va):
        L = self.label()
        return f"s_cmp_lg_u32 s3, 0\ns_cbranch_scc1 {L}\nbuffer_load_dwordx2 v[{vreg}:{vreg+1}], v{va}, {srd(SW)}, s{T0+18} offen sc1\n{L}:"

    def check_spin(self, vreg, va):
        self.spin(f"v_cmp_ne_u64 vcc, s[{S_N}:{S_N+1}], v[{vreg}:{vreg+1}]",
                  f"buffer_load_dwordx2 v[{vreg}:{vreg+1}], v{va}, {srd(SW)}, s{T0+18} offen sc1", True, 8)

    def px_load(self, vm):
        fl = " nt" if self.o.get("pxnt", 1) else ""
        vm.issue("px"); vm.issue("px")
        return [f"buffer_load_dwordx4 v[56:59], v2, {srd(SX)}, s{T0} offen{fl}",
                f"buffer_load_dword v60, v3, {srd(SX)}, s{T0} offen offset:1024{fl}"]

    def stats_parts(self, typ):
        keep = self.a; self.a = Asm()
        E = 62
        for j in range(5):
            self(f"v_lshlrev_b32 v{E+2*j}, 16, v{56+j}\nv_and_b32 v{E+1+2*j}, 0xffff0000, v{56+j}")
        self(f"v_add_f32 v72, v{E}, v{E+1}\nv_add_f32 v73, v{E+2}, v{E+3}\nv_add_f32 v74, v{E+4}, v{E+5}\nv_add_f32 v75, v{E+6}, v{E+7}\nv_add_f32 v61, v{E+8}, v{E+9}")
        self("v_add_f32 v72, v72, v73\nv_add_f32 v74, v74, v75\nv_add_f32 v72, v72, v61\nv_add_f32 v72, v72, v74")
        self.wave_sum(72, 73)
        self(f"v_mul_f32 v72, {f2u(-1.0/640)}, v72")
        for j in range(10):
            self(f"v_add_f32 v{E+j}, v{E+j}, v72")
        self(f"v_mul_f32 v74, v{E}, v{E}\nv_mul_f32 v75, v{E+1}, v{E+1}")
        for j in range(2, 10):
            self(f"v_fmac_f32 v{74+(j&1)}, v{E+j}, v{E+j}")
        self("v_add_f32 v74, v74, v75")
        self.wave_sum(74, 75)
        self(f"v_mov_b32 v73, {f2u(1e-5)}")
        self(f"v_fmac_f32 v73, {f2u(1.0/640)}, v74")
        self("v_rsq_f32 v73, v73")
        self(f"s_lshl_b32 s{T0}, s{S_ROW}, 3\ns_add_u32 s{T0}, s{T0}, {STATS}")
        self("v_lshlrev_b32 v75, 26, v0")
        comp = self.a.lines; self.a = keep
        st = [f"buffer_store_dwordx2 v[72:73], v75, {srd(SW)}, s{T0} offen sc1"]
        return comp, st

    def stats(self, vm, typ):
        n = vm.wait(lambda t: t == "px")
        if n is not None:
            self(f"s_waitcnt vmcnt({n})")
        comp, st = self.stats_parts(typ)
        for l in comp: self(l)

    def chunks(self, lines, n):
        k = -(-len(lines) // n)
        return ["\n".join(lines[i:i + k]) + "\n.p2align 3" for i in range(0, len(lines), k)]

    def spin(self, cmp, reload, wave0=False, sleep=1):
        L = self.label(); Ld = self.label()
        s = ""
        if wave0:
            s += f"s_cmp_lg_u32 s3, 0\ns_cbranch_scc1 {Ld}\n"
        s += f"s_mov_b32 s{T0+19}, 0\n{L}:\n{cmp}\ns_nop 4\ns_cbranch_vccz {Ld}\n"
        s += f"s_addk_i32 s{T0+19}, 1\ns_cmp_ge_u32 s{T0+19}, {SPIN}\ns_cbranch_scc1 {Ld}\n"
        s += f"s_sleep {sleep}\n{reload}\ns_waitcnt vmcnt(0)\ns_branch {L}\n{Ld}:"
        self(s)

    def capture(self, fn):
        keep = self.a; self.a = Asm()
        fn()
        lines = self.a.lines; self.a = keep
        return lines

    def scc_chunks(self, lines, k=3):
        items = []; cur = []
        for i, l in enumerate(lines):
            cur.append(l)
            nxt = lines[i + 1:]
            live = False
            for m in nxt:
                if m.startswith("s_cselect") or m.startswith("s_cbranch"): live = True; break
                if m.startswith("s_cmp") or m.startswith("s_add") or m.startswith("s_sub") or m.startswith("s_ls") or m.startswith("s_and") or m.startswith("s_bitcmp"): break
            if len(cur) >= k and not live:
                items.append("\n".join(cur) + "\n.p2align 3"); cur = []
        if cur: items.append("\n".join(cur) + "\n.p2align 3")
        return items

    PK = (T0 + 6, T0 + 7, T0 + 8, T0 + 9, T0 + 10, T0 + 11, T0 + 12)

    def pack_params(self, rnd):
        u, _, _, base, al, be, ga = self.PK
        ks, Lc = T0 + 2 + 2 * rnd, T0 + 3 + 2 * rnd
        t = T0 + 13
        self(f"s_lshl3_add_u32 s{u}, s{S_MT}, s{S_C}\ns_mul_i32 s{ks}, s{u}, 6554\ns_lshr_b32 s{ks}, s{ks}, 16\ns_mul_i32 s{Lc}, s{ks}, 10\ns_sub_u32 s{Lc}, s{u}, s{Lc}")
        self(f"s_mul_i32 s{t}, s3, 12\ns_add_u32 s{ks}, s{ks}, s{t}\ns_cmp_ge_u32 s{u}, 120\ns_cselect_b32 s{ks}, 99, s{ks}")
        self(f"s_lshl_b32 s{base}, s{ks}, 5")
        self(f"s_sub_u32 s{al}, s{ks}, 48\ns_mul_i32 s{al}, s{al}, 40\ns_mov_b32 s{t}, {640*1280}")
        self(f"s_cmp_lt_u32 s{ks}, 48\ns_cselect_b32 s{base}, s{base}, s{al}\ns_cselect_b32 s{al}, 16, 8\ns_cselect_b32 s{ga}, 8, 20")
        self(f"s_cselect_b64 s[{SP}:{SP+1}], s[{P_WD}:{P_WD+1}], s[{P_WO}:{P_WO+1}]\ns_cselect_b32 s{SP+2}, {1536*1280}, s{t}\ns_mov_b32 s{be}, 4")
        self(f"s_sub_u32 s{t}, s{ks}, 64\ns_mul_i32 s{t}, s{t}, 160\ns_add_u32 s{t}, s{t}, 16\ns_cmp_ge_u32 s{ks}, 64")
        self(f"s_cselect_b32 s{base}, s{t}, s{base}\ns_cselect_b32 s{be}, 40, s{be}\ns_cselect_b32 s{al}, 80, s{al}")
        self(f"s_cmp_ge_u32 s{ks}, 68\ns_cselect_b32 s{SP+2}, 0, s{SP+2}\ns_mov_b32 s{SP+3}, 0x20000")
        self(f"s_mul_i32 s{base}, s{base}, 1280\ns_lshl_b32 s{t}, s{Lc}, 7\ns_add_u32 s{base}, s{base}, s{t}")
        self(f"s_mul_i32 s{al}, s{al}, 1280\ns_mul_i32 s{be}, s{be}, 1280")
        self(f"s_add_u32 s{al}, s{al}, s{base}\ns_add_u32 s{u}, s{al}, s{be}\ns_add_u32 s{be}, s{be}, s{base}")
        self(f"v_lshrrev_b32 v5, 5, v0\nv_mul_u32_u24 v5, s{ga}, v5\nv_and_b32 v7, 7, v0\nv_bfe_u32 v6, v0, 3, 2\nv_add_u32 v5, v5, v6")
        self("v_and_b32 v6, 2, v6\nv_xor_b32 v7, v7, v6")
        self("v_mul_u32_u24 v5, 1280, v5\nv_lshl_add_u32 v32, v7, 4, v5\nv_xor_b32 v33, 64, v32")

    def pack_dma(self, scr):
        u, lb, _, base, al, be, ga = self.PK
        return [(f"s_add_u32 m0, s{lb}, {lit(i*1024)}", f"buffer_load_dwordx4 v{32 + (i&1)}, {srd(SP)}, s{so} offen nt lds", "pk", False)
                for i, so in enumerate((base, be, al, u))]

    def pack_dst(self, rnd):
        u, _, _, base, al, be, ga = self.PK
        ks, Lc = T0 + 2 + 2 * rnd, T0 + 3 + 2 * rnd
        t = T0 + 13
        self(f"s_mul_i32 s{t}, s{ks}, 5120\ns_add_u32 s{t}, s{t}, {W2P}\ns_cmp_ge_u32 s{ks}, 68\ns_cselect_b32 s{t}, {OOB}, s{t}")
        for i, d in enumerate((base, be, al, u)):
            self(f"s_lshl2_add_u32 s{d}, s{Lc}, {i}\ns_mul_i32 s{ga}, s{d}, 52\ns_lshr_b32 s{ga}, s{ga}, 8\ns_lshl_b32 s{d}, s{d}, 10")
            self(f"s_mul_i32 s{ga}, s{ga}, {67*5120}\ns_add_u32 s{d}, s{d}, s{ga}\ns_add_u32 s{d}, s{d}, s{t}")

    def pack_tr_addr(self):
        lb = self.PK[1]
        self("v_lshrrev_b32 v5, 4, v0\nv_and_b32 v7, 3, v0\nv_bfe_u32 v6, v0, 2, 2\nv_lshl_add_u32 v4, v5, 3, v6")
        self(f"v_lshlrev_b32 v4, 7, v4\nv_lshlrev_b32 v7, 3, v7\nv_add3_u32 v4, v4, v7, s{lb}")
        self("v_lshrrev_b32 v6, 1, v6\nv_and_b32 v5, 1, v5\nv_lshl_or_b32 v6, v5, 1, v6\nv_lshl_add_u32 v26, v6, 5, v4")
        for i in range(1, 4):
            self(f"v_xor_b32 v{26+i}, {32*i}, v26")

    def pack_tr(self, R):
        out = []
        for i in range(4):
            r = R + i * 4
            out += [f"ds_read_b64_tr_b16 v[{r}:{r+1}], v{26+i}", f"ds_read_b64_tr_b16 v[{r+2}:{r+3}], v{26+i} offset:512"]
        return out

    def pack_stores(self, vm, R):
        u, _, _, base, al, be, ga = self.PK
        out = []
        for i, so in enumerate((base, be, al, u)):
            out.append(f"buffer_store_dwordx4 v[{R+4*i}:{R+3+4*i}], v2, {srd(SW)}, s{so} offen sc1"); vm.issue("early")
        return out

    @staticmethod
    def sched(ops, s, rate):
        out = []
        while ops and len(out) < rate and ops[0][0] <= s:
            out.append(ops.pop(0)[1])
        return out

    def interleave(self, mf, lists):
        items = []
        for idx, (L, lo, hi) in enumerate(lists):
            for i, it in enumerate(L):
                items.append((lo + (i + 0.5) / len(L) * (hi - lo), idx, i, it))
        items.sort(key=lambda z: z[:3])
        pos = [[] for _ in mf]
        for f, _, _, it in items:
            pos[min(len(mf) - 1, int(f * len(mf)))].append(it)
        out = []
        for i, m in enumerate(mf):
            out.append(m)
            out += pos[i]
        res = []
        for it in out:
            if isinstance(it, tuple):
                if res and not res[-1][1]:
                    prev = res.pop()
                    res += [(it[0], True), prev, (it[1], True)]
                else:
                    res += [(it[0], True), ("s_nop 0\ns_nop 0", True), (it[1], True)]
            else:
                res.append((it, isinstance(it, NH)))
        for it, _ in res:
            self(it)

    def a_addr(self, abase):
        self("v_and_b32 v4, 31, v0\nv_lshrrev_b32 v5, 5, v0\nv_bfe_u32 v6, v0, 1, 3\nv_xor_b32 v6, v6, v5")
        self(f"s_lshr_b32 s{T0+1}, s3, 2\ns_lshl_b32 s{T0+1}, s{T0+1}, 13")
        if abase:
            self(f"s_add_u32 s{T0+1}, s{T0+1}, {abase}")
        self(f"v_lshlrev_b32 v6, 4, v6\nv_lshl_add_u32 v6, v4, 7, v6\nv_add_u32 v8, s{T0+1}, v6")
        for q in range(1, 4):
            self(f"v_xor_b32 v{8+q}, {q<<5}, v8")

    def a_dma_addr(self):
        self(f"s_lshl_b32 s{T0+1}, s{S_MT}, 7\ns_lshl3_add_u32 s{T0+1}, s3, s{T0+1}")
        self(f"v_lshrrev_b32 v4, 3, v0\nv_add_u32 v4, s{T0+1}, v4\nv_mul_u32_u24 v4, 1280, v4")
        self(f"s_lshl_b32 s{T0+2}, s3, 2\nv_lshrrev_b32 v5, 4, v0\nv_add_u32 v5, s{T0+2}, v5\nv_xor_b32 v5, v5, v0\nv_and_b32 v5, 7, v5")
        self("v_lshl_add_u32 v12, v5, 4, v4")

    def div24(self, j, dk, du):
        self(f"v_add_u32 v{du}, {64*j}, v0\nv_mul_u32_u24 v{dk}, 2731, v{du}\nv_lshrrev_b32 v{dk}, 16, v{dk}")
        self(f"v_mul_u32_u24 v7, 24, v{dk}\nv_sub_u32 v{du}, v{du}, v7")

    def p2_params(self):
        t, u = T0 + 17, T0 + 18
        return [
            f"s_bfe_u32 s{S_M2}, s2, 0x30003", f"s_lshr_b32 s{S_N2}, s2, 6\ns_mul_i32 s{t}, s{S_N2}, 3",
            f"s_lshr_b32 s{t}, s{t}, 1\ns_add_u32 s{t}, s{t}, s{S_M2}",
            f"s_cmp_ge_u32 s{t}, 6\ns_cselect_b32 s{u}, 6, 0\ns_sub_u32 s{S_ROT}, s{t}, s{u if self.o.get('rot') else t}\ns_lshr_b32 s{t}, s{S_C}, 1",
            f"s_lshl3_add_u32 s{S_M2}, s{t}, s{S_M2}\ns_and_b32 s{t}, s{S_C}, 1",
            f"s_lshl2_add_u32 s{S_N2}, s{t}, s{S_N2}\ns_and_b32 s{t}, s3, 3",
            f"s_mul_i32 s{S_WB}, s{S_N2}, {68*5120}", f"s_add_u32 s{S_WB}, s{S_WB}, {W2P}", f"s_mul_i32 s{S_L5}, s{t}, 5120",
            f"s_add_u32 s{u}, s{S_ROT}, -1\ns_cmp_eq_u32 s{S_ROT}, 0\ns_cselect_b32 s{u}, 5, s{u}\ns_add_u32 s{S_ADDW}, s{t}, 47",
            f"s_cmp_eq_u32 s{t}, 0\ns_cselect_b32 s{S_ADDW}, s{u}, s{S_ADDW}\ns_cselect_b32 s{S_MULW}, 6, 2\ns_nop 0",
            f"s_cmp_eq_u32 s{t}, 3\ns_cselect_b32 s{S_ADDW}, 64, s{S_ADDW}\ns_cselect_b32 s{S_MULW}, 1, s{S_MULW}\ns_nop 0",
            f"s_mul_i32 s{S_ADDW}, s{S_ADDW}, 5120", f"s_mul_i32 s{S_MULW}, s{S_MULW}, 5120", f"s_add_u32 s{S_ADDW}, s{S_ADDW}, s{S_WB}\ns_nop 0",
        ]

    def w2_pair(self, b0, t0, b1, t1):
        so, lb, t = T0 + 14, T0 + 15, T0 + 16
        ops = [(None, f"s_cmp_lt_u32 s3, 4\ns_cselect_b32 s{so}, {t0}, {t1}\ns_cselect_b32 s{lb}, {b0}, {b1}\ns_mul_i32 s{t}, s{so}, s{S_MULW}", None),
               (None, f"s_mul_i32 s{lb}, s{lb}, 20480", None), (None, NH(f"s_add_u32 s{lb}, s{lb}, s{S_L5}\ns_add_u32 s{so}, s{t}, s{S_ADDW}"), None)]
        for tt in range(5):
            o = (tt % 4) * 1024
            pre = f"s_add_u32 m0, s{lb}, {lit(tt*1024 - o)}"
            if tt == 4:
                pre = f"s_add_u32 s{so}, s{so}, 4096\n" + pre
            ops.append((pre, f"buffer_load_dwordx4 v2, {srd(SW)}, s{so} offen offset:{o} sc1 lds", "W"))
        return ops

    def w2_reg(self, i):
        so, t = T0 + 14, T0 + 16
        ops = [(None, f"s_add_u32 s{t}, s{S_ROT}, {i}\ns_cmp_ge_u32 s{t}, 6\ns_cselect_b32 s{so}, 6, 0\ns_sub_u32 s{t}, s{t}, s{so}", None),
               (None, f"s_mul_i32 s{so}, s3, 6\ns_add_u32 s{t}, s{t}, s{so}", None), (None, f"s_mul_i32 s{t}, s{t}, 5120", None),
               (None, f"s_add_u32 s{so}, s{t}, s{S_WB}\ns_nop 0", None)]
        for tt in range(5):
            r = WR[i] + 4 * tt
            ld = f"buffer_load_dwordx4 v[{r}:{r+3}], v2, {srd(SW)}, s{so} offen offset:{(tt%4)*1024} sc1"
            if tt == 4:
                ld = f"s_add_u32 s{so}, s{so}, 4096\n" + ld
            ops.append((None, ld, "W"))
        return ops

    def take(self, vm, q, n=99):
        out = []
        while q and n > 0:
            pre, post, tag = q.pop(0)
            out.append((pre, post) if pre else post)
            if tag:
                vm.issue(tag); n -= 1
        return out

    def emit_items(self, items):
        for it in items:
            self(it[0] + "\ns_nop 0\n" + it[1] if isinstance(it, tuple) else it)

    def publish(self, vm):
        self(f"v_mov_b32 v4, s{S_N}\nv_mov_b32 v5, s{S_N+1}")
        n = vm.wait(lambda t: t == "st")
        self(f"s_waitcnt vmcnt({n})\ns_barrier")
        self.ts(6)
        self(f"buffer_store_dwordx2 v[4:5], v19, {srd(SW)}, s{S_FLAG} offen sc1")

    def emit_ops(self, vm, ds):
        for d in ds:
            if d[0]:
                self(d[0] + "\ns_nop 0")
            self(d[1]); vm.issue(d[2], d[3])

    def fill_ops(self, vm, ds):
        out = []
        for d in ds:
            out.append((d[0], d[1]) if d[0] else d[1]); vm.issue(d[2], d[3])
        return out

    def h_path(self):
        vm = VM()
        o = self.o
        BB = 65536
        CSL = 102400
        S_PQ = S_HM + 1
        apos = lambda S: ((S % 4) ^ 1) * 16384
        ant = lambda S: " nt" if S < o.get("ant", 0) else ""
        PXI = o.get("pxi", 1)
        AF = o.get("afirst", 0)
        self(f"s_memrealtime s[{T0+14}:{T0+15}]")
        self.px_pre(0)
        if AF:
            self.a_dma_addr()
        self(f"s_mov_b32 s{S_A2}, 81920\ns_lshl_b32 s{S_LA}, s3, 10\ns_mov_b32 s{S_HM}, 0")
        self(f"s_mov_b32 s{SX+2}, {2048*1280}\ns_mov_b32 s{SX+3}, 0x20000\ns_mov_b32 s{SA+2}, {640*3840}\ns_mov_b32 s{SA+3}, 0x20000")
        self("v_mul_u32_u24 v4, 43, v0\nv_lshrrev_b32 v4, 8, v4\nv_mul_u32_u24 v5, 6, v4\nv_sub_u32 v5, v0, v5")
        self("v_lshrrev_b32 v6, 1, v5\nv_and_b32 v5, 1, v5\nv_mul_u32_u24 v6, 1280, v6\nv_mul_u32_u24 v5, 156, v5")
        self("v_and_b32 v7, 4, v4\nv_mad_u32_u24 v4, v7, 15, v4")
        self("v_mul_u32_u24 v4, 3840, v4\nv_add3_u32 v4, v4, v5, v6")
        self(f"v_cmp_gt_u32 vcc, 48, v0\nv_mov_b32 v5, {OOB}")
        self(f"s_add_u32 s{S_PQ}, s3, 0\ns_lshl_b32 s{S_PQ}, s{S_PQ}, 5\ns_add_u32 s{S_PQ}, s{S_PQ}, s{S_MT}\ns_mul_i32 s{S_PQ}, s{S_PQ}, {4*3840}")
        self(f"s_mul_i32 s{T0+4}, s{S_C}, 160\ns_add_u32 s{S_PQ}, s{S_PQ}, s{T0+4}")
        self("v_cndmask_b32 v17, v5, v4, vcc")
        self("s_waitcnt lgkmcnt(0)")
        self(f"s_mov_b64 s[{SX}:{SX+1}], s[{P_X}:{P_X+1}]\ns_mov_b64 s[{SA}:{SA+1}], s[{P_QKV}:{P_QKV+1}]")
        self.ts(1)

        BN = o.get("hbn", 1)
        bslot = lambda s: [3, 0, 1, 3][s] if s < 4 else s % 4
        bfree = lambda s: {3: 0, 4: 1, 5: 2, 6: max(BN + 1, 2)}.get(s, s - 4)
        def dmaB(s):
            fl = " nt" if s < o.get("hnt", 20) else ""
            return [(f"s_add_u32 m0, s{S_LB}, {lit(BB + bslot(s)*24576 + j*1024)}",
                     f"buffer_load_dwordx4 v{13+j}, {srd(SB)}, s{S_KB} offen{fl} lds" + (f"\ns_add_u32 s{S_KB}, s{S_KB}, 98304" if j == 2 else ""),
                     ("B", s), False) for j in range(3)]
        def A(S):
            return [(f"s_add_u32 m0, s{S_LA}, {lit(apos(S) + i*8192)}",
                     f"buffer_load_dwordx4 v12, {srd(SX)}, s{S_A2 if i else S_HM} offen{ant(S)} lds\ns_addk_i32 s{S_A2 if i else S_HM}, 128\ns_nop 0",
                     ("A", S), False) for i in range(2)]
        def PQ(cond):
            L = self.label()
            return [(None, f"{cond}\ns_cbranch_scc0 {L}\nbuffer_load_dword v34, v17, {srd(SA)}, s{S_PQ} offen nt\n{L}:", "p", True)]
        NP0 = o.get("np0", 3)
        px = [(None, l, "px", False) for l in self.px_load(VM())]
        assert PXI and not AF
        self.emit_ops(vm, px)
        self.emit_ops(vm, PQ(f"s_cmp_lt_u32 s3, {NP0}"))
        Lp = self.label()
        self.pack_params(0)
        self(f"s_lshl_b32 s{self.PK[1]}, s3, 12\ns_add_u32 s{self.PK[1]}, s{self.PK[1]}, {BB + 2*24576}")
        self(f"s_cmp_ge_u32 s3, 6\ns_cbranch_scc1 {Lp}")
        self.emit_ops(vm, [d[:3] + (True,) for d in self.pack_dma(0)])
        self(f"{Lp}:")
        self.mk_srd(SD, P_DBG, 256)
        L0 = self.label()
        self(f"s_cmp_lg_u32 s{S_ROW}, 0\ns_cbranch_scc1 {L0}")
        self(f"v_mov_b32 v4, s{T0+14}\nv_mov_b32 v5, s{T0+15}\nv_lshlrev_b32 v6, 20, v0")
        self(f"buffer_store_dwordx2 v[4:5], v6, {srd(SD)}, 0 offen sc1\n{L0}:"); vm.issue("p", True)
        if o.get("codepf", 1):
            self(f"s_getpc_b64 s[{T0+4}:{T0+5}]")
            self(f"s_lshl3_add_u32 s{T0+8}, s{S_MT}, s3\ns_lshl_b32 s{T0+8}, s{T0+8}, 9")
            self(f"v_and_b32 v4, 3, v0\nv_lshlrev_b32 v4, 7, v4\nv_add_u32 v4, s{T0+8}, v4")
            self(f"v_min_u32 v4, CODE_SPAN, v4")
            self(f"global_load_dword v35, v4, s[{T0+4}:{T0+5}]"); vm.issue("p")
        self.tstep("a")
        self.pack_dst(0)
        self(f"s_and_b32 s{T0+1}, s3, 3\ns_mul_i32 s{T0+1}, s{T0+1}, {8*3072}\ns_mul_i32 s{T0+2}, s{S_C}, 384\ns_add_u32 s{T0+1}, s{T0+1}, s{T0+2}")
        self(f"s_and_b32 s{T0+2}, s3, 4")
        for j in range(3):
            self.div24(j, 4, 5)
            self(f"v_and_b32 v6, 2, v4\nv_or_b32 v6, s{T0+2}, v6\nv_xor_b32 v5, v5, v6")
            self(f"v_mul_u32_u24 v4, 3072, v4\nv_lshl_add_u32 v4, v5, 4, v4\nv_add_u32 v{13+j}, s{T0+1}, v4")
        self(f"s_mov_b32 s{S_KB}, 0\ns_mul_i32 s{S_LB}, s3, 3072")
        self(f"s_mov_b32 s{SB+2}, {640*3072}\ns_mov_b32 s{SB+3}, 0x20000\ns_cmp_lt_u32 s3, 4")
        self(f"s_cselect_b64 s[{SB}:{SB+1}], s[{P_WG}:{P_WG+1}], s[{P_WU}:{P_WU+1}]")
        if not AF:
            self.a_dma_addr()
            self("s_barrier")
            self.emit_ops(vm, A(0))
        self.emit_ops(vm, dmaB(0))
        self.tstep("e")
        self.misc_pre()
        self.pack_tr_addr()
        self.a_addr(0)
        self("v_bfe_u32 v4, v0, 4, 1\nv_lshrrev_b32 v5, 5, v0\nv_bfe_u32 v6, v0, 2, 2")
        self(f"v_lshl_add_u32 v5, v5, 3, v6\nv_mul_u32_u24 v5, 384, v5\nv_mul_u32_u24 v7, 12288, v4\nv_add_u32 v5, v5, v7\nv_add_u32 v5, {BB}, v5")
        self("v_and_b32 v7, 1, v0\nv_lshl_add_u32 v5, v7, 3, v5")
        self("v_and_b32 v6, 2, v6\nv_lshl_or_b32 v6, v4, 2, v6\nv_bfe_u32 v7, v0, 1, 1")
        self(f"s_and_b32 s{T0+1}, s3, 3\ns_mul_i32 s{T0+1}, s{T0+1}, 6\nv_add_u32 v7, s{T0+1}, v7")
        for n in range(3):
            self(f"v_add_u32 v4, {2*n}, v7\nv_xor_b32 v4, v4, v6\nv_lshl_add_u32 v{20+n}, v4, 4, v5\nv_add_u32 v{23+n}, 49152, v{20+n}")
        if o.get("hstpre", 1):
            self.stats(vm, 0)
        self.tstep("b")
        self("s_barrier")
        pre = dmaB(1) + A(1)
        npre0 = o.get("hpre", 4)
        self.emit_ops(vm, pre[:npre0])
        ops = [(-9, d) for d in pre[npre0:]]
        nb = NP0
        PKS = -9
        lead = o.get("alead", 1)
        nextA = 2
        for b_ in range(2, 20):
            if b_ % 2 == 1 or b_ == 2:
                pass
            ops += [(bfree(b_), d) for d in dmaB(b_)]
            if b_ % 2 == 0:
                while nextA <= min(9, b_ // 2 + lead):
                    ops += [(2 * (nextA - 4) + 1, d) for d in A(nextA)]
                    nextA += 1
                if NP0 < 5 and b_ == o.get("pqb", 8):
                    ops += [(-9, d) for d in PQ(f"s_sub_u32 s{T0+1}, s3, {NP0}\ns_nop 0\ns_cmp_lt_u32 s{T0+1}, {5 - NP0}")]
                if b_ == o.get("hpxb", 4) and not PXI:
                    ops += [(-9, d) for d in px]
                if b_ == 6:
                    ops += [(-9, (None, self.nonce_load(), "nonce", False))]

        def reads(s, Y):
            S = s >> 1
            rd = []
            for sub in range(2):
                for m in range(2):
                    r = Y + (sub * 2 + m) * 4
                    rd.append(f"ds_read_b128 v[{r}:{r+3}], v{8 + (s&1)*2 + sub} offset:{apos(S) + m*4096}")
                for n in range(3):
                    r = Y + 16 + (sub * 3 + n) * 4
                    b = 20 + n + (3 if bslot(s) >= 2 else 0)
                    of = (bslot(s) % 2) * 24576 + sub * 6144
                    rd.append(f"ds_read_b64_tr_b16 v[{r}:{r+1}], v{b} offset:{of}")
                    rd.append(f"ds_read_b64_tr_b16 v[{r+2}:{r+3}], v{b} offset:{of+1536}")
            return rd
        def need(s):
            return lambda t: t == ("B", s) or t == ("A", s >> 1)
        self.ts(2)
        n = vm.wait(need(0))
        self(f"s_waitcnt vmcnt({n})\ns_barrier")
        self.ts(3); self.tstep("f")
        for r in reads(0, 80):
            self(r)
        self.emit_ops(vm, self.sched(ops, -1, o.get("hpost", 2)))
        self("s_waitcnt lgkmcnt(0)")
        self.align8()
        def csreg(n_, r):
            if n_ < 2: return [80, 96][n_] + r
            return (112 + r) if r < 8 else (r)
        ST = o.get("hst", 4)
        CK = o.get("hck", 15)
        EF = o.get("hef", 8)
        ST = -8 if o.get("hstpre", 1) else o.get("hst", 1)
        STS = o.get("hsts", 2) if ST < 0 else ST + 2
        wq = []
        for s in range(20):
            X = 80 + (s & 1) * 40; Y = 80 + ((s + 1) & 1) * 40
            extra = []
            also = {ST: ("px",), PKS: ("pk",), EF: ("early", "nonce"), CK: ("poll",), 18: ("cs",)}.get(s, ())
            p0 = need(s + 1)
            assert not any(p0(d[2]) or d[2] in also for _, d in ops), s
            n = vm.wait(lambda t: p0(t) or t in also)
            self(f"s_waitcnt vmcnt({n})" if n is not None else "s_nop 0")
            if s == CK:
                self.check_spin(26, 35)
            if s == EF:
                self.nonce_get()
            self("s_barrier")
            if s in (CK, EF):
                self.align8()
            self.tstep(s)
            fill = []
            extra2 = []
            if s in (ST, ST + 1):
                comp, st = self.stats_parts(0)
                ch = self.chunks(comp, 22)
                extra2 = ch[:11] if s == ST else ch[11:]
            if s == CK:
                for p in range(2):
                    fill.append(f"buffer_load_dwordx4 v[{56+4*p}:{59+4*p}], v30, {srd(SW)}, s{T0+2} offen offset:{16*p} sc1"); vm.issue("cs")
                for m in range(2):
                    fill.append(f"buffer_load_dwordx2 v[{26+2*m}:{27+2*m}], v31, {srd(SW)}, s{T0+5} offen offset:{m*256} sc1"); vm.issue("cs")
            fill += self.fill_ops(vm, self.sched(ops, s, o.get("hrate", 6)))
            if s == STS:
                for l in self.stats_parts(0)[1]:
                    fill.append(l); vm.issue("early")
            if s == BN:
                extra += self.pack_tr(36)
            PS0, PSN = o.get("hps", 3), o.get("hpsn", 2)
            if PS0 <= s < PS0 + 4 // PSN:
                for l in self.pack_stores(VM(), 36)[PSN * (s - PS0):PSN * (s - PS0 + 1)]:
                    fill.append(l); vm.issue("early")
            if s == EF:
                fill += self.early_flag(); vm.issue("ef")
            if s == 10:
                extra += self.p2_params()
            if s == 11:
                extra += self.check_addr(35)
            if s == CK - 2:
                fill.append(self.check_issue(26, 35)); vm.issue("poll", True)
            if s == 12:
                extra += [f"s_lshl_b32 s{T0+1}, s3, 8\nv_and_b32 v4, 31, v0", f"v_add_u32 v18, s{T0+1}, v3\nv_lshlrev_b32 v31, 3, v4",
                          f"s_mul_i32 s{T0+2}, s{S_C}, {8*1536}", f"s_add_u32 s{T0+2}, s{T0+2}, {CS}",
                          f"s_cmp_lt_u32 s3, 6\nv_lshlrev_b32 v30, 3, v18\ns_cselect_b32 s{T0+2}, s{T0+2}, {OOB}",
                          f"s_lshr_b32 s{T0+5}, s3, 2\ns_lshl1_add_u32 s{T0+5}, s{S_MT}, s{T0+5}", f"v_add_u32 v18, {CSL}, v18",
                          f"s_lshl_b32 s{T0+5}, s{T0+5}, 9\ns_nop 0", f"s_add_u32 s{T0+5}, s{T0+5}, {STATS}",
                          f"s_lshl_b32 s{S_LW}, s3, 2\ns_nop 0", f"s_lshr_b32 s{S_LW}, 0x76054132, s{S_LW}", f"s_and_b32 s{S_LW}, s{S_LW}, 7\ns_nop 0",
                          f"s_mul_i32 s{S_LW}, s{S_LW}, 20480"]
            if s == 13:
                extra += [f"s_and_b32 s{T0+6}, s3, 3\nv_lshrrev_b32 v5, 5, v0", f"s_mul_i32 s{T0+7}, s{T0+6}, 192", f"s_add_u32 s{T0+7}, s{T0+7}, {CSL}",
                          f"v_lshl_add_u32 v17, v5, 4, s{T0+7}",
                          "v_bfe_u32 v6, v0, 4, 1", "v_and_b32 v7, 15, v0\nv_lshlrev_b32 v6, 10, v6", "v_lshl_add_u32 v6, v5, 8, v6", "v_lshl_add_u32 v16, v7, 4, v6",
                          f"s_lshr_b32 s{T0+7}, s3, 2\ns_lshl1_add_u32 s{T0+7}, s{S_MT}, s{T0+7}", f"s_mul_i32 s{T0+7}, s{T0+7}, {68*4096}",
                          f"s_mul_i32 s{T0+8}, s{S_C}, {6*4096}", f"s_add_u32 s{T0+7}, s{T0+7}, s{T0+8}\ns_mul_i32 s{T0+6}, s{T0+6}, 3"]
            if s == 14:
                for n_ in range(3):
                    extra += [f"s_add_u32 s{T0+8}, s{T0+6}, {n_}\ns_lshr_b32 s{T0+9}, s{T0+8}, 1", f"s_lshl_b32 s{T0+9}, s{T0+9}, 12\ns_and_b32 s{T0+8}, s{T0+8}, 1",
                              f"s_lshl_b32 s{T0+8}, s{T0+8}, 9\ns_add_u32 s{T0+9}, s{T0+9}, s{T0+8}", f"s_add_u32 s{T0+10+n_}, s{T0+9}, s{T0+7}\ns_nop 0"]
            if s == 16:
                wq += self.w2_pair(2, 0, 3, 1)
            if s == 17:
                wq += self.w2_pair(1, 2, 4, 3) + self.w2_reg(0)
            if s == 19:
                wq += self.w2_reg(1)
            fill += self.take(vm, wq, o.get("hwr", 5))
            if s == 18:
                extra += ["v_add_f32 v56, v56, v57\nv_add_f32 v58, v58, v59", "v_add_f32 v60, v60, v61\nv_add_f32 v62, v62, v63",
                          "v_add_f32 v56, v56, v58\nv_add_f32 v60, v60, v62", "v_add_f32 v56, v56, v60\nv_mul_f32 v32, v27, v27",
                          f"ds_write_b32 v18, v56", "v_mul_f32 v34, v29, v29\nv_mov_b32 v33, v32",
                          "v_mov_b32 v35, v34\nv_mov_b32 v27, v26", "v_mov_b32 v29, v28\ns_nop 0"]
            if s < 19:
                rd = reads(s + 1, Y)
            else:
                rd = []
                for n_ in range(3):
                    for mat in range(2):
                        for a_ in range(2):
                            r = csreg(n_, (mat * 2 + a_) * 4)
                            rd.append(f"ds_read_b128 v[{r}:{r+3}], v17 offset:{n_*64 + a_*32 + mat*768}")
            mf = []
            for sub in range(2):
                for n_ in range(3):
                    for m in range(2):
                        c = 160 + (m * 3 + n_) * 16
                        cin = "0" if (s == 0 and sub == 0) else f"v[{c}:{c+15}]"
                        b = X + 16 + (sub * 3 + n_) * 4; a_ = X + (sub * 2 + m) * 4
                        mf.append(f"v_mfma_f32_32x32x16_bf16 v[{c}:{c+15}], v[{b}:{b+3}], v[{a_}:{a_+3}], {cin}")
            lists = [(rd, 0.0, 0.8)]
            if fill: lists.append((fill, 0.0, 1.0))
            if extra: lists.append((extra, 0.0, 0.9))
            if extra2: lists.append((extra2, 0.0, 1.0))
            self.interleave(mf, lists)
            self("s_waitcnt lgkmcnt(0)\ns_nop 0")
            assert s < 15 or not ops
        self.ts(4)
        self("s_nop 7\ns_nop 0")
        for n_ in range(3):
            for m in range(2):
                c = 160 + (m * 3 + n_) * 16
                nm = 26 + 2 * m
                for r in range(0, 16, 2):
                    k = csreg(n_, r)
                    self(f"v_pk_fma_f32 v[{c+r}:{c+r+1}], v[{nm}:{nm+1}], v[{k}:{k+1}], v[{c+r}:{c+r+1}]")
                for r in range(0, 8, 2):
                    self(f"v_pk_mul_f32 v[{c+r}:{c+r+1}], v[{c+r}:{c+r+1}], v[{32+2*m}:{33+2*m}]")
                for r in range(0, 8, 2):
                    self(f"v_pk_mul_f32 v[{c+r}:{c+r+1}], v[{c+r}:{c+r+1}], v[{c+8+r}:{c+9+r}]")
                for r in range(4):
                    self(f"v_cvt_pk_bf16_f32 v{c+8+r}, v{c+2*r}, v{c+2*r+1}")
                self(f"buffer_store_dwordx4 v[{c+8}:{c+11}], v16, {srd(SW)}, s{T0+10+n_} offen offset:{m*2048} sc1"); vm.issue("st")
        self.ts(5)
        assert all(not x[0] for x in wq)
        wq += self.w2_reg(2)
        npre = o.get("npre", 5)
        if npre:
            self("s_barrier")
        self.emit_items(self.take(vm, wq, npre))
        self.publish(vm)
        self.emit_items(self.take(vm, wq))
        self("s_branch P2_START")

    QS = 520
    QCSL = 75008
    QZ = 76800
    QST = 120832
    QAB = 65536
    QSCR = 122880

    def q_dmaA(self, S, wm):
        AB = self.QAB
        fl = " nt" if S < self.o.get("ant", 0) else ""
        out = [(f"s_add_u32 m0, s{S_LA}, {lit(AB + (S%3)*18432 + 2048 + i*8192 - S*128)}",
                f"buffer_load_dwordx4 v12, {srd(SX)}, {'s%d' % S_A2 if i else '0'} offen offset:{S*128}{fl} lds",
                ("A", S), False) for i in range(2)]
        if wm != 0:
            L = self.label()
            out.insert(0, (f"s_add_u32 m0, s{S_LA}, {lit(AB + (S%3)*18432 - 4096 - S*128)}",
                        f"s_mov_b64 exec, s[{S_HM}:{S_HM+1}]\ns_cbranch_execz {L}\nbuffer_load_dwordx4 v15, {srd(SX)}, 0 offen offset:{S*128}{fl} lds\n{L}:\ns_mov_b64 exec, -1\ns_nop 0",
                        ("A", S), True))
        return out

    def q_dmaB(self, s):
        fl = " nt" if s < self.o.get("qnt", 20) else ""
        return [(f"s_add_u32 m0, s{S_LB}, {lit((s%4)*16384 + j*1024)}",
                 f"buffer_load_dwordx4 v{13+j}, {srd(SB)}, s{S_KB} offen{fl} lds" + (f"\ns_add_u32 s{S_KB}, s{S_KB}, {32*3840}" if j == 1 else ""),
                 ("B", s), False) for j in range(2)]

    def q_path(self):
        vm = VM()
        AB, SCR = self.QAB, self.QSCR
        GS, GL = T0 + 14, T0 + 15
        self("Q_START:")
        self(f"s_lshr_b32 s{GS}, s{S_MT}, 1\ns_lshl3_add_u32 s{GS}, s3, s{GS}\ns_mul_i32 s{GS}, s{GS}, {8*3072}\ns_mul_i32 s{T0+2}, s{S_C}, 384\ns_add_u32 s{GS}, s{GS}, s{T0+2}")
        for j in range(3):
            self.div24(j, 4, 5)
            self(f"v_mul_u32_u24 v4, 3072, v4\nv_lshl_add_u32 v{23+j}, v5, 4, v4")
        self(f"s_mul_i32 s{GL}, s3, 3072\ns_add_u32 s{GL}, s{GL}, {SCR}")
        self(f"s_mov_b32 s{SA+2}, {640*3072}\ns_mov_b32 s{SA+3}, 0x20000\ns_mov_b32 s{SX+2}, {2048*1280}\ns_mov_b32 s{SX+3}, 0x20000")
        o = self.o
        PXI, AF, NG0 = o.get("pxi", 1), o.get("afirst", 0), o.get("ng0", 10)
        def apre():
            self.a_dma_addr()
            self("v_subrev_u32 v15, 61440, v12")
            self(f"s_mov_b32 s{S_A2}, 81920\ns_lshl_b32 s{S_LA}, s3, 10")
            self(f"s_mov_b64 s[{S_HM}:{S_HM+1}], 0\ns_cmp_eq_u32 s3, 5\ns_cselect_b64 s[{S_HM}:{S_HM+1}], -1, s[{S_HM}:{S_HM+1}]")
            self(f"s_cmp_eq_u32 s3, 4\ns_cselect_b32 s{S_HM}, 0xffffff00, s{S_HM}\ns_cselect_b32 s{S_HM+1}, -1, s{S_HM+1}")
        self.px_pre(1)
        if AF: apre()
        self(f"s_bitcmp0_b32 s{S_MT}, 0\ns_waitcnt lgkmcnt(0)")
        self(f"s_cselect_b64 s[{SA}:{SA+1}], s[{P_WG}:{P_WG+1}], s[{P_WU}:{P_WU+1}]\ns_mov_b64 s[{SX}:{SX+1}], s[{P_X}:{P_X+1}]")
        self.ts(1)
        assert PXI and not AF
        for l in self.px_load(vm): self(l)
        L = self.label()
        if NG0 == 4:
            self(f"s_cmp_ge_u32 s3, 4\ns_cbranch_scc1 {L}")
        for j in range(3):
            self(f"s_add_u32 m0, s{GL}, {j*1024}\ns_nop 0")
            self(f"buffer_load_dwordx4 v{23+j}, {srd(SA)}, s{GS} offen nt lds"); vm.issue("gu", NG0 == 4)
        self(f"{L}:")
        if NG0 == 10:
            L = self.label()
            self(f"s_and_b32 s{T0+1}, s3, 6\ns_cmp_lg_u32 s{T0+1}, 4\ns_cbranch_scc1 {L}\ns_add_u32 s{GS}, s{GS}, {4*64*3072}")
            for j in range(3):
                self(f"s_add_u32 m0, s{GL}, {4*3072 + j*1024}\ns_nop 0")
                self(f"buffer_load_dwordx4 v{23+j}, {srd(SA)}, s{GS} offen nt lds"); vm.issue("gu", True)
            self(f"{L}:")
        self.tstep("a")
        self.mk_srd(SB, P_QKV, 640 * 3840)
        self(f"s_lshl_b32 s{T0+1}, s3, 7\ns_mul_i32 s{T0+2}, s{S_C}, 160")
        for j in range(2):
            self(f"v_add_u32 v5, s{T0+1}, v0")
            if j: self("v_add_u32 v5, 64, v5")
            self("v_mul_u32_u24 v4, 2185, v5\nv_lshrrev_b32 v4, 16, v4\nv_mul_u32_u24 v6, 30, v4\nv_sub_u32 v5, v5, v6")
            self("v_cmp_gt_u32 vcc, 32, v4")
            self("v_and_b32 v6, 24, v4\nv_bfe_u32 v7, v4, 1, 2\nv_add_u32 v6, v6, v7\nv_and_b32 v7, 1, v4\nv_lshl_add_u32 v6, v7, 2, v6")
            self("v_mul_u32_u24 v6, 3840, v6\nv_lshl_add_u32 v6, v5, 4, v6")
            self("v_mul_u32_u24 v7, 26, v5\nv_lshrrev_b32 v7, 8, v7\nv_mul_u32_u24 v7, 1120, v7")
            self(f"v_add3_u32 v6, v6, v7, s{T0+2}\nv_mov_b32 v7, {OOB}\nv_cndmask_b32 v{13+j}, v7, v6, vcc")
        self(f"s_mov_b32 s{S_KB}, 0\ns_lshl_b32 s{S_LB}, s3, 11")
        if not AF:
            apre()
            self("s_barrier")
            self.emit_ops(vm, self.q_dmaA(0, 1))
        self.emit_ops(vm, self.q_dmaB(0))
        self.tstep("e")
        self.misc_pre()
        self.mk_srd(SD, P_DBG, 256)
        for r in range(4):
            self(f"v_mov_b32 v{76+r}, 0x3f803f80")
        self(f"v_lshrrev_b32 v4, 3, v0\nv_min_u32 v4, 2, v4\nv_mul_u32_u24 v4, 18432, v4\nv_and_b32 v5, 7, v0\nv_lshl_add_u32 v4, v5, 4, v4\nv_add_u32 v4, {AB}, v4")
        self("ds_write_b128 v4, v[76:79]")
        self.a_addr(AB)
        self("v_bfe_u32 v4, v0, 4, 1\nv_lshrrev_b32 v5, 5, v0\nv_bfe_u32 v6, v0, 2, 2\nv_and_b32 v7, 3, v0")
        self("v_lshlrev_b32 v7, 3, v7\nv_lshl_add_u32 v7, v4, 5, v7")
        self("v_lshlrev_b32 v4, 3, v5\nv_lshl_add_u32 v5, v6, 1, v4\nv_add_u32 v4, v4, v6")
        self(f"s_and_b32 s{T0+1}, s3, 3\ns_lshl_b32 s{T0+1}, s{T0+1}, 7\ns_lshl_b32 s{T0+2}, s3, 6\ns_add_u32 s{T0+2}, s{T0+2}, {SCR}")
        self(f"v_mul_u32_u24 v5, 480, v5\nv_add3_u32 v20, v5, v7, s{T0+1}")
        self(f"v_mul_u32_u24 v4, 384, v4\nv_add3_u32 v21, v4, v7, s{T0+2}")
        self(f"s_and_b32 s{T0+2}, s{S_MT}, 1\ns_lshl1_add_u32 s{T0+1}, s{S_C}, s{T0+2}\ns_mul_i32 s{T0+1}, s{T0+1}, {192*32}")
        self(f"s_lshr_b32 s{T0+2}, s{S_MT}, 1\ns_lshl2_add_u32 s{T0+1}, s{T0+2}, s{T0+1}")
        self(f"s_lshl_b32 s{T0+2}, s3, 10\ns_add_u32 s{T0+1}, s{T0+1}, s{T0+2}\ns_add_u32 s{T0+1}, s{T0+1}, {CS}")
        self(f"s_cmp_lt_u32 s3, 6\ns_cselect_b32 s{T0+1}, s{T0+1}, {OOB}")
        self("v_lshrrev_b32 v22, 5, v0\nv_lshlrev_b32 v4, 5, v0\nv_lshl_add_u32 v22, v22, 26, v4")
        self(f"s_xor_b32 s{S_LW}, s3, 4\ns_mul_i32 s{S_LW}, s{S_LW}, 20480")
        self.stats(vm, 1)
        self.tstep("b")
        assert NG0 == 10
        n = vm.wait(lambda t: t == "gu")
        self(f"s_waitcnt vmcnt({n})\ns_barrier")
        self.tstep("c")
        for sub in range(5):
            r = 36 + sub * 4
            self(f"ds_read_b64_tr_b16 v[{r}:{r+1}], v21 offset:{sub*6144}\nds_read_b64_tr_b16 v[{r+2}:{r+3}], v21 offset:{sub*6144+1536}")
        self("s_cmp_ge_u32 s3, 4\ns_cbranch_scc1 Q_WM1")
        vm1 = copy.deepcopy(vm)
        self.q_main(vm, 0)
        self("s_branch Q_ATT")
        self("Q_WM1:")
        self.q_main(vm1, 1)
        self("Q_ATT:")
        self.attention()

    def q_main(self, vm, wm):
        o = self.o
        QS, CSL, QZ, QST, AB = self.QS, self.QCSL, self.QZ, self.QST, self.QAB
        GS, GL = T0 + 14, T0 + 15
        NM = 3 if wm == 0 else 2
        toff = [0, 2048, 6144] if wm == 0 else [2048, 6144]
        dmaB = self.q_dmaB
        dmaA = lambda S: self.q_dmaA(S, wm)
        pre = dmaB(1) + dmaA(1)
        npre0 = o.get("qpre", 3) + wm
        self.emit_ops(vm, pre[:npre0])
        self("s_waitcnt lgkmcnt(0)")
        for sub in range(5):
            r = 36 + sub * 4
            self(f"v_mfma_f32_32x32x16_bf16 v[56:71], v[76:79], v[{r}:{r+3}], {'0' if sub == 0 else 'v[56:71]'}")
        ops = [(-9, d) for d in pre[npre0:]]
        PD = -9
        BN = -9
        CSs = o.get("qcs", 6)
        ST = o.get("qst", 3)
        AT = o.get("qat", 7)
        CK = o.get("qck", 15)
        PXI, NG0 = o.get("pxi", 1), o.get("ng0", 10)
        ST = -8
        CSs = -9
        STS = o.get("qsts", 3)
        wq = []
        px = [(None, l, "px", False) for l in self.px_load(VM())]
        gu1 = [(f"s_add_u32 m0, s{GL}, {lit(j*1024)}", f"buffer_load_dwordx4 v{23+j}, {srd(SA)}, s{GS} offen nt lds", "gu", False) for j in range(3)]
        gu2 = []
        for j in range(3):
            L = self.label()
            gu2.append(((f"s_add_u32 s{GS}, s{GS}, {4*64*3072}\n" if j == 0 else "") + f"s_add_u32 m0, s{GL}, {lit(4*3072 + j*1024)}",
                        f"s_cmp_ge_u32 s3, 6\ns_cbranch_scc1 {L}\nbuffer_load_dwordx4 v{23+j}, {srd(SA)}, s{GS} offen nt lds\n{L}:", "gu", True))
        if wm == 1 and NG0 == 4:
            ops += [(-9, d) for d in gu1]
        for b_ in range(2, 20):
            ops += [(b_ - 4, d) for d in dmaB(b_)]
            if b_ == PD:
                ops += [(-9, d) for d in self.pack_dma(0)]
            if b_ % 2 == 1 and b_ // 2 + 1 < 10:
                S_ = b_ // 2 + 1
                ops += [(2 * (S_ - 3) + 1, d) for d in dmaA(S_)]
                if b_ == 7:
                    ops += [(-9, (None, self.nonce_load(), "nonce", False))]
                if b_ == 3:
                    if not PXI:
                        ops += [(-9, d) for d in px]
                if b_ == 5 and wm == 1:
                    if NG0 != 10:
                        ops += [(-9, d) for d in gu2]
        def reads(s, Y):
            S = s >> 1
            rd = []
            for sub in range(2):
                for m in range(NM):
                    r = Y + (sub * 3 + m) * 4
                    rd.append(f"ds_read_b128 v[{r}:{r+3}], v{8 + (s&1)*2 + sub} offset:{(S%3)*18432 + toff[m]}")
                for n in range(2):
                    r = Y + 24 + (sub * 2 + n) * 4
                    of = (s % 4) * 16384 + sub * 7680 + n * 64
                    rd.append(f"ds_read_b64_tr_b16 v[{r}:{r+1}], v20 offset:{of}")
                    rd.append(f"ds_read_b64_tr_b16 v[{r+2}:{r+3}], v20 offset:{of+480}")
            return rd
        def need(s):
            return lambda t: t == ("B", s) or t == ("A", s >> 1)
        self.ts(2)
        n = vm.wait(need(0))
        self(f"s_waitcnt vmcnt({n}) lgkmcnt(0)\ns_barrier")
        self.ts(3); self.tstep("f")
        for r in reads(0, 80):
            self(r)
        self.emit_ops(vm, self.sched(ops, -1, o.get("qpost", 2)))
        self("s_waitcnt lgkmcnt(0)")
        self.align8()
        sc = 20 ** -0.5 * 1.4426950408889634
        for s in range(20):
            X = 80 + (s & 1) * 40; Y = 80 + ((s + 1) & 1) * 40
            also = ()
            for k_, t_ in ((ST, "px"), (BN, "pk"), (CSs, "gu"), (AT, "early"), (AT, "nonce"), (CK, "poll"), (CK + 2, "stat")):
                if s == k_: also += (t_,)
            p0 = need(s + 1)
            assert not any(p0(d[2]) or d[2] in also for _, d in ops), (s, wm)
            n = vm.wait(lambda t: p0(t) or t in also)
            self(f"s_waitcnt vmcnt({n})" if n is not None else "s_nop 0")
            if s == CK:
                self.check_spin(26, 35)
            if s == AT:
                self.nonce_get()
            self("s_barrier")
            if s in (CK, AT):
                self.align8()
            self.tstep(s)
            fill = []; extra = []; extra2 = []; mfx = []
            if s in (ST, ST + 1):
                comp, st = self.stats_parts(1)
                ch = self.chunks(comp, 16)
                extra2 = ch[:8] if s == ST else ch[8:]
            if s == ST + 2:
                for l in self.stats_parts(1)[1]:
                    fill.append(l); vm.issue("early")
            if s == BN - 1:
                assert not any(d[2] == "pk" for _, d in ops)
                extra += self.scc_chunks(self.capture(lambda: self.pack_dst(0)), 4)
            if s == BN:
                extra += self.pack_tr(36)
            if s == CSs:
                for sub in range(5):
                    r = 36 + sub * 4
                    extra += [f"ds_read_b64_tr_b16 v[{r}:{r+1}], v21 offset:{sub*6144}", f"ds_read_b64_tr_b16 v[{r+2}:{r+3}], v21 offset:{sub*6144+1536}"]
            if s == CSs + 1:
                for sub in range(5):
                    r = 36 + sub * 4
                    mfx.append(f"v_mfma_f32_32x32x16_bf16 v[56:71], v[76:79], v[{r}:{r+3}], {'0' if sub == 0 else 'v[56:71]'}")
            if s == CSs + 2:
                fill.append(f"buffer_store_dword v56, v22, {srd(SW)}, s{T0+1} offen sc1"); vm.issue("early")
            if s == CK:
                fill.append(f"buffer_load_dwordx2 v[30:31], v6, {srd(SW)}, s{T0+5} offen sc1"); vm.issue("stat")
            fill += self.fill_ops(vm, self.sched(ops, s, o.get("qrate", 5) + wm * o.get("qrate1", 1)))
            if s == STS:
                fill += [self.stats_parts(1)[1][0], f"buffer_store_dword v56, v22, {srd(SW)}, s{T0+1} offen sc1"]; vm.issue("early"); vm.issue("early")
            if s in (BN + 1, BN + 2):
                k_ = 2 * (s - BN - 1)
                fill += self.pack_stores(VM(), 36)[k_:k_ + 2]; vm.issue("early"); vm.issue("early")
            if s == AT:
                fill += self.early_flag(); vm.issue("ef")
            if s == 9:
                extra += self.p2_params()
            if s == 10:
                extra += self.check_addr(35)
            if s == 11:
                zq = QZ - 16 * QS
                extra += ["v_and_b32 v4, 15, v0\nv_lshrrev_b32 v5, 4, v0", f"s_mul_i32 s{T0+1}, s3, {16*QS}", f"v_mul_u32_u24 v6, {QS}, v4",
                          f"v_add_u32 v7, s{T0+1}, v6\nv_add_u32 v34, v7, v6", "v_lshl_add_u32 v25, v5, 3, v34", "v_lshl_add_u32 v6, v5, 3, v7",
                          f"v_mov_b32 v4, {zq}",
                          f"s_mov_b32 vcc_lo, 0x55555555\ns_mov_b32 vcc_hi, 0x55555555\nv_cndmask_b32 v21, v4, v6, vcc\nv_cndmask_b32 v23, v6, v4, vcc",
                          f"s_mov_b64 vcc, 0x5555\nv_cndmask_b32 v22, v4, v7, vcc\ns_nop 0", f"s_mov_b64 vcc, 0xaaaa\nv_cndmask_b32 v24, v4, v7, vcc\ns_nop 0"]
            if s == 12:
                extra += ["v_lshrrev_b32 v6, 2, v0\nv_and_b32 v7, 3, v0", f"v_mul_u32_u24 v6, {2*QS}, v6", f"v_add_u32 v6, s{T0+1}, v6\ns_nop 0",
                          "v_lshl_add_u32 v1, v7, 3, v6", "v_mad_u32_u24 v18, v7, 40, v6",
                          f"s_and_b32 s{T0+6}, s3, 3\nv_lshrrev_b32 v5, 5, v0", f"s_lshl_b32 s{T0+7}, s{T0+6}, 8\nv_and_b32 v4, 15, v0", f"s_add_u32 s{T0+7}, s{T0+7}, {CSL}",
                          f"v_lshl_add_u32 v17, v5, 4, s{T0+7}", "v_lshlrev_b32 v6, 8, v5\nv_lshlrev_b32 v4, 4, v4", "v_bfe_u32 v7, v0, 4, 1",
                          "v_lshl_add_u32 v7, v7, 26, v6", "v_add_u32 v16, v7, v4\ns_nop 0"]
            if s == 13:
                extra += [f"s_lshr_b32 s{T0+1}, s3, 2\ns_lshl1_add_u32 s{T0+1}, s{S_MT}, s{T0+1}", f"s_mul_i32 s{T0+1}, s{T0+1}, {68*4096}",
                          f"s_and_b32 s{T0+2}, s3, 3\ns_lshl_b32 s{T0+2}, s{T0+2}, 10", f"s_add_u32 s{T0+1}, s{T0+1}, s{T0+2}\ns_lshl_b32 s{T0+2}, s{S_C}, 13",
                          f"s_add_u32 s{T0+2}, s{T0+2}, s{T0+1}\ns_lshr_b32 s{T0+12}, s{S_C}, 1", f"s_add_u32 s{T0+2}, s{T0+2}, {48*4096}", f"s_add_u32 s{T0+3}, s{T0+2}, 4096",
                          f"s_lshl_b32 s{T0+12}, s{T0+12}, 12\ns_add_u32 s{T0+1}, s{T0+1}, s{T0+12}",
                          f"s_and_b32 s{T0+12}, s{S_C}, 1\ns_lshl_b32 s{T0+12}, s{T0+12}, 9", f"s_add_u32 s{T0+1}, s{T0+1}, s{T0+12}\ns_nop 0", f"s_add_u32 s{T0+1}, s{T0+1}, {64*4096}"]
            if s == CK - 2:
                fill.append(self.check_issue(26, 35)); vm.issue("poll", True)
            if s == CK - 1:
                extra += [f"s_lshl_b32 s{T0+5}, s3, 6\ns_lshl_b32 s{T0+4}, s{S_MT}, 7", f"v_add_u32 v4, s{T0+5}, v0\ns_sub_u32 s{T0+4}, s{T0+4}, 16",
                          "v_min_u32 v4, 143, v4", f"v_add_u32 v5, s{T0+4}, v4\nv_max_i32 v5, 0, v5",
                          f"v_lshlrev_b32 v6, 3, v5\nv_lshlrev_b32 v4, 3, v4", f"v_add_u32 v32, {QST}, v4", f"s_mov_b32 s{T0+5}, {STATS}",
                          f"s_cmp_lt_u32 s3, 3\ns_nop 0\ns_cselect_b32 s{T0+5}, s{T0+5}, {OOB}"]
            if s == 16:
                wq += self.w2_pair(6, 2, 7, 3) + self.w2_reg(0)
                extra += [f"s_or_b32 s{T0+4}, s{S_MT}, s3\ns_cmp_eq_u32 s{T0+4}, 0\ns_cselect_b32 s{T0+4}, 8, 0\nv_lshrrev_b32 v5, 4, v0",
                          "v_bfe_u32 v6, v0, 1, 3", f"v_add_u32 v7, 1, v6\nv_max_u32 v7, s{T0+4}, v7", f"v_add_u32 v6, 8, v6\nv_lshlrev_b32 v5, 2, v5",
                          "v_sub_u32 v6, v6, v7\nv_sub_u32 v5, v5, v7", f"v_mov_b32 v4, {f2u(-1e30)}"]
                for r in range(4):
                    extra += [f"v_add_u32 v7, {r}, v5\nv_cmp_ge_u32 vcc, v6, v7\ns_nop 1\ns_nop 0\nv_cndmask_b32_e64 v{12+r}, v4, 0, vcc"]
            if s == 17:
                assert CK + 2 <= 17
                if wm == 0:
                    L = self.label()
                    extra += [f"s_cmp_ge_u32 s3, 3\ns_cbranch_scc1 {L}\nds_write_b64 v32, v[30:31]\n{L}:"]
                extra += [f"s_and_b32 s{T0+6}, s3, 3\nv_and_b32 v4, 31, v0", f"v_mul_u32_u24 v6, {QS}, v4", f"s_lshl_b32 s{T0+6}, s{T0+6}, 7\nv_lshrrev_b32 v5, 5, v0",
                          f"v_lshlrev_b32 v5, 3, v5\nv_lshlrev_b32 v4, 3, v4", f"v_add3_u32 v35, v6, v5, s{T0+6}",
                          f"v_add_u32 v4, {QST}, v4", f"s_lshl_b32 s{T0+4}, s3, 7\nv_lshrrev_b32 v5, 4, v0", f"s_add_u32 s{T0+4}, s{T0+4}, {QST}",
                          "v_and_b32 v6, 15, v0\nv_and_b32 v7, 1, v0", f"v_lshl_add_u32 v6, v6, 3, s{T0+4}", f"v_lshl_add_u32 v7, v7, 3, s{T0+4}",
                          "v_lshl_add_u32 v7, v5, 6, v7"]
                for h in range(1, 4):
                    extra.append(f"v_cmp_eq_u32_e64 s[{T0+4+2*h}:{T0+5+2*h}], {h}, v5")
            if s == 18:
                rowoff = [0, 16, 48] if wm == 0 else [80, 112]
                for m in range(NM):
                    extra.append(f"ds_read_b32 v{26+m}, v4 offset:{rowoff[m]*8}")
                extra.append(f"ds_read_b32 v29, v6 offset:{16*8+4}")
                for r in range(4):
                    extra.append(f"ds_read_b32 v{30+r}, v7 offset:{4+16*r}")
            if s == 19:
                wq += self.w2_pair(4, 0, 5, 1) + self.w2_reg(1)
            fill += self.take(vm, wq, o.get("qwr", 4))
            def mfma(sub, n_, m):
                c = 160 + (m * 2 + n_) * 16
                cin = "0" if (s == 0 and sub == 0) else f"v[{c}:{c+15}]"
                b = X + 24 + (sub * 2 + n_) * 4; a_ = X + (sub * 3 + m) * 4
                return f"v_mfma_f32_32x32x16_bf16 v[{c}:{c+15}], v[{b}:{b+3}], v[{a_}:{a_+3}], {cin}"
            if s < 19:
                mf = mfx + [mfma(sub, n_, m) for sub in range(2) for n_ in range(2) for m in range(NM)]
                lists = [(reads(s + 1, Y), 0.0, 0.8)]
                if fill: lists.append((fill, 0.0, 1.0))
                if extra: lists.append((extra, 0.0, 0.9))
                if extra2: lists.append((extra2, 0.0, 0.9))
                self.interleave(mf, lists)
                self("s_waitcnt lgkmcnt(0)\ns_nop 0")
            else:
                mf = [mfma(sub, n_, m) for m in range(NM) for sub in range(2) for n_ in range(2)]
                extra = ["v_and_b32 v6, 1, v0\nv_mov_b32 v4, 0", "v_add_u32 v8, -1, v6\nv_sub_u32 v9, 0, v6",
                         f"v_add_u32 v5, {QZ}, v3", "ds_write_b32 v5, v4",
                         f"v_mul_f32 v29, {f2u(sc)}, v29", "v_mul_f32 v76, v29, v30\nv_mul_f32 v77, v29, v31", "v_mul_f32 v78, v29, v32\nv_mul_f32 v79, v29, v33",
                         "v_mov_b32 v10, v27\nv_mov_b32 v11, v27", "v_mov_b32 v27, v26\nv_mov_b32 v29, v28"]
                self.interleave(mf[:-4], [(fill, 0.0, 1.0), (extra, 0.0, 1.0)])
                if wm == 0:
                    self("s_nop 7\ns_mov_b32 exec_lo, 1\ns_mov_b32 exec_hi, 1\ns_nop 0")
                    for n_ in range(2):
                        for a_ in range(4):
                            c = 160 + n_ * 16 + a_ * 4
                            self(f"ds_write_b128 v17, v[{c}:{c+3}] offset:{n_*128 + a_*32}")
                    self("s_mov_b64 exec, -1\ns_nop 0")
                self(mf[-4]); self(mf[-3])
                self("s_waitcnt lgkmcnt(0)\ns_barrier")
                for n_ in range(2):
                    for a_ in range(4):
                        r = 80 + n_ * 16 + a_ * 4
                        self(f"ds_read_b128 v[{r}:{r+3}], v17 offset:{n_*128 + a_*32}")
                self(mf[-2]); self(mf[-1])
            assert s < 15 or not ops
        self.ts(4)
        wq += self.w2_reg(2)
        w2 = self.take(vm, wq, o.get("qwf", 4))
        self.q_rest = wq
        self("s_waitcnt lgkmcnt(0)\ns_nop 0")
        rowoff = [0, 16, 48] if wm == 0 else [80, 112]
        body = []
        for m in range(NM):
            pr = [26, 10, 28][m]
            for n_ in range(2):
                c = 160 + (m * 2 + n_) * 16
                for a_ in range(4):
                    for r in (4 * a_, 4 * a_ + 2):
                        body.append(f"v_pk_fma_f32 v[{c+r}:{c+r+1}], v[{pr}:{pr+1}], v[{80+n_*16+r}:{81+n_*16+r}], v[{c+r}:{c+r+1}]")
                for a_ in range(4):
                    body.append(f"v_cvt_pk_bf16_f32 v{c+4*a_}, v{c+4*a_}, v{c+4*a_+1}\nv_cvt_pk_bf16_f32 v{c+4*a_+1}, v{c+4*a_+2}, v{c+4*a_+3}")
                    body.append(f"ds_write_b64 v35, v[{c+4*a_}:{c+4*a_+1}] offset:{rowoff[m]*QS + n_*64 + a_*16}")
        if o.get("qw2fold", 1):
            self.interleave(body, [(w2, 0.0, 1.0)])
        else:
            for it in body + w2: self(it)

    def attention(self):
        QS = self.QS
        vm = VM()
        self("s_waitcnt lgkmcnt(0)\ns_barrier")
        self.ts(5)
        Qe, Qo, Ke, Ko, Vf, Vr = 160, 176, 192, 208, 224, 96
        Sx, Pf, O, R = 240, 80, 160, 176
        for h in range(4):
            self(f"ds_read_b64 v[{Qe+4*h}:{Qe+4*h+1}], v21 offset:{16*QS + 40*h}")
            self(f"ds_read_b64 v[{Qe+4*h+2}:{Qe+4*h+3}], v22 offset:{16*QS + 40*h + 32}")
            self(f"ds_read_b64 v[{Ke+4*h}:{Ke+4*h+1}], v25 offset:{160 + 40*h}")
            self(f"ds_read_b64 v[{Ke+4*h+2}:{Ke+4*h+3}], v34 offset:{160 + 40*h + 32}")
        for h in range(4):
            self(f"ds_read_b64 v[{Qo+4*h}:{Qo+4*h+1}], v23 offset:{16*QS + 40*h}")
            self(f"ds_read_b64 v[{Qo+4*h+2}:{Qo+4*h+3}], v24 offset:{16*QS + 40*h + 32}")
            self(f"ds_read_b64 v[{Ko+4*h}:{Ko+4*h+1}], v25 offset:{QS + 160 + 40*h}")
            self(f"ds_read_b64 v[{Ko+4*h+2}:{Ko+4*h+3}], v34 offset:{QS + 160 + 40*h + 32}")
        wq = self.q_rest
        na = self.o.get("qwa", 2)
        self.emit_items(self.take(vm, wq, na))
        self("s_waitcnt lgkmcnt(0)" if self.instr else "s_waitcnt lgkmcnt(15)")
        self.align8()
        for h in range(4):
            self(f"v_mfma_f32_16x16x32_bf16 v[{Sx+4*h}:{Sx+4*h+3}], v[{Ke+4*h}:{Ke+4*h+3}], v[{Qe+4*h}:{Qe+4*h+3}], v[12:15]")
        self("s_waitcnt lgkmcnt(0)\ns_nop 0")
        for h in range(4):
            self(f"v_mfma_f32_16x16x32_bf16 v[{Sx+4*h}:{Sx+4*h+3}], v[{Ko+4*h}:{Ko+4*h+3}], v[{Qo+4*h}:{Qo+4*h+3}], v[{Sx+4*h}:{Sx+4*h+3}]")
        for h in range(4):
            self(f"ds_read_b64_tr_b16 v[{Vf+4*h}:{Vf+4*h+1}], v1 offset:{320 + 40*h}")
            self(f"ds_read_b64_tr_b16 v[{Vf+4*h+2}:{Vf+4*h+3}], v1 offset:{QS + 320 + 40*h}")
        self(f"ds_read_b64_tr_b16 v[{Vr}:{Vr+1}], v18 offset:{320 + 32}")
        self(f"ds_read_b64_tr_b16 v[{Vr+2}:{Vr+3}], v18 offset:{QS + 320 + 32}")
        M = 4
        for h in range(4):
            s = Sx + 4 * h
            self(f"v_pk_mul_f32 v[{s}:{s+1}], v[{s}:{s+1}], v[76:77]\nv_pk_mul_f32 v[{s+2}:{s+3}], v[{s+2}:{s+3}], v[78:79]")
        for h in range(4):
            s = Sx + 4 * h
            self(f"v_max3_f32 v{M+h}, v{s}, v{s+1}, v{s+2}")
        for h in range(4):
            s = Sx + 4 * h
            self(f"v_max_f32 v{M+h}, v{M+h}, v{s+3}")
        def red(op, post):
            self(f"s_nop 1\nv_permlane16_swap_b32 v{M}, v{M+1}\nv_permlane16_swap_b32 v{M+2}, v{M+3}\ns_nop 0")
            self(f"{op} v{M}, v{M}, v{M+1}\n{op} v{M+2}, v{M+2}, v{M+3}\ns_nop 1\nv_permlane32_swap_b32 v{M}, v{M+2}\ns_nop 0\n{op} v{M}, v{M}, v{M+2}")
            if post: self(post)
            self(f"v_mov_b32 v{M+2}, v{M}\ns_nop 1\nv_permlane32_swap_b32 v{M}, v{M+2}\ns_nop 0")
            self(f"v_mov_b32 v{M+1}, v{M}\nv_mov_b32 v{M+3}, v{M+2}\ns_nop 1\nv_permlane16_swap_b32 v{M}, v{M+1}\nv_permlane16_swap_b32 v{M+2}, v{M+3}\ns_nop 0")
        red("v_max_f32", None)
        self.emit_items(self.take(vm, wq, na))
        for h in range(4):
            for r in range(4):
                self(f"v_sub_f32 v{Sx+4*h+r}, v{Sx+4*h+r}, v{M+h}")
        for h in range(4):
            for r in range(4):
                self(f"v_exp_f32 v{Sx+4*h+r}, v{Sx+4*h+r}")
        self("s_nop 0")
        for h in range(4):
            s = Sx + 4 * h
            self(f"v_add_f32 v{M+h}, v{s}, v{s+1}\nv_add_f32 v10, v{s+2}, v{s+3}\nv_add_f32 v{M+h}, v{M+h}, v10")
        self.align8()
        for h in range(4):
            s = Sx + 4 * h
            self(f"v_pk_mul_f32 v[{s}:{s+1}], v[{s}:{s+1}], v[30:31]\nv_pk_mul_f32 v[{s+2}:{s+3}], v[{s+2}:{s+3}], v[32:33]")
        red("v_add_f32", f"v_rcp_f32 v{M}, v{M}\ns_nop 0")
        assert all(not x[0] for x in wq)
        for h in range(4):
            s = Sx + 4 * h
            for r in range(4):
                self(f"v_mul_f32 v{s+r}, v{s+r}, v{M+h}")
            self(f"v_cvt_pk_bf16_f32 v{s}, v{s}, v{s+1}\nv_cvt_pk_bf16_f32 v{s+1}, v{s+2}, v{s+3}")
            p = Pf + 4 * h
            self(f"v_and_b32 v{p}, v{s}, v8\nv_and_b32 v{p+1}, v{s+1}, v8\nv_and_b32 v{p+2}, v{s}, v9\nv_and_b32 v{p+3}, v{s+1}, v9")
        self("s_waitcnt lgkmcnt(0)\ns_nop 0")
        for h in range(4):
            self(f"v_mfma_f32_16x16x32_bf16 v[{O+4*h}:{O+4*h+3}], v[{Vf+4*h}:{Vf+4*h+3}], v[{Pf+4*h}:{Pf+4*h+3}], 0")
        for h in range(4):
            self(f"v_mfma_f32_16x16x32_bf16 v[{R+4*h}:{R+4*h+3}], v[{Vr}:{Vr+3}], v[{Pf+4*h}:{Pf+4*h+3}], 0")
        self("s_nop 3")
        for k in range(2):
            d = 192 + 4 * k
            for q in range(4):
                self(f"v_cvt_pk_bf16_f32 v{d+q}, v{O+8*k+2*q}, v{O+8*k+2*q+1}")
            self(f"buffer_store_dwordx4 v[{d}:{d+3}], v2, {srd(SW)}, s{T0+2+k} offen sc1"); vm.issue("st")
        for h in range(1, 4):
            for r in range(4):
                self(f"v_cndmask_b32_e64 v{R+r}, v{R+r}, v{R+4*h+r}, s[{T0+4+2*h}:{T0+5+2*h}]")
        self(f"v_cvt_pk_bf16_f32 v200, v{R}, v{R+1}\nv_cvt_pk_bf16_f32 v201, v{R+2}, v{R+3}")
        self("v_mov_b32 v202, v200\nv_mov_b32 v203, v201\ns_nop 1\nv_permlane16_swap_b32 v200, v202\nv_permlane16_swap_b32 v201, v203\ns_nop 0")
        self(f"buffer_store_dwordx4 v[200:203], v16, {srd(SW)}, s{T0+1} offen sc1"); vm.issue("st")
        if self.o.get("tsa"): self.ts(2)
        self.emit_items(self.take(vm, wq))
        self.publish(vm)

    def p2(self):
        vm = VM()
        o = self.o
        self("P2_START:")
        PH, t, so, fo = T0 + 3, T0 + 5, T0 + 6, T0 + 4
        LW = S_LW
        KS = T0 + 7
        KL = 4
        self.emit_items(self.take(vm, self.w2_reg(3)))
        self(f"s_lshr_b32 s{fo}, s{S_M2}, 1\ns_lshl_b32 s{fo}, s{fo}, 11\ns_add_u32 s{fo}, s{fo}, {FLAGS}")
        self(f"s_lshl_b32 s{t}, s3, 8\ns_add_u32 s{PH}, s{t}, 128")
        self(f"v_mov_b32 v12, s{PH}\nv_writelane_b32 v12, s{t}, 0")
        self(f"s_lshl1_add_u32 s{t}, s{t}, 128\ns_cmp_lt_u32 s3, 4\ns_cselect_b32 s{t}, s{t}, s{PH}\nv_writelane_b32 v12, s{t}, 2")
        self(f"s_cselect_b32 s{PH}, 256, 0\ns_add_u32 s{t}, s{t}, s{PH}\nv_writelane_b32 v12, s{t}, 3")
        poll = f"buffer_load_dwordx2 v[14:15], v12, {srd(SW)}, s{fo} offen sc1"
        self(poll)
        self(f"s_mul_i32 s{t}, s3, 6")
        for i in range(6):
            self(f"s_add_u32 s{KS+i}, s{S_ROT}, {i}\ns_cmp_ge_u32 s{KS+i}, 6\ns_cselect_b32 s{so}, 6, 0\ns_sub_u32 s{KS+i}, s{KS+i}, s{so}\ns_add_u32 s{KS+i}, s{KS+i}, s{t}")
        self(f"s_lshl1_add_u32 s{KS+6}, s3, 48\ns_add_u32 s{KS+7}, s{KS+6}, 1\ns_add_u32 s{KS+8}, s3, 64")
        for k, i in enumerate((5, 6, 7, 4)):
            self(f"s_mul_i32 s{KL+k}, s{KS+i}, 5120\ns_add_u32 s{KL+k}, s{KL+k}, s{S_WB}")
        self(f"s_mul_i32 s{t}, s{S_M2}, {68*4096}")
        for i in range(9):
            self(f"s_lshl_b32 s{KS+i}, s{KS+i}, 12\ns_add_u32 s{KS+i}, s{KS+i}, s{t}")
        ACC = 176
        self(f"v_add_u32 v11, s{LW}, v2\nv_add_u32 v13, 4096, v2")
        self.mk_srd(SA, P_OUT, 2048 * 1280)
        self(f"s_lshl_b32 s{t}, s{S_M2}, 6\ns_lshl3_add_u32 s{t}, s3, s{t}\ns_mul_i32 s{t}, s{t}, 1280\ns_mul_i32 s{PH}, s{S_N2}, 160\ns_add_u32 s{PH}, s{PH}, s{t}")
        for rnd in range(3):
            self(f"v_add_u32 v16, {64*rnd}, v0\nv_mul_u32_u24 v17, 3277, v16\nv_lshrrev_b32 v17, 16, v17\nv_mul_u32_u24 v18, 20, v17\nv_sub_u32 v16, v16, v18")
            self("v_bfe_u32 v18, v17, 1, 2\nv_xor_b32 v16, v16, v18\nv_mul_u32_u24 v17, 1280, v17")
            self(f"v_lshl_add_u32 v{4+rnd}, v16, 3, v17")
        self("v_lshrrev_b32 v16, 5, v0\nv_lshl_add_u32 v6, v16, 26, v6")
        self("v_and_b32 v16, 15, v0\nv_lshrrev_b32 v17, 4, v0\nv_bfe_u32 v18, v0, 1, 2\nv_xor_b32 v17, v17, v18\nv_mul_u32_u24 v16, 320, v16")
        self(f"v_lshl_add_u32 v16, v17, 4, v16\nv_add_u32 v7, s{LW}, v16")
        self(f"s_mul_i32 s{t}, s3, 2560\nv_add_u32 v8, s{t}, v2\nv_add_u32 v9, 61440, v8\nv_add_u32 v10, 122880, v8")
        self("s_waitcnt vmcnt(0)")
        vm = VM()
        cmpn = f"v_cmp_ne_u64 vcc, s[{S_N}:{S_N+1}], v[14:15]"
        self.spin(cmpn + "\ns_nop 1\ns_and_b64 vcc, vcc, 1", poll, False, o.get("psl", 2))
        self.ts(7)
        NB = 3
        AR = lambda i: [80, 160, 20][i % NB]
        def ldA(i):
            return [f"buffer_load_dwordx4 v[{AR(i)+4*m}:{AR(i)+4*m+3}], v2, {srd(SW)}, s{KS+i} offen offset:{m*1024} sc1" for m in range(4)]
        for i in range(NB):
            for l in ldA(i):
                self(l); vm.issue(("A", i))
        XR = WR[4]
        def variant(vm, late):
            NS = 8 if late else 9
            for i in range(NS):
                also = [("W", i), ("L", i - 4)]
                chk = i == 6 - NB + 1
                if chk: also.append("poll")
                n = vm.wait(lambda t: t == ("A", i) or t in also)
                self(f"s_waitcnt vmcnt({n}) lgkmcnt(0)\ns_nop 0")
                if chk:
                    self.spin(cmpn, poll, False, o.get("psl", 2)); self.align8()
                mf = []
                for m in range(4):
                    for tt in range(5):
                        c = ACC + (m * 5 + tt) * 4
                        w = WR[i % 5] + 4 * tt
                        mf.append(f"v_mfma_f32_16x16x32_bf16 v[{c}:{c+3}], v[{w}:{w+3}], v[{AR(i)+4*m}:{AR(i)+4*m+3}], {'0' if i == 0 else 'v[%d:%d]' % (c, c+3)}")
                fill = []
                if i == 0:
                    for tt in range(5):
                        r = WR[4] + 4 * tt
                        fill.append(f"buffer_load_dwordx4 v[{r}:{r+3}], v{13 if tt == 4 else 2}, {srd(SW)}, s{KL+3} offen offset:{(tt%4)*1024} sc1"); vm.issue(("W", 4))
                if i == 1:
                    fill.append(poll); vm.issue("poll")
                j = i - 1 + NB
                if i >= 1 and j < NS:
                    fill += ldA(j)
                    for _ in range(4): vm.issue(("A", j))
                if late and 1 <= i <= 3:
                    k = i - 1
                    for tt in range(5):
                        of = (tt % 4) * 1024
                        fill.append((f"s_add_u32 m0, s{LW}, {lit(k*5120 + tt*1024 - of)}",
                                     f"buffer_load_dwordx4 v{13 if tt == 4 else 2}, {srd(SW)}, s{KL+k} offen offset:{of} sc1 lds")); vm.issue(("L", k))
                if i == 6:
                    for rnd in range(3):
                        fill.append(f"buffer_load_dwordx2 v[{XR+2*rnd}:{XR+2*rnd+1}], v{4+rnd}, {srd(SX)}, s{PH} offen"); vm.issue("x")
                rl = []
                k = (i - 4) if late else (i - 1)
                if 0 <= k < NS - 5:
                    rl = [f"ds_read_b128 v[{WR[k]+4*tt}:{WR[k]+4*tt+3}], v11 offset:{k*5120 + tt*1024}" for tt in range(5)]
                if i < NS - 1:
                    lists = []
                    if fill: lists.append((fill, 0.0, 0.9))
                    if rl: lists.append((rl, 0.0, 0.6))
                    self.interleave(mf, lists)
                else:
                    assert not fill and not rl
                    wr = [f"ds_write_b128 v7, v[{ACC+(m*5+tt)*4}:{ACC+(m*5+tt)*4+3}] offset:{m*5120 + tt*64}" for m in range(4) for tt in range(5)]
                    LAG = 8
                    for k in range(20 + LAG):
                        if k < 20: self(mf[k])
                        if k == 20: self("s_nop 1\ns_nop 0")
                        if k >= LAG: self(wr[k - LAG])
        self("s_cmp_ge_u32 s3, 4\ns_cbranch_scc1 P2_B")
        self.align8()
        vm2 = copy.deepcopy(vm)
        variant(vm, False)
        self("s_branch P2_RED")
        self.align8()
        self("P2_B:")
        variant(vm2, True)
        self("P2_RED:")
        self.ts(8)
        self("s_waitcnt lgkmcnt(0)\ns_barrier")
        RB = [36, 120, 176]
        for rnd in range(3):
            for src in range(8):
                r = RB[rnd] + src * 4
                self(f"ds_read_b128 v[{r}:{r+3}], v{8 + src//3} offset:{(src%3)*20480 + rnd*1024}")
        self("s_waitcnt vmcnt(0)\ns_nop 0")
        ofl = {0: "", 1: " sc1", 2: " nt", 3: " sc0 sc1"}[self.o.get("ost", 0)]
        for rnd in range(3):
            b = RB[rnd]
            x = XR + 2 * rnd
            self(f"v_lshlrev_b32 v{XR+8}, 16, v{x}\nv_lshlrev_b32 v{XR+10}, 16, v{x+1}\nv_and_b32 v{XR+9}, 0xffff0000, v{x}\nv_and_b32 v{XR+11}, 0xffff0000, v{x+1}")
            self("s_waitcnt lgkmcnt(0)\ns_nop 0" if self.instr else f"s_waitcnt lgkmcnt({[15,8,0][rnd]})\ns_nop 0")
            for st in (4, 8, 16):
                for k in range(0, 32, 2 * st):
                    for r in (0, 2):
                        self(f"v_pk_add_f32 v[{b+k+r}:{b+k+r+1}], v[{b+k+r}:{b+k+r+1}], v[{b+k+st+r}:{b+k+st+r+1}]")
            for r in (0, 2):
                self(f"v_pk_add_f32 v[{b+r}:{b+r+1}], v[{b+r}:{b+r+1}], v[{XR+8+r}:{XR+9+r}]")
            self(f"v_cvt_pk_bf16_f32 v{b}, v{b}, v{b+1}\nv_cvt_pk_bf16_f32 v{b+1}, v{b+2}, v{b+3}")
            self(f"buffer_store_dwordx2 v[{b}:{b+1}], v{4+rnd}, {srd(SA)}, s{PH} offen{ofl}")
        if self.instr:
            self("s_waitcnt vmcnt(0)")
            self.ts(9)
            self(f"s_memrealtime s[{T0+2}:{T0+3}]\ns_waitcnt lgkmcnt(0)")
            for i in range(1, 10):
                self(f"s_sub_u32 s{T0}, s{TSB+2*i}, s{TSB}\nv_mov_b32 v{20+i}, s{T0}")
            self(f"v_mov_b32 v20, s100\nv_mov_b32 v30, s{T0+2}\nv_mov_b32 v31, 0")
            self(f"s_lshl3_add_u32 s{T0}, s2, s3\ns_lshl_b32 s{T0}, s{T0}, 6\ns_add_u32 s{T0}, s{T0}, {TS}\nv_lshlrev_b32 v12, 26, v0")
            for q in range(3):
                self(f"buffer_store_dwordx4 v[{20+4*q}:{23+4*q}], v12, {srd(SW)}, s{T0} offen offset:{16*q}")

    def build(self):
        k = NAME + "_kernel"
        self(header([f"@launch grid=(256,1,1) block=(512,1,1) lds={160*1024}"]))
        self(kbegin(k))
        self.ts(0)
        if self.instr:
            self("s_memrealtime s[100:101]")
        self("s_load_dwordx16 s[4:19], s[0:1], 0\ns_load_dwordx4 s[20:23], s[0:1], 64")
        self("v_lshrrev_b32 v1, 6, v0\nv_and_b32 v0, 63, v0")
        self("s_cmp_ge_u32 s2, 256\ns_cbranch_scc1 K_END")
        self("v_readfirstlane_b32 s3, v1")
        self(f"s_and_b32 s{S_C}, s2, 7\ns_lshr_b32 s{S_MT}, s2, 4")
        self("s_bitcmp1_b32 s2, 3\ns_cbranch_scc1 Q_START")
        self.h_path()
        self.q_path()
        self.p2()
        self("K_END:\ns_endpgm")
        self("K_LAST:")
        self(f".set CODE_SPAN, K_LAST - {k} - 1024")
        self(kdesc(k, 256, 102, 256))
        return self.a.text()

if __name__ == "__main__":
    out = sys.argv[1]
    instr = "instr" in sys.argv[2:]
    opts = {}
    for x in sys.argv[2:]:
        if "=" in x:
            kk, vv = x.split("="); opts[kk] = int(vv)
    open(out, "w").write(G(instr, opts).build())
```

```python
import sys, struct, copy
from gen_common import *

def f2u(x):
    return hex(struct.unpack('<I', struct.pack('<f', x))[0])

A2F = 0
W2P = 16 << 20
STATS = 20 << 20
CS = 21 << 20
FLAGS = 22 << 20
TS = 24 << 20
WSN = 32 << 20
OOB = 0x80000000
SPIN = 200000

P_X, P_QKV, P_WO, P_BX, P_WG, P_WU, P_WD, P_OUT, P_DBG, P_WS = 4, 6, 8, 10, 12, 14, 16, 18, 20, 22
SX, SB, SW, SD, SA = 24, 28, 32, 36, 40
SP = 4
S_C, S_MT, S_ROW = 44, 45, 46
S_M2, S_N2, S_ROT = 47, 48, 49
S_KB, S_A2, S_LB, S_LA = 50, 51, 52, 53
S_FLAG, S_LW = 54, 55
S_N = 0
EFL = 65536
S_HM = 56
S_MULW, S_ADDW = 58, 59
T0 = 60
S_WB, S_L5 = 10, 11
TSB = 80
WR = [36, 56, 120, 140, 100]

def srd(r):
    return f"s[{r}:{r+3}]"

def lit(v):
    return str(v) + ("\ns_nop 0" if -16 <= v <= 64 else "")

class NH(str):
    pass

class VM:
    def __init__(self):
        self.q = []
    def issue(self, tag, optional=False):
        self.q.append((tag, optional))
        assert len(self.q) <= 63, self.q
    def wait(self, pred):
        last = -1
        for i, (t, o) in enumerate(self.q):
            if pred(t):
                last = i
        if last < 0:
            return None
        rest = self.q[last + 1:]
        n = sum(1 for t, o in rest if not o)
        self.q = rest
        return n
    def has(self, tag):
        return any(t == tag for t, o in self.q)

class G:
    def __init__(self, instr=False, opts=None):
        self.a = Asm()
        self.instr = instr
        self.o = opts or {}
        self.lab = 0

    def __call__(self, s=""):
        self.a(s)

    def label(self, p="L"):
        self.lab += 1
        return f"{p}{self.lab}"

    def tstep(self, s):
        if self.instr and self.o.get("steps"):
            m = {0: 1, 2: 2, 4: 3, 6: 4, 8: 5, 11: 6, 14: 7, 17: 8}
            if self.o.get("steps") == 2:
                m = {12: 1, 13: 2, 14: 3, 15: 4, 16: 5, 17: 6, 18: 7, 19: 8}
            if self.o.get("steps") == 3:
                m = {0: 1, 1: 2, 2: 3, 3: 4, 4: 5, 5: 6, 6: 7, 7: 8}
            if self.o.get("steps") == 4:
                m = {"a": 1, "b": 2, "c": 3, "d": 4, "e": 5, "f": 6, 0: 7, 2: 8}
            if s in m:
                self.ts(m[s], True)

    def ts(self, i, force=False):
        if self.o.get("steps") and not force and i not in (0, 9):
            return
        if self.instr:
            op = "s_memrealtime" if self.o.get("rt") else "s_memtime"
            self(f"{op} s[{TSB+2*i}:{TSB+2*i+1}]")

    def mk_srd(self, d, base, n):
        self(f"s_mov_b32 s{d}, s{base}\ns_mov_b32 s{d+1}, s{base+1}\ns_mov_b32 s{d+2}, {n}\ns_mov_b32 s{d+3}, 0x20000")

    def align8(self):
        self(".p2align 3")

    def wave_sum(self, v, t):
        for d in ("quad_perm:[1,0,3,2]", "quad_perm:[2,3,0,1]", "row_half_mirror", "row_mirror"):
            self(f"s_nop 1\nv_add_f32_dpp v{v}, v{v}, v{v} {d} row_mask:0xf bank_mask:0xf")
        self(f"v_mov_b32 v{t}, v{v}\ns_nop 1\nv_permlane16_swap_b32 v{t}, v{v}\ns_nop 0\nv_add_f32 v{v}, v{v}, v{t}")
        self(f"v_mov_b32 v{t}, v{v}\ns_nop 1\nv_permlane32_swap_b32 v{t}, v{v}\ns_nop 0\nv_add_f32 v{v}, v{v}, v{t}")

    def px_pre(self, typ):
        self(f"s_lshl3_add_u32 s{S_FLAG}, s{S_MT}, s{S_C}\ns_lshl1_add_u32 s{S_FLAG}, s{S_FLAG}, {typ}")
        self(f"s_lshl3_add_u32 s{S_ROW}, s{S_FLAG}, s3")
        self(f"s_mul_i32 s{T0}, s{S_ROW}, 1280")
        self("v_lshlrev_b32 v2, 4, v0\nv_lshlrev_b32 v3, 2, v0")

    def misc_pre(self):
        self(f"s_lshl_b32 s{S_FLAG}, s{S_FLAG}, 7\ns_add_u32 s{S_FLAG}, s{S_FLAG}, {FLAGS}")
        self(f"v_add_lshl_u32 v19, v0, s3, 25")
        self.mk_srd(SW, P_WS, WSN)

    def nonce_load(self):
        return f"buffer_load_dwordx2 v[30:31], off, {srd(SD)}, 0 sc1"

    def nonce_get(self):
        self.spin("v_cmp_eq_u64 vcc, 0, v[30:31]", self.nonce_load(), False, 8)
        self(f"v_readfirstlane_b32 s{S_N}, v30\nv_readfirstlane_b32 s{S_N+1}, v31")

    def early_flag(self):
        return [f"s_add_u32 s{T0}, s{S_FLAG}, {EFL}", f"buffer_store_dwordx2 v[30:31], v19, {srd(SW)}, s{T0} offen sc1"]

    def check_addr(self, v):
        t = T0 + 17
        L = [f"s_lshl_b32 s{t}, s{S_MT}, 4", f"s_sub_u32 s{t}, s{t}, 2", f"v_add_u32 v4, s{t}, v0", "v_max_i32 v4, 0, v4",
             f"s_lshl1_add_u32 s{t}, s{S_C}, {(1 - 18*16) & 0xffffffff}", f"v_lshl_add_u32 v5, v0, 4, s{t}",
             f"s_mul_i32 s{t}, s{S_N2}, 5", f"s_lshr_b32 s{t}, s{t}, 2", f"s_sub_u32 s{t}, s{t}, 170",
             "v_min_u32 v6, 57, v0", "v_lshrrev_b32 v7, 1, v6", "v_and_b32 v6, 1, v6", "v_mad_u32_u24 v6, v7, 10, v6",
             f"v_add_u32 v6, s{t}, v6", "v_lshlrev_b32 v6, 1, v6",
             "v_cmp_gt_u32 vcc, 34, v0\ns_nop 1\nv_cndmask_b32 v5, v6, v5, vcc",
             "v_cmp_gt_u32 vcc, 18, v0\ns_nop 1\nv_cndmask_b32 v5, v5, v4, vcc",
             "v_lshlrev_b32 v5, 7, v5", f"v_mov_b32 v{v}, v5", f"s_mov_b32 s{T0+18}, {FLAGS + EFL}"]
        return self.chunks(L, 10)

    def check_issue(self, vreg, va):
        L = self.label()
        return f"s_cmp_lg_u32 s3, 0\ns_cbranch_scc1 {L}\nbuffer_load_dwordx2 v[{vreg}:{vreg+1}], v{va}, {srd(SW)}, s{T0+18} offen sc1\n{L}:"

    def check_spin(self, vreg, va):
        self.spin(f"v_cmp_ne_u64 vcc, s[{S_N}:{S_N+1}], v[{vreg}:{vreg+1}]",
                  f"buffer_load_dwordx2 v[{vreg}:{vreg+1}], v{va}, {srd(SW)}, s{T0+18} offen sc1", True, 8)

    def px_load(self, vm):
        fl = " nt" if self.o.get("pxnt", 1) else ""
        vm.issue("px"); vm.issue("px")
        return [f"buffer_load_dwordx4 v[56:59], v2, {srd(SX)}, s{T0} offen{fl}",
                f"buffer_load_dword v60, v3, {srd(SX)}, s{T0} offen offset:1024{fl}"]

    def stats_parts(self, typ):
        keep = self.a; self.a = Asm()
        E = 62
        for j in range(5):
            self(f"v_lshlrev_b32 v{E+2*j}, 16, v{56+j}\nv_and_b32 v{E+1+2*j}, 0xffff0000, v{56+j}")
        self(f"v_add_f32 v72, v{E}, v{E+1}\nv_add_f32 v73, v{E+2}, v{E+3}\nv_add_f32 v74, v{E+4}, v{E+5}\nv_add_f32 v75, v{E+6}, v{E+7}\nv_add_f32 v61, v{E+8}, v{E+9}")
        self("v_add_f32 v72, v72, v73\nv_add_f32 v74, v74, v75\nv_add_f32 v72, v72, v61\nv_add_f32 v72, v72, v74")
        self.wave_sum(72, 73)
        self(f"v_mul_f32 v72, {f2u(-1.0/640)}, v72")
        for j in range(10):
            self(f"v_add_f32 v{E+j}, v{E+j}, v72")
        self(f"v_mul_f32 v74, v{E}, v{E}\nv_mul_f32 v75, v{E+1}, v{E+1}")
        for j in range(2, 10):
            self(f"v_fmac_f32 v{74+(j&1)}, v{E+j}, v{E+j}")
        self("v_add_f32 v74, v74, v75")
        self.wave_sum(74, 75)
        self(f"v_mov_b32 v73, {f2u(1e-5)}")
        self(f"v_fmac_f32 v73, {f2u(1.0/640)}, v74")
        self("v_rsq_f32 v73, v73")
        self(f"s_lshl_b32 s{T0}, s{S_ROW}, 3\ns_add_u32 s{T0}, s{T0}, {STATS}")
        self("v_lshlrev_b32 v75, 26, v0")
        comp = self.a.lines; self.a = keep
        st = [f"buffer_store_dwordx2 v[72:73], v75, {srd(SW)}, s{T0} offen sc1"]
        return comp, st

    def stats(self, vm, typ):
        n = vm.wait(lambda t: t == "px")
        if n is not None:
            self(f"s_waitcnt vmcnt({n})")
        comp, st = self.stats_parts(typ)
        for l in comp: self(l)

    def chunks(self, lines, n):
        k = -(-len(lines) // n)
        return ["\n".join(lines[i:i + k]) + "\n.p2align 3" for i in range(0, len(lines), k)]

    def spin(self, cmp, reload, wave0=False, sleep=1):
        L = self.label(); Ld = self.label()
        s = ""
        if wave0:
            s += f"s_cmp_lg_u32 s3, 0\ns_cbranch_scc1 {Ld}\n"
        s += f"s_mov_b32 s{T0+19}, 0\n{L}:\n{cmp}\ns_nop 4\ns_cbranch_vccz {Ld}\n"
        s += f"s_addk_i32 s{T0+19}, 1\ns_cmp_ge_u32 s{T0+19}, {SPIN}\ns_cbranch_scc1 {Ld}\n"
        s += f"s_sleep {sleep}\n{reload}\ns_waitcnt vmcnt(0)\ns_branch {L}\n{Ld}:"
        self(s)

    def capture(self, fn):
        keep = self.a; self.a = Asm()
        fn()
        lines = self.a.lines; self.a = keep
        return lines

    def scc_chunks(self, lines, k=3):
        items = []; cur = []
        for i, l in enumerate(lines):
            cur.append(l)
            nxt = lines[i + 1:]
            live = False
            for m in nxt:
                if m.startswith("s_cselect") or m.startswith("s_cbranch"): live = True; break
                if m.startswith("s_cmp") or m.startswith("s_add") or m.startswith("s_sub") or m.startswith("s_ls") or m.startswith("s_and") or m.startswith("s_bitcmp"): break
            if len(cur) >= k and not live:
                items.append("\n".join(cur) + "\n.p2align 3"); cur = []
        if cur: items.append("\n".join(cur) + "\n.p2align 3")
        return items

    PK = (T0 + 6, T0 + 7, T0 + 8, T0 + 9, T0 + 10, T0 + 11, T0 + 12)

    def pack_params(self, rnd):
        u, _, _, base, al, be, ga = self.PK
        ks, Lc = T0 + 2 + 2 * rnd, T0 + 3 + 2 * rnd
        t = T0 + 13
        self(f"s_lshl3_add_u32 s{u}, s{S_MT}, s{S_C}\ns_mul_i32 s{ks}, s{u}, 6554\ns_lshr_b32 s{ks}, s{ks}, 16\ns_mul_i32 s{Lc}, s{ks}, 10\ns_sub_u32 s{Lc}, s{u}, s{Lc}")
        self(f"s_mul_i32 s{t}, s3, 12\ns_add_u32 s{ks}, s{ks}, s{t}\ns_cmp_ge_u32 s{u}, 120\ns_cselect_b32 s{ks}, 99, s{ks}")
        self(f"s_lshl_b32 s{base}, s{ks}, 5")
        self(f"s_sub_u32 s{al}, s{ks}, 48\ns_mul_i32 s{al}, s{al}, 40\ns_mov_b32 s{t}, {640*1280}")
        self(f"s_cmp_lt_u32 s{ks}, 48\ns_cselect_b32 s{base}, s{base}, s{al}\ns_cselect_b32 s{al}, 16, 8\ns_cselect_b32 s{ga}, 8, 20")
        self(f"s_cselect_b64 s[{SP}:{SP+1}], s[{P_WD}:{P_WD+1}], s[{P_WO}:{P_WO+1}]\ns_cselect_b32 s{SP+2}, {1536*1280}, s{t}\ns_mov_b32 s{be}, 4")
        self(f"s_sub_u32 s{t}, s{ks}, 64\ns_mul_i32 s{t}, s{t}, 160\ns_add_u32 s{t}, s{t}, 16\ns_cmp_ge_u32 s{ks}, 64")
        self(f"s_cselect_b32 s{base}, s{t}, s{base}\ns_cselect_b32 s{be}, 40, s{be}\ns_cselect_b32 s{al}, 80, s{al}")
        self(f"s_cmp_ge_u32 s{ks}, 68\ns_cselect_b32 s{SP+2}, 0, s{SP+2}\ns_mov_b32 s{SP+3}, 0x20000")
        self(f"s_mul_i32 s{base}, s{base}, 1280\ns_lshl_b32 s{t}, s{Lc}, 7\ns_add_u32 s{base}, s{base}, s{t}")
        self(f"s_mul_i32 s{al}, s{al}, 1280\ns_mul_i32 s{be}, s{be}, 1280")
        self(f"s_add_u32 s{al}, s{al}, s{base}\ns_add_u32 s{u}, s{al}, s{be}\ns_add_u32 s{be}, s{be}, s{base}")
        self(f"v_lshrrev_b32 v5, 5, v0\nv_mul_u32_u24 v5, s{ga}, v5\nv_and_b32 v7, 7, v0\nv_bfe_u32 v6, v0, 3, 2\nv_add_u32 v5, v5, v6")
        self("v_and_b32 v6, 2, v6\nv_xor_b32 v7, v7, v6")
        self("v_mul_u32_u24 v5, 1280, v5\nv_lshl_add_u32 v32, v7, 4, v5\nv_xor_b32 v33, 64, v32")

    def pack_dma(self, scr):
        u, lb, _, base, al, be, ga = self.PK
        return [(f"s_add_u32 m0, s{lb}, {lit(i*1024)}", f"buffer_load_dwordx4 v{32 + (i&1)}, {srd(SP)}, s{so} offen nt lds", "pk", False)
                for i, so in enumerate((base, be, al, u))]

    def pack_dst(self, rnd):
        u, _, _, base, al, be, ga = self.PK
        ks, Lc = T0 + 2 + 2 * rnd, T0 + 3 + 2 * rnd
        t = T0 + 13
        self(f"s_mul_i32 s{t}, s{ks}, 5120\ns_add_u32 s{t}, s{t}, {W2P}\ns_cmp_ge_u32 s{ks}, 68\ns_cselect_b32 s{t}, {OOB}, s{t}")
        for i, d in enumerate((base, be, al, u)):
            self(f"s_lshl2_add_u32 s{d}, s{Lc}, {i}\ns_mul_i32 s{ga}, s{d}, 52\ns_lshr_b32 s{ga}, s{ga}, 8\ns_lshl_b32 s{d}, s{d}, 10")
            self(f"s_mul_i32 s{ga}, s{ga}, {67*5120}\ns_add_u32 s{d}, s{d}, s{ga}\ns_add_u32 s{d}, s{d}, s{t}")

    def pack_tr_addr(self):
        lb = self.PK[1]
        self("v_lshrrev_b32 v5, 4, v0\nv_and_b32 v7, 3, v0\nv_bfe_u32 v6, v0, 2, 2\nv_lshl_add_u32 v4, v5, 3, v6")
        self(f"v_lshlrev_b32 v4, 7, v4\nv_lshlrev_b32 v7, 3, v7\nv_add3_u32 v4, v4, v7, s{lb}")
        self("v_lshrrev_b32 v6, 1, v6\nv_and_b32 v5, 1, v5\nv_lshl_or_b32 v6, v5, 1, v6\nv_lshl_add_u32 v26, v6, 5, v4")
        for i in range(1, 4):
            self(f"v_xor_b32 v{26+i}, {32*i}, v26")

    def pack_tr(self, R):
        out = []
        for i in range(4):
            r = R + i * 4
            out += [f"ds_read_b64_tr_b16 v[{r}:{r+1}], v{26+i}", f"ds_read_b64_tr_b16 v[{r+2}:{r+3}], v{26+i} offset:512"]
        return out

    def pack_stores(self, vm, R):
        u, _, _, base, al, be, ga = self.PK
        out = []
        for i, so in enumerate((base, be, al, u)):
            out.append(f"buffer_store_dwordx4 v[{R+4*i}:{R+3+4*i}], v2, {srd(SW)}, s{so} offen sc1"); vm.issue("early")
        return out

    @staticmethod
    def sched(ops, s, rate):
        out = []
        while ops and len(out) < rate and ops[0][0] <= s:
            out.append(ops.pop(0)[1])
        return out

    def interleave(self, mf, lists):
        items = []
        for idx, (L, lo, hi) in enumerate(lists):
            for i, it in enumerate(L):
                items.append((lo + (i + 0.5) / len(L) * (hi - lo), idx, i, it))
        items.sort(key=lambda z: z[:3])
        pos = [[] for _ in mf]
        for f, _, _, it in items:
            pos[min(len(mf) - 1, int(f * len(mf)))].append(it)
        out = []
        for i, m in enumerate(mf):
            out.append(m)
            out += pos[i]
        res = []
        for it in out:
            if isinstance(it, tuple):
                if res and not res[-1][1]:
                    prev = res.pop()
                    res += [(it[0], True), prev, (it[1], True)]
                else:
                    res += [(it[0], True), ("s_nop 0\ns_nop 0", True), (it[1], True)]
            else:
                res.append((it, isinstance(it, NH)))
        for it, _ in res:
            self(it)

    def a_addr(self, abase):
        self("v_and_b32 v4, 31, v0\nv_lshrrev_b32 v5, 5, v0\nv_bfe_u32 v6, v0, 1, 3\nv_xor_b32 v6, v6, v5")
        self(f"s_lshr_b32 s{T0+1}, s3, 2\ns_lshl_b32 s{T0+1}, s{T0+1}, 13")
        if abase:
            self(f"s_add_u32 s{T0+1}, s{T0+1}, {abase}")
        self(f"v_lshlrev_b32 v6, 4, v6\nv_lshl_add_u32 v6, v4, 7, v6\nv_add_u32 v8, s{T0+1}, v6")
        for q in range(1, 4):
            self(f"v_xor_b32 v{8+q}, {q<<5}, v8")

    def a_dma_addr(self):
        self(f"s_lshl_b32 s{T0+1}, s{S_MT}, 7\ns_lshl3_add_u32 s{T0+1}, s3, s{T0+1}")
        self(f"v_lshrrev_b32 v4, 3, v0\nv_add_u32 v4, s{T0+1}, v4\nv_mul_u32_u24 v4, 1280, v4")
        self(f"s_lshl_b32 s{T0+2}, s3, 2\nv_lshrrev_b32 v5, 4, v0\nv_add_u32 v5, s{T0+2}, v5\nv_xor_b32 v5, v5, v0\nv_and_b32 v5, 7, v5")
        self("v_lshl_add_u32 v12, v5, 4, v4")

    def div24(self, j, dk, du):
        self(f"v_add_u32 v{du}, {64*j}, v0\nv_mul_u32_u24 v{dk}, 2731, v{du}\nv_lshrrev_b32 v{dk}, 16, v{dk}")
        self(f"v_mul_u32_u24 v7, 24, v{dk}\nv_sub_u32 v{du}, v{du}, v7")

    def p2_params(self):
        t, u = T0 + 17, T0 + 18
        return [
            f"s_bfe_u32 s{S_M2}, s2, 0x30003", f"s_lshr_b32 s{S_N2}, s2, 6\ns_mul_i32 s{t}, s{S_N2}, 3",
            f"s_lshr_b32 s{t}, s{t}, 1\ns_add_u32 s{t}, s{t}, s{S_M2}",
            f"s_cmp_ge_u32 s{t}, 6\ns_cselect_b32 s{u}, 6, 0\ns_sub_u32 s{S_ROT}, s{t}, s{u if self.o.get('rot') else t}\ns_lshr_b32 s{t}, s{S_C}, 1",
            f"s_lshl3_add_u32 s{S_M2}, s{t}, s{S_M2}\ns_and_b32 s{t}, s{S_C}, 1",
            f"s_lshl2_add_u32 s{S_N2}, s{t}, s{S_N2}\ns_and_b32 s{t}, s3, 3",
            f"s_mul_i32 s{S_WB}, s{S_N2}, {68*5120}", f"s_add_u32 s{S_WB}, s{S_WB}, {W2P}", f"s_mul_i32 s{S_L5}, s{t}, 5120",
            f"s_add_u32 s{u}, s{S_ROT}, -1\ns_cmp_eq_u32 s{S_ROT}, 0\ns_cselect_b32 s{u}, 5, s{u}\ns_add_u32 s{S_ADDW}, s{t}, 47",
            f"s_cmp_eq_u32 s{t}, 0\ns_cselect_b32 s{S_ADDW}, s{u}, s{S_ADDW}\ns_cselect_b32 s{S_MULW}, 6, 2\ns_nop 0",
            f"s_cmp_eq_u32 s{t}, 3\ns_cselect_b32 s{S_ADDW}, 64, s{S_ADDW}\ns_cselect_b32 s{S_MULW}, 1, s{S_MULW}\ns_nop 0",
            f"s_mul_i32 s{S_ADDW}, s{S_ADDW}, 5120", f"s_mul_i32 s{S_MULW}, s{S_MULW}, 5120", f"s_add_u32 s{S_ADDW}, s{S_ADDW}, s{S_WB}\ns_nop 0",
        ]

    def w2_pair(self, b0, t0, b1, t1):
        so, lb, t = T0 + 14, T0 + 15, T0 + 16
        ops = [(None, f"s_cmp_lt_u32 s3, 4\ns_cselect_b32 s{so}, {t0}, {t1}\ns_cselect_b32 s{lb}, {b0}, {b1}\ns_mul_i32 s{t}, s{so}, s{S_MULW}", None),
               (None, f"s_mul_i32 s{lb}, s{lb}, 20480", None), (None, NH(f"s_add_u32 s{lb}, s{lb}, s{S_L5}\ns_add_u32 s{so}, s{t}, s{S_ADDW}"), None)]
        for tt in range(5):
            o = (tt % 4) * 1024
            pre = f"s_add_u32 m0, s{lb}, {lit(tt*1024 - o)}"
            if tt == 4:
                pre = f"s_add_u32 s{so}, s{so}, 4096\n" + pre
            ops.append((pre, f"buffer_load_dwordx4 v2, {srd(SW)}, s{so} offen offset:{o} sc1 lds", "W"))
        return ops

    def w2_reg(self, i):
        so, t = T0 + 14, T0 + 16
        ops = [(None, f"s_add_u32 s{t}, s{S_ROT}, {i}\ns_cmp_ge_u32 s{t}, 6\ns_cselect_b32 s{so}, 6, 0\ns_sub_u32 s{t}, s{t}, s{so}", None),
               (None, f"s_mul_i32 s{so}, s3, 6\ns_add_u32 s{t}, s{t}, s{so}", None), (None, f"s_mul_i32 s{t}, s{t}, 5120", None),
               (None, f"s_add_u32 s{so}, s{t}, s{S_WB}\ns_nop 0", None)]
        for tt in range(5):
            r = WR[i] + 4 * tt
            ld = f"buffer_load_dwordx4 v[{r}:{r+3}], v2, {srd(SW)}, s{so} offen offset:{(tt%4)*1024} sc1"
            if tt == 4:
                ld = f"s_add_u32 s{so}, s{so}, 4096\n" + ld
            ops.append((None, ld, "W"))
        return ops

    def take(self, vm, q, n=99):
        out = []
        while q and n > 0:
            pre, post, tag = q.pop(0)
            out.append((pre, post) if pre else post)
            if tag:
                vm.issue(tag); n -= 1
        return out

    def emit_items(self, items):
        for it in items:
            self(it[0] + "\ns_nop 0\n" + it[1] if isinstance(it, tuple) else it)

    def publish(self, vm):
        self(f"v_mov_b32 v4, s{S_N}\nv_mov_b32 v5, s{S_N+1}")
        n = vm.wait(lambda t: t == "st")
        self(f"s_waitcnt vmcnt({n})\ns_barrier")
        self.ts(6)
        self(f"buffer_store_dwordx2 v[4:5], v19, {srd(SW)}, s{S_FLAG} offen sc1")

    def emit_ops(self, vm, ds):
        for d in ds:
            if d[0]:
                self(d[0] + "\ns_nop 0")
            self(d[1]); vm.issue(d[2], d[3])

    def fill_ops(self, vm, ds):
        out = []
        for d in ds:
            out.append((d[0], d[1]) if d[0] else d[1]); vm.issue(d[2], d[3])
        return out

    def h_path(self):
        vm = VM()
        o = self.o
        BB = 65536
        CSL = 102400
        S_PQ = S_HM + 1
        apos = lambda S: ((S % 4) ^ 1) * 16384
        ant = lambda S: " nt" if S < o.get("ant", 0) else ""
        PXI = o.get("pxi", 1)
        AF = o.get("afirst", 0)
        self(f"s_memrealtime s[{T0+14}:{T0+15}]")
        self.px_pre(0)
        if AF:
            self.a_dma_addr()
        self(f"s_mov_b32 s{S_A2}, 81920\ns_lshl_b32 s{S_LA}, s3, 10\ns_mov_b32 s{S_HM}, 0")
        self(f"s_mov_b32 s{SX+2}, {2048*1280}\ns_mov_b32 s{SX+3}, 0x20000\ns_mov_b32 s{SA+2}, {640*3840}\ns_mov_b32 s{SA+3}, 0x20000")
        self("v_mul_u32_u24 v4, 43, v0\nv_lshrrev_b32 v4, 8, v4\nv_mul_u32_u24 v5, 6, v4\nv_sub_u32 v5, v0, v5")
        self("v_lshrrev_b32 v6, 1, v5\nv_and_b32 v5, 1, v5\nv_mul_u32_u24 v6, 1280, v6\nv_mul_u32_u24 v5, 156, v5")
        self("v_and_b32 v7, 4, v4\nv_mad_u32_u24 v4, v7, 15, v4")
        self("v_mul_u32_u24 v4, 3840, v4\nv_add3_u32 v4, v4, v5, v6")
        self(f"v_cmp_gt_u32 vcc, 48, v0\nv_mov_b32 v5, {OOB}")
        self(f"s_add_u32 s{S_PQ}, s3, 0\ns_lshl_b32 s{S_PQ}, s{S_PQ}, 5\ns_add_u32 s{S_PQ}, s{S_PQ}, s{S_MT}\ns_mul_i32 s{S_PQ}, s{S_PQ}, {4*3840}")
        self(f"s_mul_i32 s{T0+4}, s{S_C}, 160\ns_add_u32 s{S_PQ}, s{S_PQ}, s{T0+4}")
        self("v_cndmask_b32 v17, v5, v4, vcc")
        self("s_waitcnt lgkmcnt(0)")
        self(f"s_mov_b64 s[{SX}:{SX+1}], s[{P_X}:{P_X+1}]\ns_mov_b64 s[{SA}:{SA+1}], s[{P_QKV}:{P_QKV+1}]")
        self.ts(1)

        BN = o.get("hbn", 1)
        bslot = lambda s: [3, 0, 1, 3][s] if s < 4 else s % 4
        bfree = lambda s: {3: 0, 4: 1, 5: 2, 6: max(BN + 1, 2)}.get(s, s - 4)
        def dmaB(s):
            fl = " nt" if s < o.get("hnt", 20) else ""
            return [(f"s_add_u32 m0, s{S_LB}, {lit(BB + bslot(s)*24576 + j*1024)}",
                     f"buffer_load_dwordx4 v{13+j}, {srd(SB)}, s{S_KB} offen{fl} lds" + (f"\ns_add_u32 s{S_KB}, s{S_KB}, 98304" if j == 2 else ""),
                     ("B", s), False) for j in range(3)]
        def A(S):
            return [(f"s_add_u32 m0, s{S_LA}, {lit(apos(S) + i*8192)}",
                     f"buffer_load_dwordx4 v12, {srd(SX)}, s{S_A2 if i else S_HM} offen{ant(S)} lds\ns_addk_i32 s{S_A2 if i else S_HM}, 128\ns_nop 0",
                     ("A", S), False) for i in range(2)]
        def PQ(cond):
            L = self.label()
            return [(None, f"{cond}\ns_cbranch_scc0 {L}\nbuffer_load_dword v34, v17, {srd(SA)}, s{S_PQ} offen nt\n{L}:", "p", True)]
        NP0 = o.get("np0", 3)
        px = [(None, l, "px", False) for l in self.px_load(VM())]
        assert PXI and not AF
        self.emit_ops(vm, px)
        self.emit_ops(vm, PQ(f"s_cmp_lt_u32 s3, {NP0}"))
        Lp = self.label()
        self.pack_params(0)
        self(f"s_lshl_b32 s{self.PK[1]}, s3, 12\ns_add_u32 s{self.PK[1]}, s{self.PK[1]}, {BB + 2*24576}")
        self(f"s_cmp_ge_u32 s3, 6\ns_cbranch_scc1 {Lp}")
        self.emit_ops(vm, [d[:3] + (True,) for d in self.pack_dma(0)])
        self(f"{Lp}:")
        self.mk_srd(SD, P_DBG, 256)
        L0 = self.label()
        self(f"s_cmp_lg_u32 s{S_ROW}, 0\ns_cbranch_scc1 {L0}")
        self(f"v_mov_b32 v4, s{T0+14}\nv_mov_b32 v5, s{T0+15}\nv_lshlrev_b32 v6, 20, v0")
        self(f"buffer_store_dwordx2 v[4:5], v6, {srd(SD)}, 0 offen sc1\n{L0}:"); vm.issue("p", True)
        if o.get("codepf", 1):
            self(f"s_getpc_b64 s[{T0+4}:{T0+5}]")
            self(f"s_lshl3_add_u32 s{T0+8}, s{S_MT}, s3\ns_lshl_b32 s{T0+8}, s{T0+8}, 9")
            self(f"v_and_b32 v4, 3, v0\nv_lshlrev_b32 v4, 7, v4\nv_add_u32 v4, s{T0+8}, v4")
            self(f"v_min_u32 v4, CODE_SPAN, v4")
            self(f"global_load_dword v35, v4, s[{T0+4}:{T0+5}]"); vm.issue("p")
        self.tstep("a")
        self.pack_dst(0)
        self(f"s_and_b32 s{T0+1}, s3, 3\ns_mul_i32 s{T0+1}, s{T0+1}, {8*3072}\ns_mul_i32 s{T0+2}, s{S_C}, 384\ns_add_u32 s{T0+1}, s{T0+1}, s{T0+2}")
        self(f"s_and_b32 s{T0+2}, s3, 4")
        for j in range(3):
            self.div24(j, 4, 5)
            self(f"v_and_b32 v6, 2, v4\nv_or_b32 v6, s{T0+2}, v6\nv_xor_b32 v5, v5, v6")
            self(f"v_mul_u32_u24 v4, 3072, v4\nv_lshl_add_u32 v4, v5, 4, v4\nv_add_u32 v{13+j}, s{T0+1}, v4")
        self(f"s_mov_b32 s{S_KB}, 0\ns_mul_i32 s{S_LB}, s3, 3072")
        self(f"s_mov_b32 s{SB+2}, {640*3072}\ns_mov_b32 s{SB+3}, 0x20000\ns_cmp_lt_u32 s3, 4")
        self(f"s_cselect_b64 s[{SB}:{SB+1}], s[{P_WG}:{P_WG+1}], s[{P_WU}:{P_WU+1}]")
        if not AF:
            self.a_dma_addr()
            self("s_barrier")
            self.emit_ops(vm, A(0))
        self.emit_ops(vm, dmaB(0))
        self.tstep("e")
        self.misc_pre()
        self.pack_tr_addr()
        self.a_addr(0)
        self("v_bfe_u32 v4, v0, 4, 1\nv_lshrrev_b32 v5, 5, v0\nv_bfe_u32 v6, v0, 2, 2")
        self(f"v_lshl_add_u32 v5, v5, 3, v6\nv_mul_u32_u24 v5, 384, v5\nv_mul_u32_u24 v7, 12288, v4\nv_add_u32 v5, v5, v7\nv_add_u32 v5, {BB}, v5")
        self("v_and_b32 v7, 1, v0\nv_lshl_add_u32 v5, v7, 3, v5")
        self("v_and_b32 v6, 2, v6\nv_lshl_or_b32 v6, v4, 2, v6\nv_bfe_u32 v7, v0, 1, 1")
        self(f"s_and_b32 s{T0+1}, s3, 3\ns_mul_i32 s{T0+1}, s{T0+1}, 6\nv_add_u32 v7, s{T0+1}, v7")
        for n in range(3):
            self(f"v_add_u32 v4, {2*n}, v7\nv_xor_b32 v4, v4, v6\nv_lshl_add_u32 v{20+n}, v4, 4, v5\nv_add_u32 v{23+n}, 49152, v{20+n}")
        if o.get("hstpre", 1):
            self.stats(vm, 0)
        self.tstep("b")
        self("s_barrier")
        pre = dmaB(1) + A(1)
        npre0 = o.get("hpre", 4)
        self.emit_ops(vm, pre[:npre0])
        ops = [(-9, d) for d in pre[npre0:]]
        nb = NP0
        PKS = -9
        lead = o.get("alead", 1)
        nextA = 2
        for b_ in range(2, 20):
            if b_ % 2 == 1 or b_ == 2:
                pass
            ops += [(bfree(b_), d) for d in dmaB(b_)]
            if b_ % 2 == 0:
                while nextA <= min(9, b_ // 2 + lead):
                    ops += [(2 * (nextA - 4) + 1, d) for d in A(nextA)]
                    nextA += 1
                if NP0 < 5 and b_ == o.get("pqb", 8):
                    ops += [(-9, d) for d in PQ(f"s_sub_u32 s{T0+1}, s3, {NP0}\ns_nop 0\ns_cmp_lt_u32 s{T0+1}, {5 - NP0}")]
                if b_ == o.get("hpxb", 4) and not PXI:
                    ops += [(-9, d) for d in px]
                if b_ == 6:
                    ops += [(-9, (None, self.nonce_load(), "nonce", False))]

        def reads(s, Y):
            S = s >> 1
            rd = []
            for sub in range(2):
                for m in range(2):
                    r = Y + (sub * 2 + m) * 4
                    rd.append(f"ds_read_b128 v[{r}:{r+3}], v{8 + (s&1)*2 + sub} offset:{apos(S) + m*4096}")
                for n in range(3):
                    r = Y + 16 + (sub * 3 + n) * 4
                    b = 20 + n + (3 if bslot(s) >= 2 else 0)
                    of = (bslot(s) % 2) * 24576 + sub * 6144
                    rd.append(f"ds_read_b64_tr_b16 v[{r}:{r+1}], v{b} offset:{of}")
                    rd.append(f"ds_read_b64_tr_b16 v[{r+2}:{r+3}], v{b} offset:{of+1536}")
            return rd
        def need(s):
            return lambda t: t == ("B", s) or t == ("A", s >> 1)
        self.ts(2)
        n = vm.wait(need(0))
        self(f"s_waitcnt vmcnt({n})\ns_barrier")
        self.ts(3); self.tstep("f")
        for r in reads(0, 80):
            self(r)
        self.emit_ops(vm, self.sched(ops, -1, o.get("hpost", 2)))
        self("s_waitcnt lgkmcnt(0)")
        self.align8()
        def csreg(n_, r):
            if n_ < 2: return [80, 96][n_] + r
            return (112 + r) if r < 8 else (r)
        ST = o.get("hst", 4)
        CK = o.get("hck", 15)
        EF = o.get("hef", 8)
        ST = -8 if o.get("hstpre", 1) else o.get("hst", 1)
        STS = o.get("hsts", 2) if ST < 0 else ST + 2
        wq = []
        for s in range(20):
            X = 80 + (s & 1) * 40; Y = 80 + ((s + 1) & 1) * 40
            extra = []
            also = {ST: ("px",), PKS: ("pk",), EF: ("early", "nonce"), CK: ("poll",), 18: ("cs",)}.get(s, ())
            p0 = need(s + 1)
            assert not any(p0(d[2]) or d[2] in also for _, d in ops), s
            n = vm.wait(lambda t: p0(t) or t in also)
            self(f"s_waitcnt vmcnt({n})" if n is not None else "s_nop 0")
            if s == CK:
                self.check_spin(26, 35)
            if s == EF:
                self.nonce_get()
            self("s_barrier")
            if s in (CK, EF):
                self.align8()
            self.tstep(s)
            fill = []
            extra2 = []
            if s in (ST, ST + 1):
                comp, st = self.stats_parts(0)
                ch = self.chunks(comp, 22)
                extra2 = ch[:11] if s == ST else ch[11:]
            if s == CK:
                for p in range(2):
                    fill.append(f"buffer_load_dwordx4 v[{56+4*p}:{59+4*p}], v30, {srd(SW)}, s{T0+2} offen offset:{16*p} sc1"); vm.issue("cs")
                for m in range(2):
                    fill.append(f"buffer_load_dwordx2 v[{26+2*m}:{27+2*m}], v31, {srd(SW)}, s{T0+5} offen offset:{m*256} sc1"); vm.issue("cs")
            fill += self.fill_ops(vm, self.sched(ops, s, o.get("hrate", 6)))
            if s == STS:
                for l in self.stats_parts(0)[1]:
                    fill.append(l); vm.issue("early")
            if s == BN:
                extra += self.pack_tr(36)
            PS0, PSN = o.get("hps", 3), o.get("hpsn", 2)
            if PS0 <= s < PS0 + 4 // PSN:
                for l in self.pack_stores(VM(), 36)[PSN * (s - PS0):PSN * (s - PS0 + 1)]:
                    fill.append(l); vm.issue("early")
            if s == EF:
                fill += self.early_flag(); vm.issue("ef")
            if s == 10:
                extra += self.p2_params()
            if s == 11:
                extra += self.check_addr(35)
            if s == CK - 2:
                fill.append(self.check_issue(26, 35)); vm.issue("poll", True)
            if s == 12:
                extra += [f"s_lshl_b32 s{T0+1}, s3, 8\nv_and_b32 v4, 31, v0", f"v_add_u32 v18, s{T0+1}, v3\nv_lshlrev_b32 v31, 3, v4",
                          f"s_mul_i32 s{T0+2}, s{S_C}, {8*1536}", f"s_add_u32 s{T0+2}, s{T0+2}, {CS}",
                          f"s_cmp_lt_u32 s3, 6\nv_lshlrev_b32 v30, 3, v18\ns_cselect_b32 s{T0+2}, s{T0+2}, {OOB}",
                          f"s_lshr_b32 s{T0+5}, s3, 2\ns_lshl1_add_u32 s{T0+5}, s{S_MT}, s{T0+5}", f"v_add_u32 v18, {CSL}, v18",
                          f"s_lshl_b32 s{T0+5}, s{T0+5}, 9\ns_nop 0", f"s_add_u32 s{T0+5}, s{T0+5}, {STATS}",
                          f"s_lshl_b32 s{S_LW}, s3, 2\ns_nop 0", f"s_lshr_b32 s{S_LW}, 0x76054132, s{S_LW}", f"s_and_b32 s{S_LW}, s{S_LW}, 7\ns_nop 0",
                          f"s_mul_i32 s{S_LW}, s{S_LW}, 20480"]
            if s == 13:
                extra += [f"s_and_b32 s{T0+6}, s3, 3\nv_lshrrev_b32 v5, 5, v0", f"s_mul_i32 s{T0+7}, s{T0+6}, 192", f"s_add_u32 s{T0+7}, s{T0+7}, {CSL}",
                          f"v_lshl_add_u32 v17, v5, 4, s{T0+7}",
                          "v_bfe_u32 v6, v0, 4, 1", "v_and_b32 v7, 15, v0\nv_lshlrev_b32 v6, 10, v6", "v_lshl_add_u32 v6, v5, 8, v6", "v_lshl_add_u32 v16, v7, 4, v6",
                          f"s_lshr_b32 s{T0+7}, s3, 2\ns_lshl1_add_u32 s{T0+7}, s{S_MT}, s{T0+7}", f"s_mul_i32 s{T0+7}, s{T0+7}, {68*4096}",
                          f"s_mul_i32 s{T0+8}, s{S_C}, {6*4096}", f"s_add_u32 s{T0+7}, s{T0+7}, s{T0+8}\ns_mul_i32 s{T0+6}, s{T0+6}, 3"]
            if s == 14:
                for n_ in range(3):
                    extra += [f"s_add_u32 s{T0+8}, s{T0+6}, {n_}\ns_lshr_b32 s{T0+9}, s{T0+8}, 1", f"s_lshl_b32 s{T0+9}, s{T0+9}, 12\ns_and_b32 s{T0+8}, s{T0+8}, 1",
                              f"s_lshl_b32 s{T0+8}, s{T0+8}, 9\ns_add_u32 s{T0+9}, s{T0+9}, s{T0+8}", f"s_add_u32 s{T0+10+n_}, s{T0+9}, s{T0+7}\ns_nop 0"]
            if s == 16:
                wq += self.w2_pair(2, 0, 3, 1)
            if s == 17:
                wq += self.w2_pair(1, 2, 4, 3) + self.w2_reg(0)
            if s == 19:
                wq += self.w2_reg(1)
            fill += self.take(vm, wq, o.get("hwr", 5))
            if s == 18:
                extra += ["v_add_f32 v56, v56, v57\nv_add_f32 v58, v58, v59", "v_add_f32 v60, v60, v61\nv_add_f32 v62, v62, v63",
                          "v_add_f32 v56, v56, v58\nv_add_f32 v60, v60, v62", "v_add_f32 v56, v56, v60\nv_mul_f32 v32, v27, v27",
                          f"ds_write_b32 v18, v56", "v_mul_f32 v34, v29, v29\nv_mov_b32 v33, v32",
                          "v_mov_b32 v35, v34\nv_mov_b32 v27, v26", "v_mov_b32 v29, v28\ns_nop 0"]
            if s < 19:
                rd = reads(s + 1, Y)
            else:
                rd = []
                for n_ in range(3):
                    for mat in range(2):
                        for a_ in range(2):
                            r = csreg(n_, (mat * 2 + a_) * 4)
                            rd.append(f"ds_read_b128 v[{r}:{r+3}], v17 offset:{n_*64 + a_*32 + mat*768}")
            mf = []
            for sub in range(2):
                for n_ in range(3):
                    for m in range(2):
                        c = 160 + (m * 3 + n_) * 16
                        cin = "0" if (s == 0 and sub == 0) else f"v[{c}:{c+15}]"
                        b = X + 16 + (sub * 3 + n_) * 4; a_ = X + (sub * 2 + m) * 4
                        mf.append(f"v_mfma_f32_32x32x16_bf16 v[{c}:{c+15}], v[{b}:{b+3}], v[{a_}:{a_+3}], {cin}")
            lists = [(rd, 0.0, 0.8)]
            if fill: lists.append((fill, 0.0, 1.0))
            if extra: lists.append((extra, 0.0, 0.9))
            if extra2: lists.append((extra2, 0.0, 1.0))
            self.interleave(mf, lists)
            self("s_waitcnt lgkmcnt(0)\ns_nop 0")
            assert s < 15 or not ops
        self.ts(4)
        self("s_nop 7\ns_nop 0")
        for n_ in range(3):
            for m in range(2):
                c = 160 + (m * 3 + n_) * 16
                nm = 26 + 2 * m
                for r in range(0, 16, 2):
                    k = csreg(n_, r)
                    self(f"v_pk_fma_f32 v[{c+r}:{c+r+1}], v[{nm}:{nm+1}], v[{k}:{k+1}], v[{c+r}:{c+r+1}]")
                for r in range(0, 8, 2):
                    self(f"v_pk_mul_f32 v[{c+r}:{c+r+1}], v[{c+r}:{c+r+1}], v[{32+2*m}:{33+2*m}]")
                for r in range(0, 8, 2):
                    self(f"v_pk_mul_f32 v[{c+r}:{c+r+1}], v[{c+r}:{c+r+1}], v[{c+8+r}:{c+9+r}]")
                for r in range(4):
                    self(f"v_cvt_pk_bf16_f32 v{c+8+r}, v{c+2*r}, v{c+2*r+1}")
                self(f"buffer_store_dwordx4 v[{c+8}:{c+11}], v16, {srd(SW)}, s{T0+10+n_} offen offset:{m*2048} sc1"); vm.issue("st")
        self.ts(5)
        assert all(not x[0] for x in wq)
        wq += self.w2_reg(2)
        npre = o.get("npre", 5)
        if npre:
            self("s_barrier")
        self.emit_items(self.take(vm, wq, npre))
        self.publish(vm)
        self.emit_items(self.take(vm, wq))
        self("s_branch P2_START")

    QS = 520
    QCSL = 75008
    QZ = 76800
    QST = 120832
    QAB = 65536
    QSCR = 122880

    def q_dmaA(self, S, wm):
        AB = self.QAB
        fl = " nt" if S < self.o.get("ant", 0) else ""
        out = [(f"s_add_u32 m0, s{S_LA}, {lit(AB + (S%3)*18432 + 2048 + i*8192 - S*128)}",
                f"buffer_load_dwordx4 v12, {srd(SX)}, {'s%d' % S_A2 if i else '0'} offen offset:{S*128}{fl} lds",
                ("A", S), False) for i in range(2)]
        if wm != 0:
            L = self.label()
            out.insert(0, (f"s_add_u32 m0, s{S_LA}, {lit(AB + (S%3)*18432 - 4096 - S*128)}",
                        f"s_mov_b64 exec, s[{S_HM}:{S_HM+1}]\ns_cbranch_execz {L}\nbuffer_load_dwordx4 v15, {srd(SX)}, 0 offen offset:{S*128}{fl} lds\n{L}:\ns_mov_b64 exec, -1\ns_nop 0",
                        ("A", S), True))
        return out

    def q_dmaB(self, s):
        fl = " nt" if s < self.o.get("qnt", 20) else ""
        return [(f"s_add_u32 m0, s{S_LB}, {lit((s%4)*16384 + j*1024)}",
                 f"buffer_load_dwordx4 v{13+j}, {srd(SB)}, s{S_KB} offen{fl} lds" + (f"\ns_add_u32 s{S_KB}, s{S_KB}, {32*3840}" if j == 1 else ""),
                 ("B", s), False) for j in range(2)]

    def q_path(self):
        vm = VM()
        AB, SCR = self.QAB, self.QSCR
        GS, GL = T0 + 14, T0 + 15
        self("Q_START:")
        self(f"s_lshr_b32 s{GS}, s{S_MT}, 1\ns_lshl3_add_u32 s{GS}, s3, s{GS}\ns_mul_i32 s{GS}, s{GS}, {8*3072}\ns_mul_i32 s{T0+2}, s{S_C}, 384\ns_add_u32 s{GS}, s{GS}, s{T0+2}")
        for j in range(3):
            self.div24(j, 4, 5)
            self(f"v_mul_u32_u24 v4, 3072, v4\nv_lshl_add_u32 v{23+j}, v5, 4, v4")
        self(f"s_mul_i32 s{GL}, s3, 3072\ns_add_u32 s{GL}, s{GL}, {SCR}")
        self(f"s_mov_b32 s{SA+2}, {640*3072}\ns_mov_b32 s{SA+3}, 0x20000\ns_mov_b32 s{SX+2}, {2048*1280}\ns_mov_b32 s{SX+3}, 0x20000")
        o = self.o
        PXI, AF, NG0 = o.get("pxi", 1), o.get("afirst", 0), o.get("ng0", 10)
        def apre():
            self.a_dma_addr()
            self("v_subrev_u32 v15, 61440, v12")
            self(f"s_mov_b32 s{S_A2}, 81920\ns_lshl_b32 s{S_LA}, s3, 10")
            self(f"s_mov_b64 s[{S_HM}:{S_HM+1}], 0\ns_cmp_eq_u32 s3, 5\ns_cselect_b64 s[{S_HM}:{S_HM+1}], -1, s[{S_HM}:{S_HM+1}]")
            self(f"s_cmp_eq_u32 s3, 4\ns_cselect_b32 s{S_HM}, 0xffffff00, s{S_HM}\ns_cselect_b32 s{S_HM+1}, -1, s{S_HM+1}")
        self.px_pre(1)
        if AF: apre()
        self(f"s_bitcmp0_b32 s{S_MT}, 0\ns_waitcnt lgkmcnt(0)")
        self(f"s_cselect_b64 s[{SA}:{SA+1}], s[{P_WG}:{P_WG+1}], s[{P_WU}:{P_WU+1}]\ns_mov_b64 s[{SX}:{SX+1}], s[{P_X}:{P_X+1}]")
        self.ts(1)
        assert PXI and not AF
        for l in self.px_load(vm): self(l)
        L = self.label()
        if NG0 == 4:
            self(f"s_cmp_ge_u32 s3, 4\ns_cbranch_scc1 {L}")
        for j in range(3):
            self(f"s_add_u32 m0, s{GL}, {j*1024}\ns_nop 0")
            self(f"buffer_load_dwordx4 v{23+j}, {srd(SA)}, s{GS} offen nt lds"); vm.issue("gu", NG0 == 4)
        self(f"{L}:")
        if NG0 == 10:
            L = self.label()
            self(f"s_and_b32 s{T0+1}, s3, 6\ns_cmp_lg_u32 s{T0+1}, 4\ns_cbranch_scc1 {L}\ns_add_u32 s{GS}, s{GS}, {4*64*3072}")
            for j in range(3):
                self(f"s_add_u32 m0, s{GL}, {4*3072 + j*1024}\ns_nop 0")
                self(f"buffer_load_dwordx4 v{23+j}, {srd(SA)}, s{GS} offen nt lds"); vm.issue("gu", True)
            self(f"{L}:")
        self.tstep("a")
        self.mk_srd(SB, P_QKV, 640 * 3840)
        self(f"s_lshl_b32 s{T0+1}, s3, 7\ns_mul_i32 s{T0+2}, s{S_C}, 160")
        for j in range(2):
            self(f"v_add_u32 v5, s{T0+1}, v0")
            if j: self("v_add_u32 v5, 64, v5")
            self("v_mul_u32_u24 v4, 2185, v5\nv_lshrrev_b32 v4, 16, v4\nv_mul_u32_u24 v6, 30, v4\nv_sub_u32 v5, v5, v6")
            self("v_cmp_gt_u32 vcc, 32, v4")
            self("v_and_b32 v6, 24, v4\nv_bfe_u32 v7, v4, 1, 2\nv_add_u32 v6, v6, v7\nv_and_b32 v7, 1, v4\nv_lshl_add_u32 v6, v7, 2, v6")
            self("v_mul_u32_u24 v6, 3840, v6\nv_lshl_add_u32 v6, v5, 4, v6")
            self("v_mul_u32_u24 v7, 26, v5\nv_lshrrev_b32 v7, 8, v7\nv_mul_u32_u24 v7, 1120, v7")
            self(f"v_add3_u32 v6, v6, v7, s{T0+2}\nv_mov_b32 v7, {OOB}\nv_cndmask_b32 v{13+j}, v7, v6, vcc")
        self(f"s_mov_b32 s{S_KB}, 0\ns_lshl_b32 s{S_LB}, s3, 11")
        if not AF:
            apre()
            self("s_barrier")
            self.emit_ops(vm, self.q_dmaA(0, 1))
        self.emit_ops(vm, self.q_dmaB(0))
        self.tstep("e")
        self.misc_pre()
        self.mk_srd(SD, P_DBG, 256)
        for r in range(4):
            self(f"v_mov_b32 v{76+r}, 0x3f803f80")
        self(f"v_lshrrev_b32 v4, 3, v0\nv_min_u32 v4, 2, v4\nv_mul_u32_u24 v4, 18432, v4\nv_and_b32 v5, 7, v0\nv_lshl_add_u32 v4, v5, 4, v4\nv_add_u32 v4, {AB}, v4")
        self("ds_write_b128 v4, v[76:79]")
        self.a_addr(AB)
        self("v_bfe_u32 v4, v0, 4, 1\nv_lshrrev_b32 v5, 5, v0\nv_bfe_u32 v6, v0, 2, 2\nv_and_b32 v7, 3, v0")
        self("v_lshlrev_b32 v7, 3, v7\nv_lshl_add_u32 v7, v4, 5, v7")
        self("v_lshlrev_b32 v4, 3, v5\nv_lshl_add_u32 v5, v6, 1, v4\nv_add_u32 v4, v4, v6")
        self(f"s_and_b32 s{T0+1}, s3, 3\ns_lshl_b32 s{T0+1}, s{T0+1}, 7\ns_lshl_b32 s{T0+2}, s3, 6\ns_add_u32 s{T0+2}, s{T0+2}, {SCR}")
        self(f"v_mul_u32_u24 v5, 480, v5\nv_add3_u32 v20, v5, v7, s{T0+1}")
        self(f"v_mul_u32_u24 v4, 384, v4\nv_add3_u32 v21, v4, v7, s{T0+2}")
        self(f"s_and_b32 s{T0+2}, s{S_MT}, 1\ns_lshl1_add_u32 s{T0+1}, s{S_C}, s{T0+2}\ns_mul_i32 s{T0+1}, s{T0+1}, {192*32}")
        self(f"s_lshr_b32 s{T0+2}, s{S_MT}, 1\ns_lshl2_add_u32 s{T0+1}, s{T0+2}, s{T0+1}")
        self(f"s_lshl_b32 s{T0+2}, s3, 10\ns_add_u32 s{T0+1}, s{T0+1}, s{T0+2}\ns_add_u32 s{T0+1}, s{T0+1}, {CS}")
        self(f"s_cmp_lt_u32 s3, 6\ns_cselect_b32 s{T0+1}, s{T0+1}, {OOB}")
        self("v_lshrrev_b32 v22, 5, v0\nv_lshlrev_b32 v4, 5, v0\nv_lshl_add_u32 v22, v22, 26, v4")
        self(f"s_xor_b32 s{S_LW}, s3, 4\ns_mul_i32 s{S_LW}, s{S_LW}, 20480")
        self.stats(vm, 1)
        self.tstep("b")
        assert NG0 == 10
        n = vm.wait(lambda t: t == "gu")
        self(f"s_waitcnt vmcnt({n})\ns_barrier")
        self.tstep("c")
        for sub in range(5):
            r = 36 + sub * 4
            self(f"ds_read_b64_tr_b16 v[{r}:{r+1}], v21 offset:{sub*6144}\nds_read_b64_tr_b16 v[{r+2}:{r+3}], v21 offset:{sub*6144+1536}")
        self("s_cmp_ge_u32 s3, 4\ns_cbranch_scc1 Q_WM1")
        vm1 = copy.deepcopy(vm)
        self.q_main(vm, 0)
        self("s_branch Q_ATT")
        self("Q_WM1:")
        self.q_main(vm1, 1)
        self("Q_ATT:")
        self.attention()

    def q_main(self, vm, wm):
        o = self.o
        QS, CSL, QZ, QST, AB = self.QS, self.QCSL, self.QZ, self.QST, self.QAB
        GS, GL = T0 + 14, T0 + 15
        NM = 3 if wm == 0 else 2
        toff = [0, 2048, 6144] if wm == 0 else [2048, 6144]
        dmaB = self.q_dmaB
        dmaA = lambda S: self.q_dmaA(S, wm)
        pre = dmaB(1) + dmaA(1)
        npre0 = o.get("qpre", 3) + wm
        self.emit_ops(vm, pre[:npre0])
        self("s_waitcnt lgkmcnt(0)")
        for sub in range(5):
            r = 36 + sub * 4
            self(f"v_mfma_f32_32x32x16_bf16 v[56:71], v[76:79], v[{r}:{r+3}], {'0' if sub == 0 else 'v[56:71]'}")
        ops = [(-9, d) for d in pre[npre0:]]
        PD = -9
        BN = -9
        CSs = o.get("qcs", 6)
        ST = o.get("qst", 3)
        AT = o.get("qat", 7)
        CK = o.get("qck", 15)
        PXI, NG0 = o.get("pxi", 1), o.get("ng0", 10)
        ST = -8
        CSs = -9
        STS = o.get("qsts", 3)
        wq = []
        px = [(None, l, "px", False) for l in self.px_load(VM())]
        gu1 = [(f"s_add_u32 m0, s{GL}, {lit(j*1024)}", f"buffer_load_dwordx4 v{23+j}, {srd(SA)}, s{GS} offen nt lds", "gu", False) for j in range(3)]
        gu2 = []
        for j in range(3):
            L = self.label()
            gu2.append(((f"s_add_u32 s{GS}, s{GS}, {4*64*3072}\n" if j == 0 else "") + f"s_add_u32 m0, s{GL}, {lit(4*3072 + j*1024)}",
                        f"s_cmp_ge_u32 s3, 6\ns_cbranch_scc1 {L}\nbuffer_load_dwordx4 v{23+j}, {srd(SA)}, s{GS} offen nt lds\n{L}:", "gu", True))
        if wm == 1 and NG0 == 4:
            ops += [(-9, d) for d in gu1]
        for b_ in range(2, 20):
            ops += [(b_ - 4, d) for d in dmaB(b_)]
            if b_ == PD:
                ops += [(-9, d) for d in self.pack_dma(0)]
            if b_ % 2 == 1 and b_ // 2 + 1 < 10:
                S_ = b_ // 2 + 1
                ops += [(2 * (S_ - 3) + 1, d) for d in dmaA(S_)]
                if b_ == 7:
                    ops += [(-9, (None, self.nonce_load(), "nonce", False))]
                if b_ == 3:
                    if not PXI:
                        ops += [(-9, d) for d in px]
                if b_ == 5 and wm == 1:
                    if NG0 != 10:
                        ops += [(-9, d) for d in gu2]
        def reads(s, Y):
            S = s >> 1
            rd = []
            for sub in range(2):
                for m in range(NM):
                    r = Y + (sub * 3 + m) * 4
                    rd.append(f"ds_read_b128 v[{r}:{r+3}], v{8 + (s&1)*2 + sub} offset:{(S%3)*18432 + toff[m]}")
                for n in range(2):
                    r = Y + 24 + (sub * 2 + n) * 4
                    of = (s % 4) * 16384 + sub * 7680 + n * 64
                    rd.append(f"ds_read_b64_tr_b16 v[{r}:{r+1}], v20 offset:{of}")
                    rd.append(f"ds_read_b64_tr_b16 v[{r+2}:{r+3}], v20 offset:{of+480}")
            return rd
        def need(s):
            return lambda t: t == ("B", s) or t == ("A", s >> 1)
        self.ts(2)
        n = vm.wait(need(0))
        self(f"s_waitcnt vmcnt({n}) lgkmcnt(0)\ns_barrier")
        self.ts(3); self.tstep("f")
        for r in reads(0, 80):
            self(r)
        self.emit_ops(vm, self.sched(ops, -1, o.get("qpost", 2)))
        self("s_waitcnt lgkmcnt(0)")
        self.align8()
        sc = 20 ** -0.5 * 1.4426950408889634
        for s in range(20):
            X = 80 + (s & 1) * 40; Y = 80 + ((s + 1) & 1) * 40
            also = ()
            for k_, t_ in ((ST, "px"), (BN, "pk"), (CSs, "gu"), (AT, "early"), (AT, "nonce"), (CK, "poll"), (CK + 2, "stat")):
                if s == k_: also += (t_,)
            p0 = need(s + 1)
            assert not any(p0(d[2]) or d[2] in also for _, d in ops), (s, wm)
            n = vm.wait(lambda t: p0(t) or t in also)
            self(f"s_waitcnt vmcnt({n})" if n is not None else "s_nop 0")
            if s == CK:
                self.check_spin(26, 35)
            if s == AT:
                self.nonce_get()
            self("s_barrier")
            if s in (CK, AT):
                self.align8()
            self.tstep(s)
            fill = []; extra = []; extra2 = []; mfx = []
            if s in (ST, ST + 1):
                comp, st = self.stats_parts(1)
                ch = self.chunks(comp, 16)
                extra2 = ch[:8] if s == ST else ch[8:]
            if s == ST + 2:
                for l in self.stats_parts(1)[1]:
                    fill.append(l); vm.issue("early")
            if s == BN - 1:
                assert not any(d[2] == "pk" for _, d in ops)
                extra += self.scc_chunks(self.capture(lambda: self.pack_dst(0)), 4)
            if s == BN:
                extra += self.pack_tr(36)
            if s == CSs:
                for sub in range(5):
                    r = 36 + sub * 4
                    extra += [f"ds_read_b64_tr_b16 v[{r}:{r+1}], v21 offset:{sub*6144}", f"ds_read_b64_tr_b16 v[{r+2}:{r+3}], v21 offset:{sub*6144+1536}"]
            if s == CSs + 1:
                for sub in range(5):
                    r = 36 + sub * 4
                    mfx.append(f"v_mfma_f32_32x32x16_bf16 v[56:71], v[76:79], v[{r}:{r+3}], {'0' if sub == 0 else 'v[56:71]'}")
            if s == CSs + 2:
                fill.append(f"buffer_store_dword v56, v22, {srd(SW)}, s{T0+1} offen sc1"); vm.issue("early")
            if s == CK:
                fill.append(f"buffer_load_dwordx2 v[30:31], v6, {srd(SW)}, s{T0+5} offen sc1"); vm.issue("stat")
            fill += self.fill_ops(vm, self.sched(ops, s, o.get("qrate", 5) + wm * o.get("qrate1", 1)))
            if s == STS:
                fill += [self.stats_parts(1)[1][0], f"buffer_store_dword v56, v22, {srd(SW)}, s{T0+1} offen sc1"]; vm.issue("early"); vm.issue("early")
            if s in (BN + 1, BN + 2):
                k_ = 2 * (s - BN - 1)
                fill += self.pack_stores(VM(), 36)[k_:k_ + 2]; vm.issue("early"); vm.issue("early")
            if s == AT:
                fill += self.early_flag(); vm.issue("ef")
            if s == 9:
                extra += self.p2_params()
            if s == 10:
                extra += self.check_addr(35)
            if s == 11:
                zq = QZ - 16 * QS
                extra += ["v_and_b32 v4, 15, v0\nv_lshrrev_b32 v5, 4, v0", f"s_mul_i32 s{T0+1}, s3, {16*QS}", f"v_mul_u32_u24 v6, {QS}, v4",
                          f"v_add_u32 v7, s{T0+1}, v6\nv_add_u32 v34, v7, v6", "v_lshl_add_u32 v25, v5, 3, v34", "v_lshl_add_u32 v6, v5, 3, v7",
                          f"v_mov_b32 v4, {zq}",
                          f"s_mov_b32 vcc_lo, 0x55555555\ns_mov_b32 vcc_hi, 0x55555555\nv_cndmask_b32 v21, v4, v6, vcc\nv_cndmask_b32 v23, v6, v4, vcc",
                          f"s_mov_b64 vcc, 0x5555\nv_cndmask_b32 v22, v4, v7, vcc\ns_nop 0", f"s_mov_b64 vcc, 0xaaaa\nv_cndmask_b32 v24, v4, v7, vcc\ns_nop 0"]
            if s == 12:
                extra += ["v_lshrrev_b32 v6, 2, v0\nv_and_b32 v7, 3, v0", f"v_mul_u32_u24 v6, {2*QS}, v6", f"v_add_u32 v6, s{T0+1}, v6\ns_nop 0",
                          "v_lshl_add_u32 v1, v7, 3, v6", "v_mad_u32_u24 v18, v7, 40, v6",
                          f"s_and_b32 s{T0+6}, s3, 3\nv_lshrrev_b32 v5, 5, v0", f"s_lshl_b32 s{T0+7}, s{T0+6}, 8\nv_and_b32 v4, 15, v0", f"s_add_u32 s{T0+7}, s{T0+7}, {CSL}",
                          f"v_lshl_add_u32 v17, v5, 4, s{T0+7}", "v_lshlrev_b32 v6, 8, v5\nv_lshlrev_b32 v4, 4, v4", "v_bfe_u32 v7, v0, 4, 1",
                          "v_lshl_add_u32 v7, v7, 26, v6", "v_add_u32 v16, v7, v4\ns_nop 0"]
            if s == 13:
                extra += [f"s_lshr_b32 s{T0+1}, s3, 2\ns_lshl1_add_u32 s{T0+1}, s{S_MT}, s{T0+1}", f"s_mul_i32 s{T0+1}, s{T0+1}, {68*4096}",
                          f"s_and_b32 s{T0+2}, s3, 3\ns_lshl_b32 s{T0+2}, s{T0+2}, 10", f"s_add_u32 s{T0+1}, s{T0+1}, s{T0+2}\ns_lshl_b32 s{T0+2}, s{S_C}, 13",
                          f"s_add_u32 s{T0+2}, s{T0+2}, s{T0+1}\ns_lshr_b32 s{T0+12}, s{S_C}, 1", f"s_add_u32 s{T0+2}, s{T0+2}, {48*4096}", f"s_add_u32 s{T0+3}, s{T0+2}, 4096",
                          f"s_lshl_b32 s{T0+12}, s{T0+12}, 12\ns_add_u32 s{T0+1}, s{T0+1}, s{T0+12}",
                          f"s_and_b32 s{T0+12}, s{S_C}, 1\ns_lshl_b32 s{T0+12}, s{T0+12}, 9", f"s_add_u32 s{T0+1}, s{T0+1}, s{T0+12}\ns_nop 0", f"s_add_u32 s{T0+1}, s{T0+1}, {64*4096}"]
            if s == CK - 2:
                fill.append(self.check_issue(26, 35)); vm.issue("poll", True)
            if s == CK - 1:
                extra += [f"s_lshl_b32 s{T0+5}, s3, 6\ns_lshl_b32 s{T0+4}, s{S_MT}, 7", f"v_add_u32 v4, s{T0+5}, v0\ns_sub_u32 s{T0+4}, s{T0+4}, 16",
                          "v_min_u32 v4, 143, v4", f"v_add_u32 v5, s{T0+4}, v4\nv_max_i32 v5, 0, v5",
                          f"v_lshlrev_b32 v6, 3, v5\nv_lshlrev_b32 v4, 3, v4", f"v_add_u32 v32, {QST}, v4", f"s_mov_b32 s{T0+5}, {STATS}",
                          f"s_cmp_lt_u32 s3, 3\ns_nop 0\ns_cselect_b32 s{T0+5}, s{T0+5}, {OOB}"]
            if s == 16:
                wq += self.w2_pair(6, 2, 7, 3) + self.w2_reg(0)
                extra += [f"s_or_b32 s{T0+4}, s{S_MT}, s3\ns_cmp_eq_u32 s{T0+4}, 0\ns_cselect_b32 s{T0+4}, 8, 0\nv_lshrrev_b32 v5, 4, v0",
                          "v_bfe_u32 v6, v0, 1, 3", f"v_add_u32 v7, 1, v6\nv_max_u32 v7, s{T0+4}, v7", f"v_add_u32 v6, 8, v6\nv_lshlrev_b32 v5, 2, v5",
                          "v_sub_u32 v6, v6, v7\nv_sub_u32 v5, v5, v7", f"v_mov_b32 v4, {f2u(-1e30)}"]
                for r in range(4):
                    extra += [f"v_add_u32 v7, {r}, v5\nv_cmp_ge_u32 vcc, v6, v7\ns_nop 1\ns_nop 0\nv_cndmask_b32_e64 v{12+r}, v4, 0, vcc"]
            if s == 17:
                assert CK + 2 <= 17
                if wm == 0:
                    L = self.label()
                    extra += [f"s_cmp_ge_u32 s3, 3\ns_cbranch_scc1 {L}\nds_write_b64 v32, v[30:31]\n{L}:"]
                extra += [f"s_and_b32 s{T0+6}, s3, 3\nv_and_b32 v4, 31, v0", f"v_mul_u32_u24 v6, {QS}, v4", f"s_lshl_b32 s{T0+6}, s{T0+6}, 7\nv_lshrrev_b32 v5, 5, v0",
                          f"v_lshlrev_b32 v5, 3, v5\nv_lshlrev_b32 v4, 3, v4", f"v_add3_u32 v35, v6, v5, s{T0+6}",
                          f"v_add_u32 v4, {QST}, v4", f"s_lshl_b32 s{T0+4}, s3, 7\nv_lshrrev_b32 v5, 4, v0", f"s_add_u32 s{T0+4}, s{T0+4}, {QST}",
                          "v_and_b32 v6, 15, v0\nv_and_b32 v7, 1, v0", f"v_lshl_add_u32 v6, v6, 3, s{T0+4}", f"v_lshl_add_u32 v7, v7, 3, s{T0+4}",
                          "v_lshl_add_u32 v7, v5, 6, v7"]
                for h in range(1, 4):
                    extra.append(f"v_cmp_eq_u32_e64 s[{T0+4+2*h}:{T0+5+2*h}], {h}, v5")
            if s == 18:
                rowoff = [0, 16, 48] if wm == 0 else [80, 112]
                for m in range(NM):
                    extra.append(f"ds_read_b32 v{26+m}, v4 offset:{rowoff[m]*8}")
                extra.append(f"ds_read_b32 v29, v6 offset:{16*8+4}")
                for r in range(4):
                    extra.append(f"ds_read_b32 v{30+r}, v7 offset:{4+16*r}")
            if s == 19:
                wq += self.w2_pair(4, 0, 5, 1) + self.w2_reg(1)
            fill += self.take(vm, wq, o.get("qwr", 4))
            def mfma(sub, n_, m):
                c = 160 + (m * 2 + n_) * 16
                cin = "0" if (s == 0 and sub == 0) else f"v[{c}:{c+15}]"
                b = X + 24 + (sub * 2 + n_) * 4; a_ = X + (sub * 3 + m) * 4
                return f"v_mfma_f32_32x32x16_bf16 v[{c}:{c+15}], v[{b}:{b+3}], v[{a_}:{a_+3}], {cin}"
            if s < 19:
                mf = mfx + [mfma(sub, n_, m) for sub in range(2) for n_ in range(2) for m in range(NM)]
                lists = [(reads(s + 1, Y), 0.0, 0.8)]
                if fill: lists.append((fill, 0.0, 1.0))
                if extra: lists.append((extra, 0.0, 0.9))
                if extra2: lists.append((extra2, 0.0, 0.9))
                self.interleave(mf, lists)
                self("s_waitcnt lgkmcnt(0)\ns_nop 0")
            else:
                mf = [mfma(sub, n_, m) for m in range(NM) for sub in range(2) for n_ in range(2)]
                extra = ["v_and_b32 v6, 1, v0\nv_mov_b32 v4, 0", "v_add_u32 v8, -1, v6\nv_sub_u32 v9, 0, v6",
                         f"v_add_u32 v5, {QZ}, v3", "ds_write_b32 v5, v4",
                         f"v_mul_f32 v29, {f2u(sc)}, v29", "v_mul_f32 v76, v29, v30\nv_mul_f32 v77, v29, v31", "v_mul_f32 v78, v29, v32\nv_mul_f32 v79, v29, v33",
                         "v_mov_b32 v10, v27\nv_mov_b32 v11, v27", "v_mov_b32 v27, v26\nv_mov_b32 v29, v28"]
                self.interleave(mf[:-4], [(fill, 0.0, 1.0), (extra, 0.0, 1.0)])
                if wm == 0:
                    self("s_nop 7\ns_mov_b32 exec_lo, 1\ns_mov_b32 exec_hi, 1\ns_nop 0")
                    for n_ in range(2):
                        for a_ in range(4):
                            c = 160 + n_ * 16 + a_ * 4
                            self(f"ds_write_b128 v17, v[{c}:{c+3}] offset:{n_*128 + a_*32}")
                    self("s_mov_b64 exec, -1\ns_nop 0")
                self(mf[-4]); self(mf[-3])
                self("s_waitcnt lgkmcnt(0)\ns_barrier")
                for n_ in range(2):
                    for a_ in range(4):
                        r = 80 + n_ * 16 + a_ * 4
                        self(f"ds_read_b128 v[{r}:{r+3}], v17 offset:{n_*128 + a_*32}")
                self(mf[-2]); self(mf[-1])
            assert s < 15 or not ops
        self.ts(4)
        wq += self.w2_reg(2)
        w2 = self.take(vm, wq, o.get("qwf", 4))
        self.q_rest = wq
        self("s_waitcnt lgkmcnt(0)\ns_nop 0")
        rowoff = [0, 16, 48] if wm == 0 else [80, 112]
        body = []
        for m in range(NM):
            pr = [26, 10, 28][m]
            for n_ in range(2):
                c = 160 + (m * 2 + n_) * 16
                for a_ in range(4):
                    for r in (4 * a_, 4 * a_ + 2):
                        body.append(f"v_pk_fma_f32 v[{c+r}:{c+r+1}], v[{pr}:{pr+1}], v[{80+n_*16+r}:{81+n_*16+r}], v[{c+r}:{c+r+1}]")
                for a_ in range(4):
                    body.append(f"v_cvt_pk_bf16_f32 v{c+4*a_}, v{c+4*a_}, v{c+4*a_+1}\nv_cvt_pk_bf16_f32 v{c+4*a_+1}, v{c+4*a_+2}, v{c+4*a_+3}")
                    body.append(f"ds_write_b64 v35, v[{c+4*a_}:{c+4*a_+1}] offset:{rowoff[m]*QS + n_*64 + a_*16}")
        if o.get("qw2fold", 1):
            self.interleave(body, [(w2, 0.0, 1.0)])
        else:
            for it in body + w2: self(it)

    def attention(self):
        QS = self.QS
        vm = VM()
        self("s_waitcnt lgkmcnt(0)\ns_barrier")
        self.ts(5)
        Qe, Qo, Ke, Ko, Vf, Vr = 160, 176, 192, 208, 224, 96
        Sx, Pf, O, R = 240, 80, 160, 176
        for h in range(4):
            self(f"ds_read_b64 v[{Qe+4*h}:{Qe+4*h+1}], v21 offset:{16*QS + 40*h}")
            self(f"ds_read_b64 v[{Qe+4*h+2}:{Qe+4*h+3}], v22 offset:{16*QS + 40*h + 32}")
            self(f"ds_read_b64 v[{Ke+4*h}:{Ke+4*h+1}], v25 offset:{160 + 40*h}")
            self(f"ds_read_b64 v[{Ke+4*h+2}:{Ke+4*h+3}], v34 offset:{160 + 40*h + 32}")
        for h in range(4):
            self(f"ds_read_b64 v[{Qo+4*h}:{Qo+4*h+1}], v23 offset:{16*QS + 40*h}")
            self(f"ds_read_b64 v[{Qo+4*h+2}:{Qo+4*h+3}], v24 offset:{16*QS + 40*h + 32}")
            self(f"ds_read_b64 v[{Ko+4*h}:{Ko+4*h+1}], v25 offset:{QS + 160 + 40*h}")
            self(f"ds_read_b64 v[{Ko+4*h+2}:{Ko+4*h+3}], v34 offset:{QS + 160 + 40*h + 32}")
        wq = self.q_rest
        na = self.o.get("qwa", 2)
        self.emit_items(self.take(vm, wq, na))
        self("s_waitcnt lgkmcnt(0)" if self.instr else "s_waitcnt lgkmcnt(15)")
        self.align8()
        for h in range(4):
            self(f"v_mfma_f32_16x16x32_bf16 v[{Sx+4*h}:{Sx+4*h+3}], v[{Ke+4*h}:{Ke+4*h+3}], v[{Qe+4*h}:{Qe+4*h+3}], v[12:15]")
        self("s_waitcnt lgkmcnt(0)\ns_nop 0")
        for h in range(4):
            self(f"v_mfma_f32_16x16x32_bf16 v[{Sx+4*h}:{Sx+4*h+3}], v[{Ko+4*h}:{Ko+4*h+3}], v[{Qo+4*h}:{Qo+4*h+3}], v[{Sx+4*h}:{Sx+4*h+3}]")
        for h in range(4):
            self(f"ds_read_b64_tr_b16 v[{Vf+4*h}:{Vf+4*h+1}], v1 offset:{320 + 40*h}")
            self(f"ds_read_b64_tr_b16 v[{Vf+4*h+2}:{Vf+4*h+3}], v1 offset:{QS + 320 + 40*h}")
        self(f"ds_read_b64_tr_b16 v[{Vr}:{Vr+1}], v18 offset:{320 + 32}")
        self(f"ds_read_b64_tr_b16 v[{Vr+2}:{Vr+3}], v18 offset:{QS + 320 + 32}")
        M = 4
        for h in range(4):
            s = Sx + 4 * h
            self(f"v_pk_mul_f32 v[{s}:{s+1}], v[{s}:{s+1}], v[76:77]\nv_pk_mul_f32 v[{s+2}:{s+3}], v[{s+2}:{s+3}], v[78:79]")
        for h in range(4):
            s = Sx + 4 * h
            self(f"v_max3_f32 v{M+h}, v{s}, v{s+1}, v{s+2}")
        for h in range(4):
            s = Sx + 4 * h
            self(f"v_max_f32 v{M+h}, v{M+h}, v{s+3}")
        def red(op, post):
            self(f"s_nop 1\nv_permlane16_swap_b32 v{M}, v{M+1}\nv_permlane16_swap_b32 v{M+2}, v{M+3}\ns_nop 0")
            self(f"{op} v{M}, v{M}, v{M+1}\n{op} v{M+2}, v{M+2}, v{M+3}\ns_nop 1\nv_permlane32_swap_b32 v{M}, v{M+2}\ns_nop 0\n{op} v{M}, v{M}, v{M+2}")
            if post: self(post)
            self(f"v_mov_b32 v{M+2}, v{M}\ns_nop 1\nv_permlane32_swap_b32 v{M}, v{M+2}\ns_nop 0")
            self(f"v_mov_b32 v{M+1}, v{M}\nv_mov_b32 v{M+3}, v{M+2}\ns_nop 1\nv_permlane16_swap_b32 v{M}, v{M+1}\nv_permlane16_swap_b32 v{M+2}, v{M+3}\ns_nop 0")
        red("v_max_f32", None)
        self.emit_items(self.take(vm, wq, na))
        for h in range(4):
            for r in range(4):
                self(f"v_sub_f32 v{Sx+4*h+r}, v{Sx+4*h+r}, v{M+h}")
        for h in range(4):
            for r in range(4):
                self(f"v_exp_f32 v{Sx+4*h+r}, v{Sx+4*h+r}")
        self("s_nop 0")
        for h in range(4):
            s = Sx + 4 * h
            self(f"v_add_f32 v{M+h}, v{s}, v{s+1}\nv_add_f32 v10, v{s+2}, v{s+3}\nv_add_f32 v{M+h}, v{M+h}, v10")
        self.align8()
        for h in range(4):
            s = Sx + 4 * h
            self(f"v_pk_mul_f32 v[{s}:{s+1}], v[{s}:{s+1}], v[30:31]\nv_pk_mul_f32 v[{s+2}:{s+3}], v[{s+2}:{s+3}], v[32:33]")
        red("v_add_f32", f"v_rcp_f32 v{M}, v{M}\ns_nop 0")
        assert all(not x[0] for x in wq)
        for h in range(4):
            s = Sx + 4 * h
            for r in range(4):
                self(f"v_mul_f32 v{s+r}, v{s+r}, v{M+h}")
            self(f"v_cvt_pk_bf16_f32 v{s}, v{s}, v{s+1}\nv_cvt_pk_bf16_f32 v{s+1}, v{s+2}, v{s+3}")
            p = Pf + 4 * h
            self(f"v_and_b32 v{p}, v{s}, v8\nv_and_b32 v{p+1}, v{s+1}, v8\nv_and_b32 v{p+2}, v{s}, v9\nv_and_b32 v{p+3}, v{s+1}, v9")
        self("s_waitcnt lgkmcnt(0)\ns_nop 0")
        for h in range(4):
            self(f"v_mfma_f32_16x16x32_bf16 v[{O+4*h}:{O+4*h+3}], v[{Vf+4*h}:{Vf+4*h+3}], v[{Pf+4*h}:{Pf+4*h+3}], 0")
        for h in range(4):
            self(f"v_mfma_f32_16x16x32_bf16 v[{R+4*h}:{R+4*h+3}], v[{Vr}:{Vr+3}], v[{Pf+4*h}:{Pf+4*h+3}], 0")
        self("s_nop 3")
        for k in range(2):
            d = 192 + 4 * k
            for q in range(4):
                self(f"v_cvt_pk_bf16_f32 v{d+q}, v{O+8*k+2*q}, v{O+8*k+2*q+1}")
            self(f"buffer_store_dwordx4 v[{d}:{d+3}], v2, {srd(SW)}, s{T0+2+k} offen sc1"); vm.issue("st")
        for h in range(1, 4):
            for r in range(4):
                self(f"v_cndmask_b32_e64 v{R+r}, v{R+r}, v{R+4*h+r}, s[{T0+4+2*h}:{T0+5+2*h}]")
        self(f"v_cvt_pk_bf16_f32 v200, v{R}, v{R+1}\nv_cvt_pk_bf16_f32 v201, v{R+2}, v{R+3}")
        self("v_mov_b32 v202, v200\nv_mov_b32 v203, v201\ns_nop 1\nv_permlane16_swap_b32 v200, v202\nv_permlane16_swap_b32 v201, v203\ns_nop 0")
        self(f"buffer_store_dwordx4 v[200:203], v16, {srd(SW)}, s{T0+1} offen sc1"); vm.issue("st")
        if self.o.get("tsa"): self.ts(2)
        self.emit_items(self.take(vm, wq))
        self.publish(vm)

    def p2(self):
        vm = VM()
        o = self.o
        self("P2_START:")
        PH, t, so, fo = T0 + 3, T0 + 5, T0 + 6, T0 + 4
        LW = S_LW
        KS = T0 + 7
        KL = 4
        self.emit_items(self.take(vm, self.w2_reg(3)))
        self(f"s_lshr_b32 s{fo}, s{S_M2}, 1\ns_lshl_b32 s{fo}, s{fo}, 11\ns_add_u32 s{fo}, s{fo}, {FLAGS}")
        self(f"s_lshl_b32 s{t}, s3, 8\ns_add_u32 s{PH}, s{t}, 128")
        self(f"v_mov_b32 v12, s{PH}\nv_writelane_b32 v12, s{t}, 0")
        self(f"s_lshl1_add_u32 s{t}, s{t}, 128\ns_cmp_lt_u32 s3, 4\ns_cselect_b32 s{t}, s{t}, s{PH}\nv_writelane_b32 v12, s{t}, 2")
        self(f"s_cselect_b32 s{PH}, 256, 0\ns_add_u32 s{t}, s{t}, s{PH}\nv_writelane_b32 v12, s{t}, 3")
        poll = f"buffer_load_dwordx2 v[14:15], v12, {srd(SW)}, s{fo} offen sc1"
        self(poll)
        self(f"s_mul_i32 s{t}, s3, 6")
        for i in range(6):
            self(f"s_add_u32 s{KS+i}, s{S_ROT}, {i}\ns_cmp_ge_u32 s{KS+i}, 6\ns_cselect_b32 s{so}, 6, 0\ns_sub_u32 s{KS+i}, s{KS+i}, s{so}\ns_add_u32 s{KS+i}, s{KS+i}, s{t}")
        self(f"s_lshl1_add_u32 s{KS+6}, s3, 48\ns_add_u32 s{KS+7}, s{KS+6}, 1\ns_add_u32 s{KS+8}, s3, 64")
        for k, i in enumerate((5, 6, 7, 4)):
            self(f"s_mul_i32 s{KL+k}, s{KS+i}, 5120\ns_add_u32 s{KL+k}, s{KL+k}, s{S_WB}")
        self(f"s_mul_i32 s{t}, s{S_M2}, {68*4096}")
        for i in range(9):
            self(f"s_lshl_b32 s{KS+i}, s{KS+i}, 12\ns_add_u32 s{KS+i}, s{KS+i}, s{t}")
        ACC = 176
        self(f"v_add_u32 v11, s{LW}, v2\nv_add_u32 v13, 4096, v2")
        self.mk_srd(SA, P_OUT, 2048 * 1280)
        self(f"s_lshl_b32 s{t}, s{S_M2}, 6\ns_lshl3_add_u32 s{t}, s3, s{t}\ns_mul_i32 s{t}, s{t}, 1280\ns_mul_i32 s{PH}, s{S_N2}, 160\ns_add_u32 s{PH}, s{PH}, s{t}")
        for rnd in range(3):
            self(f"v_add_u32 v16, {64*rnd}, v0\nv_mul_u32_u24 v17, 3277, v16\nv_lshrrev_b32 v17, 16, v17\nv_mul_u32_u24 v18, 20, v17\nv_sub_u32 v16, v16, v18")
            self("v_bfe_u32 v18, v17, 1, 2\nv_xor_b32 v16, v16, v18\nv_mul_u32_u24 v17, 1280, v17")
            self(f"v_lshl_add_u32 v{4+rnd}, v16, 3, v17")
        self("v_lshrrev_b32 v16, 5, v0\nv_lshl_add_u32 v6, v16, 26, v6")
        self("v_and_b32 v16, 15, v0\nv_lshrrev_b32 v17, 4, v0\nv_bfe_u32 v18, v0, 1, 2\nv_xor_b32 v17, v17, v18\nv_mul_u32_u24 v16, 320, v16")
        self(f"v_lshl_add_u32 v16, v17, 4, v16\nv_add_u32 v7, s{LW}, v16")
        self(f"s_mul_i32 s{t}, s3, 2560\nv_add_u32 v8, s{t}, v2\nv_add_u32 v9, 61440, v8\nv_add_u32 v10, 122880, v8")
        self("s_waitcnt vmcnt(0)")
        vm = VM()
        cmpn = f"v_cmp_ne_u64 vcc, s[{S_N}:{S_N+1}], v[14:15]"
        self.spin(cmpn + "\ns_nop 1\ns_and_b64 vcc, vcc, 1", poll, False, o.get("psl", 2))
        self.ts(7)
        NB = 3
        AR = lambda i: [80, 160, 20][i % NB]
        def ldA(i):
            return [f"buffer_load_dwordx4 v[{AR(i)+4*m}:{AR(i)+4*m+3}], v2, {srd(SW)}, s{KS+i} offen offset:{m*1024} sc1" for m in range(4)]
        for i in range(NB):
            for l in ldA(i):
                self(l); vm.issue(("A", i))
        XR = WR[4]
        def variant(vm, late):
            NS = 8 if late else 9
            for i in range(NS):
                also = [("W", i), ("L", i - 4)]
                chk = i == 6 - NB + 1
                if chk: also.append("poll")
                n = vm.wait(lambda t: t == ("A", i) or t in also)
                self(f"s_waitcnt vmcnt({n}) lgkmcnt(0)\ns_nop 0")
                if chk:
                    self.spin(cmpn, poll, False, o.get("psl", 2)); self.align8()
                mf = []
                for m in range(4):
                    for tt in range(5):
                        c = ACC + (m * 5 + tt) * 4
                        w = WR[i % 5] + 4 * tt
                        mf.append(f"v_mfma_f32_16x16x32_bf16 v[{c}:{c+3}], v[{w}:{w+3}], v[{AR(i)+4*m}:{AR(i)+4*m+3}], {'0' if i == 0 else 'v[%d:%d]' % (c, c+3)}")
                fill = []
                if i == 0:
                    for tt in range(5):
                        r = WR[4] + 4 * tt
                        fill.append(f"buffer_load_dwordx4 v[{r}:{r+3}], v{13 if tt == 4 else 2}, {srd(SW)}, s{KL+3} offen offset:{(tt%4)*1024} sc1"); vm.issue(("W", 4))
                if i == 1:
                    fill.append(poll); vm.issue("poll")
                j = i - 1 + NB
                if i >= 1 and j < NS:
                    fill += ldA(j)
                    for _ in range(4): vm.issue(("A", j))
                if late and 1 <= i <= 3:
                    k = i - 1
                    for tt in range(5):
                        of = (tt % 4) * 1024
                        fill.append((f"s_add_u32 m0, s{LW}, {lit(k*5120 + tt*1024 - of)}",
                                     f"buffer_load_dwordx4 v{13 if tt == 4 else 2}, {srd(SW)}, s{KL+k} offen offset:{of} sc1 lds")); vm.issue(("L", k))
                if i == 6:
                    for rnd in range(3):
                        fill.append(f"buffer_load_dwordx2 v[{XR+2*rnd}:{XR+2*rnd+1}], v{4+rnd}, {srd(SX)}, s{PH} offen"); vm.issue("x")
                rl = []
                k = (i - 4) if late else (i - 1)
                if 0 <= k < NS - 5:
                    rl = [f"ds_read_b128 v[{WR[k]+4*tt}:{WR[k]+4*tt+3}], v11 offset:{k*5120 + tt*1024}" for tt in range(5)]
                if i < NS - 1:
                    lists = []
                    if fill: lists.append((fill, 0.0, 0.9))
                    if rl: lists.append((rl, 0.0, 0.6))
                    self.interleave(mf, lists)
                else:
                    assert not fill and not rl
                    wr = [f"ds_write_b128 v7, v[{ACC+(m*5+tt)*4}:{ACC+(m*5+tt)*4+3}] offset:{m*5120 + tt*64}" for m in range(4) for tt in range(5)]
                    LAG = 8
                    for k in range(20 + LAG):
                        if k < 20: self(mf[k])
                        if k == 20: self("s_nop 1\ns_nop 0")
                        if k >= LAG: self(wr[k - LAG])
        self("s_cmp_ge_u32 s3, 4\ns_cbranch_scc1 P2_B")
        self.align8()
        vm2 = copy.deepcopy(vm)
        variant(vm, False)
        self("s_branch P2_RED")
        self.align8()
        self("P2_B:")
        variant(vm2, True)
        self("P2_RED:")
        self.ts(8)
        self("s_waitcnt lgkmcnt(0)\ns_barrier")
        RB = [36, 120, 176]
        for rnd in range(3):
            for src in range(8):
                r = RB[rnd] + src * 4
                self(f"ds_read_b128 v[{r}:{r+3}], v{8 + src//3} offset:{(src%3)*20480 + rnd*1024}")
        self("s_waitcnt vmcnt(0)\ns_nop 0")
        ofl = {0: "", 1: " sc1", 2: " nt", 3: " sc0 sc1"}[self.o.get("ost", 0)]
        for rnd in range(3):
            b = RB[rnd]
            x = XR + 2 * rnd
            self(f"v_lshlrev_b32 v{XR+8}, 16, v{x}\nv_lshlrev_b32 v{XR+10}, 16, v{x+1}\nv_and_b32 v{XR+9}, 0xffff0000, v{x}\nv_and_b32 v{XR+11}, 0xffff0000, v{x+1}")
            self("s_waitcnt lgkmcnt(0)\ns_nop 0" if self.instr else f"s_waitcnt lgkmcnt({[15,8,0][rnd]})\ns_nop 0")
            for st in (4, 8, 16):
                for k in range(0, 32, 2 * st):
                    for r in (0, 2):
                        self(f"v_pk_add_f32 v[{b+k+r}:{b+k+r+1}], v[{b+k+r}:{b+k+r+1}], v[{b+k+st+r}:{b+k+st+r+1}]")
            for r in (0, 2):
                self(f"v_pk_add_f32 v[{b+r}:{b+r+1}], v[{b+r}:{b+r+1}], v[{XR+8+r}:{XR+9+r}]")
            self(f"v_cvt_pk_bf16_f32 v{b}, v{b}, v{b+1}\nv_cvt_pk_bf16_f32 v{b+1}, v{b+2}, v{b+3}")
            self(f"buffer_store_dwordx2 v[{b}:{b+1}], v{4+rnd}, {srd(SA)}, s{PH} offen{ofl}")
        if self.instr:
            self("s_waitcnt vmcnt(0)")
            self.ts(9)
            self(f"s_memrealtime s[{T0+2}:{T0+3}]\ns_waitcnt lgkmcnt(0)")
            if "ampj" in self.o:
                i_, j_, K_ = self.o.get("ampi", 0), self.o["ampj"], self.o.get("ampk", 1)
                self(f"s_sub_u32 s{T0+4}, s{TSB+2*j_}, s{TSB+2*i_}\ns_mul_i32 s{T0+4}, s{T0+4}, {K_}\ns_min_u32 s{T0+4}, s{T0+4}, 20000")
                self(f"LAMP:\ns_memrealtime s[{T0+6}:{T0+7}]\ns_waitcnt lgkmcnt(0)\ns_sub_u32 s{T0+5}, s{T0+6}, s{T0+2}\ns_cmp_lt_u32 s{T0+5}, s{T0+4}\ns_cbranch_scc1 LAMP")
                return
            for i in range(1, 10):
                self(f"s_sub_u32 s{T0}, s{TSB+2*i}, s{TSB}\nv_mov_b32 v{20+i}, s{T0}")
            self(f"v_mov_b32 v20, s100\nv_mov_b32 v30, s{T0+2}\nv_mov_b32 v31, 0")
            self(f"s_lshl3_add_u32 s{T0}, s2, s3\ns_lshl_b32 s{T0}, s{T0}, 6\ns_add_u32 s{T0}, s{T0}, {TS}\nv_lshlrev_b32 v12, 26, v0")
            for q in range(3):
                self(f"buffer_store_dwordx4 v[{20+4*q}:{23+4*q}], v12, {srd(SW)}, s{T0} offen offset:{16*q}")

    def build(self):
        k = NAME + "_kernel"
        self(header([f"@launch grid=(256,1,1) block=(512,1,1) lds={160*1024}"]))
        self(kbegin(k))
        self.ts(0)
        if self.instr:
            self("s_memrealtime s[100:101]")
        self("s_load_dwordx16 s[4:19], s[0:1], 0\ns_load_dwordx4 s[20:23], s[0:1], 64")
        self("v_lshrrev_b32 v1, 6, v0\nv_and_b32 v0, 63, v0")
        self("s_cmp_ge_u32 s2, 256\ns_cbranch_scc1 K_END")
        self("v_readfirstlane_b32 s3, v1")
        self(f"s_and_b32 s{S_C}, s2, 7\ns_lshr_b32 s{S_MT}, s2, 4")
        self("s_bitcmp1_b32 s2, 3\ns_cbranch_scc1 Q_START")
        self.h_path()
        self.q_path()
        self.p2()
        self("K_END:\ns_endpgm")
        self("K_LAST:")
        self(f".set CODE_SPAN, K_LAST - {k} - 1024")
        self(kdesc(k, 256, 102, 256))
        return self.a.text()

if __name__ == "__main__":
    out = sys.argv[1]
    instr = "instr" in sys.argv[2:]
    opts = {}
    for x in sys.argv[2:]:
        if "=" in x:
            kk, vv = x.split("="); opts[kk] = int(vv)
    open(out, "w").write(G(instr, opts).build())
```

```python
import sys, struct, copy
from gen_common import *

def f2u(x):
    return hex(struct.unpack('<I', struct.pack('<f', x))[0])

A2F = 0
W2P = 16 << 20
STATS = 20 << 20
CS = 21 << 20
FLAGS = 22 << 20
TS = 24 << 20
WSN = 32 << 20
OOB = 0x80000000
SPIN = 200000

P_X, P_QKV, P_WO, P_BX, P_WG, P_WU, P_WD, P_OUT, P_DBG, P_WS = 4, 6, 8, 10, 12, 14, 16, 18, 20, 22
SX, SB, SW, SD, SA = 24, 28, 32, 36, 40
SP = 4
S_C, S_MT, S_ROW = 44, 45, 46
S_M2, S_N2, S_ROT = 47, 48, 49
S_KB, S_A2, S_LB, S_LA = 50, 51, 52, 53
S_FLAG, S_LW = 54, 55
S_N = 0
EFL = 65536
S_HM = 56
S_MULW, S_ADDW = 58, 59
T0 = 60
S_WB, S_L5 = 10, 11
TSB = 80
WR = [36, 56, 120, 140, 100]

def srd(r):
    return f"s[{r}:{r+3}]"

def lit(v):
    return str(v) + ("\ns_nop 0" if -16 <= v <= 64 else "")

class NH(str):
    pass

class VM:
    def __init__(self):
        self.q = []
    def issue(self, tag, optional=False):
        self.q.append((tag, optional))
        assert len(self.q) <= 63, self.q
    def wait(self, pred):
        last = -1
        for i, (t, o) in enumerate(self.q):
            if pred(t):
                last = i
        if last < 0:
            return None
        rest = self.q[last + 1:]
        n = sum(1 for t, o in rest if not o)
        self.q = rest
        return n
    def has(self, tag):
        return any(t == tag for t, o in self.q)

class G:
    def __init__(self, instr=False, opts=None):
        self.a = Asm()
        self.instr = instr
        self.o = opts or {}
        self.lab = 0

    def __call__(self, s=""):
        self.a(s)

    def label(self, p="L"):
        self.lab += 1
        return f"{p}{self.lab}"

    def tstep(self, s):
        if self.instr and self.o.get("steps"):
            m = {0: 1, 2: 2, 4: 3, 6: 4, 8: 5, 11: 6, 14: 7, 17: 8}
            if self.o.get("steps") == 2:
                m = {12: 1, 13: 2, 14: 3, 15: 4, 16: 5, 17: 6, 18: 7, 19: 8}
            if self.o.get("steps") == 3:
                m = {0: 1, 1: 2, 2: 3, 3: 4, 4: 5, 5: 6, 6: 7, 7: 8}
            if self.o.get("steps") == 4:
                m = {"a": 1, "b": 2, "c": 3, "d": 4, "e": 5, "f": 6, 0: 7, 2: 8}
            if s in m:
                self.ts(m[s], True)

    def ts(self, i, force=False):
        if self.o.get("steps") and not force and i not in (0, 9):
            return
        if self.instr:
            op = "s_memrealtime" if self.o.get("rt") else "s_memtime"
            self(f"{op} s[{TSB+2*i}:{TSB+2*i+1}]")

    def mk_srd(self, d, base, n):
        self(f"s_mov_b32 s{d}, s{base}\ns_mov_b32 s{d+1}, s{base+1}\ns_mov_b32 s{d+2}, {n}\ns_mov_b32 s{d+3}, 0x20000")

    def align8(self):
        self(".p2align 3")

    def wave_sum(self, v, t):
        for d in ("quad_perm:[1,0,3,2]", "quad_perm:[2,3,0,1]", "row_half_mirror", "row_mirror"):
            self(f"s_nop 1\nv_add_f32_dpp v{v}, v{v}, v{v} {d} row_mask:0xf bank_mask:0xf")
        self(f"v_mov_b32 v{t}, v{v}\ns_nop 1\nv_permlane16_swap_b32 v{t}, v{v}\ns_nop 0\nv_add_f32 v{v}, v{v}, v{t}")
        self(f"v_mov_b32 v{t}, v{v}\ns_nop 1\nv_permlane32_swap_b32 v{t}, v{v}\ns_nop 0\nv_add_f32 v{v}, v{v}, v{t}")

    def px_pre(self, typ):
        self(f"s_lshl3_add_u32 s{S_FLAG}, s{S_MT}, s{S_C}\ns_lshl1_add_u32 s{S_FLAG}, s{S_FLAG}, {typ}")
        self(f"s_lshl3_add_u32 s{S_ROW}, s{S_FLAG}, s3")
        self(f"s_mul_i32 s{T0}, s{S_ROW}, 1280")
        self("v_lshlrev_b32 v2, 4, v0\nv_lshlrev_b32 v3, 2, v0")

    def misc_pre(self):
        self(f"s_lshl_b32 s{S_FLAG}, s{S_FLAG}, 7\ns_add_u32 s{S_FLAG}, s{S_FLAG}, {FLAGS}")
        self(f"v_add_lshl_u32 v19, v0, s3, 25")
        self.mk_srd(SW, P_WS, WSN)

    def nonce_load(self):
        return f"buffer_load_dwordx2 v[30:31], off, {srd(SD)}, 0 sc1"

    def nonce_get(self):
        self.spin("v_cmp_eq_u64 vcc, 0, v[30:31]", self.nonce_load(), False, 8)
        self(f"v_readfirstlane_b32 s{S_N}, v30\nv_readfirstlane_b32 s{S_N+1}, v31")

    def early_flag(self):
        return [f"s_add_u32 s{T0}, s{S_FLAG}, {EFL}", f"buffer_store_dwordx2 v[30:31], v19, {srd(SW)}, s{T0} offen sc1"]

    def check_addr(self, v):
        t = T0 + 17
        L = [f"s_lshl_b32 s{t}, s{S_MT}, 4", f"s_sub_u32 s{t}, s{t}, 2", f"v_add_u32 v4, s{t}, v0", "v_max_i32 v4, 0, v4",
             f"s_lshl1_add_u32 s{t}, s{S_C}, {(1 - 18*16) & 0xffffffff}", f"v_lshl_add_u32 v5, v0, 4, s{t}",
             f"s_mul_i32 s{t}, s{S_N2}, 5", f"s_lshr_b32 s{t}, s{t}, 2", f"s_sub_u32 s{t}, s{t}, 170",
             "v_min_u32 v6, 57, v0", "v_lshrrev_b32 v7, 1, v6", "v_and_b32 v6, 1, v6", "v_mad_u32_u24 v6, v7, 10, v6",
             f"v_add_u32 v6, s{t}, v6", "v_lshlrev_b32 v6, 1, v6",
             "v_cmp_gt_u32 vcc, 34, v0\ns_nop 1\nv_cndmask_b32 v5, v6, v5, vcc",
             "v_cmp_gt_u32 vcc, 18, v0\ns_nop 1\nv_cndmask_b32 v5, v5, v4, vcc",
             "v_lshlrev_b32 v5, 7, v5", f"v_mov_b32 v{v}, v5", f"s_mov_b32 s{T0+18}, {FLAGS + EFL}"]
        return self.chunks(L, 10)

    def check_issue(self, vreg, va):
        L = self.label()
        return f"s_cmp_lg_u32 s3, 0\ns_cbranch_scc1 {L}\nbuffer_load_dwordx2 v[{vreg}:{vreg+1}], v{va}, {srd(SW)}, s{T0+18} offen sc1\n{L}:"

    def check_spin(self, vreg, va):
        self.spin(f"v_cmp_ne_u64 vcc, s[{S_N}:{S_N+1}], v[{vreg}:{vreg+1}]",
                  f"buffer_load_dwordx2 v[{vreg}:{vreg+1}], v{va}, {srd(SW)}, s{T0+18} offen sc1", True, 8)

    def px_load(self, vm):
        fl = " nt" if self.o.get("pxnt", 1) else ""
        vm.issue("px"); vm.issue("px")
        return [f"buffer_load_dwordx4 v[56:59], v2, {srd(SX)}, s{T0} offen{fl}",
                f"buffer_load_dword v60, v3, {srd(SX)}, s{T0} offen offset:1024{fl}"]

    def stats_parts(self, typ):
        keep = self.a; self.a = Asm()
        E = 62
        for j in range(5):
            self(f"v_lshlrev_b32 v{E+2*j}, 16, v{56+j}\nv_and_b32 v{E+1+2*j}, 0xffff0000, v{56+j}")
        self(f"v_add_f32 v72, v{E}, v{E+1}\nv_add_f32 v73, v{E+2}, v{E+3}\nv_add_f32 v74, v{E+4}, v{E+5}\nv_add_f32 v75, v{E+6}, v{E+7}\nv_add_f32 v61, v{E+8}, v{E+9}")
        self("v_add_f32 v72, v72, v73\nv_add_f32 v74, v74, v75\nv_add_f32 v72, v72, v61\nv_add_f32 v72, v72, v74")
        self.wave_sum(72, 73)
        self(f"v_mul_f32 v72, {f2u(-1.0/640)}, v72")
        for j in range(10):
            self(f"v_add_f32 v{E+j}, v{E+j}, v72")
        self(f"v_mul_f32 v74, v{E}, v{E}\nv_mul_f32 v75, v{E+1}, v{E+1}")
        for j in range(2, 10):
            self(f"v_fmac_f32 v{74+(j&1)}, v{E+j}, v{E+j}")
        self("v_add_f32 v74, v74, v75")
        self.wave_sum(74, 75)
        self(f"v_mov_b32 v73, {f2u(1e-5)}")
        self(f"v_fmac_f32 v73, {f2u(1.0/640)}, v74")
        self("v_rsq_f32 v73, v73")
        self(f"s_lshl_b32 s{T0}, s{S_ROW}, 3\ns_add_u32 s{T0}, s{T0}, {STATS}")
        self("v_lshlrev_b32 v75, 26, v0")
        comp = self.a.lines; self.a = keep
        st = [f"buffer_store_dwordx2 v[72:73], v75, {srd(SW)}, s{T0} offen sc1"]
        return comp, st

    def stats(self, vm, typ):
        n = vm.wait(lambda t: t == "px")
        if n is not None:
            self(f"s_waitcnt vmcnt({n})")
        comp, st = self.stats_parts(typ)
        for l in comp: self(l)

    def chunks(self, lines, n):
        k = -(-len(lines) // n)
        return ["\n".join(lines[i:i + k]) + "\n.p2align 3" for i in range(0, len(lines), k)]

    def spin(self, cmp, reload, wave0=False, sleep=1):
        L = self.label(); Ld = self.label()
        s = ""
        if wave0:
            s += f"s_cmp_lg_u32 s3, 0\ns_cbranch_scc1 {Ld}\n"
        s += f"s_mov_b32 s{T0+19}, 0\n{L}:\n{cmp}\ns_nop 4\ns_cbranch_vccz {Ld}\n"
        s += f"s_addk_i32 s{T0+19}, 1\ns_cmp_ge_u32 s{T0+19}, {SPIN}\ns_cbranch_scc1 {Ld}\n"
        s += f"s_sleep {sleep}\n{reload}\ns_waitcnt vmcnt(0)\ns_branch {L}\n{Ld}:"
        self(s)

    def capture(self, fn):
        keep = self.a; self.a = Asm()
        fn()
        lines = self.a.lines; self.a = keep
        return lines

    def scc_chunks(self, lines, k=3):
        items = []; cur = []
        for i, l in enumerate(lines):
            cur.append(l)
            nxt = lines[i + 1:]
            live = False
            for m in nxt:
                if m.startswith("s_cselect") or m.startswith("s_cbranch"): live = True; break
                if m.startswith("s_cmp") or m.startswith("s_add") or m.startswith("s_sub") or m.startswith("s_ls") or m.startswith("s_and") or m.startswith("s_bitcmp"): break
            if len(cur) >= k and not live:
                items.append("\n".join(cur) + "\n.p2align 3"); cur = []
        if cur: items.append("\n".join(cur) + "\n.p2align 3")
        return items

    PK = (T0 + 6, T0 + 7, T0 + 8, T0 + 9, T0 + 10, T0 + 11, T0 + 12)

    def pack_params(self, rnd):
        u, _, _, base, al, be, ga = self.PK
        ks, Lc = T0 + 2 + 2 * rnd, T0 + 3 + 2 * rnd
        t = T0 + 13
        self(f"s_lshl3_add_u32 s{u}, s{S_MT}, s{S_C}\ns_mul_i32 s{ks}, s{u}, 6554\ns_lshr_b32 s{ks}, s{ks}, 16\ns_mul_i32 s{Lc}, s{ks}, 10\ns_sub_u32 s{Lc}, s{u}, s{Lc}")
        self(f"s_mul_i32 s{t}, s3, 12\ns_add_u32 s{ks}, s{ks}, s{t}\ns_cmp_ge_u32 s{u}, 120\ns_cselect_b32 s{ks}, 99, s{ks}")
        self(f"s_lshl_b32 s{base}, s{ks}, 5")
        self(f"s_sub_u32 s{al}, s{ks}, 48\ns_mul_i32 s{al}, s{al}, 40\ns_mov_b32 s{t}, {640*1280}")
        self(f"s_cmp_lt_u32 s{ks}, 48\ns_cselect_b32 s{base}, s{base}, s{al}\ns_cselect_b32 s{al}, 16, 8\ns_cselect_b32 s{ga}, 8, 20")
        self(f"s_cselect_b64 s[{SP}:{SP+1}], s[{P_WD}:{P_WD+1}], s[{P_WO}:{P_WO+1}]\ns_cselect_b32 s{SP+2}, {1536*1280}, s{t}\ns_mov_b32 s{be}, 4")
        self(f"s_sub_u32 s{t}, s{ks}, 64\ns_mul_i32 s{t}, s{t}, 160\ns_add_u32 s{t}, s{t}, 16\ns_cmp_ge_u32 s{ks}, 64")
        self(f"s_cselect_b32 s{base}, s{t}, s{base}\ns_cselect_b32 s{be}, 40, s{be}\ns_cselect_b32 s{al}, 80, s{al}")
        self(f"s_cmp_ge_u32 s{ks}, 68\ns_cselect_b32 s{SP+2}, 0, s{SP+2}\ns_mov_b32 s{SP+3}, 0x20000")
        self(f"s_mul_i32 s{base}, s{base}, 1280\ns_lshl_b32 s{t}, s{Lc}, 7\ns_add_u32 s{base}, s{base}, s{t}")
        self(f"s_mul_i32 s{al}, s{al}, 1280\ns_mul_i32 s{be}, s{be}, 1280")
        self(f"s_add_u32 s{al}, s{al}, s{base}\ns_add_u32 s{u}, s{al}, s{be}\ns_add_u32 s{be}, s{be}, s{base}")
        self(f"v_lshrrev_b32 v5, 5, v0\nv_mul_u32_u24 v5, s{ga}, v5\nv_and_b32 v7, 7, v0\nv_bfe_u32 v6, v0, 3, 2\nv_add_u32 v5, v5, v6")
        self("v_and_b32 v6, 2, v6\nv_xor_b32 v7, v7, v6")
        self("v_mul_u32_u24 v5, 1280, v5\nv_lshl_add_u32 v32, v7, 4, v5\nv_xor_b32 v33, 64, v32")

    def pack_dma(self, scr):
        u, lb, _, base, al, be, ga = self.PK
        return [(f"s_add_u32 m0, s{lb}, {lit(i*1024)}", f"buffer_load_dwordx4 v{32 + (i&1)}, {srd(SP)}, s{so} offen nt lds", "pk", False)
                for i, so in enumerate((base, be, al, u))]

    def pack_dst(self, rnd):
        u, _, _, base, al, be, ga = self.PK
        ks, Lc = T0 + 2 + 2 * rnd, T0 + 3 + 2 * rnd
        t = T0 + 13
        self(f"s_mul_i32 s{t}, s{ks}, 5120\ns_add_u32 s{t}, s{t}, {W2P}\ns_cmp_ge_u32 s{ks}, 68\ns_cselect_b32 s{t}, {OOB}, s{t}")
        for i, d in enumerate((base, be, al, u)):
            self(f"s_lshl2_add_u32 s{d}, s{Lc}, {i}\ns_mul_i32 s{ga}, s{d}, 52\ns_lshr_b32 s{ga}, s{ga}, 8\ns_lshl_b32 s{d}, s{d}, 10")
            self(f"s_mul_i32 s{ga}, s{ga}, {67*5120}\ns_add_u32 s{d}, s{d}, s{ga}\ns_add_u32 s{d}, s{d}, s{t}")

    def pack_tr_addr(self):
        lb = self.PK[1]
        self("v_lshrrev_b32 v5, 4, v0\nv_and_b32 v7, 3, v0\nv_bfe_u32 v6, v0, 2, 2\nv_lshl_add_u32 v4, v5, 3, v6")
        self(f"v_lshlrev_b32 v4, 7, v4\nv_lshlrev_b32 v7, 3, v7\nv_add3_u32 v4, v4, v7, s{lb}")
        self("v_lshrrev_b32 v6, 1, v6\nv_and_b32 v5, 1, v5\nv_lshl_or_b32 v6, v5, 1, v6\nv_lshl_add_u32 v26, v6, 5, v4")
        for i in range(1, 4):
            self(f"v_xor_b32 v{26+i}, {32*i}, v26")

    def pack_tr(self, R):
        out = []
        for i in range(4):
            r = R + i * 4
            out += [f"ds_read_b64_tr_b16 v[{r}:{r+1}], v{26+i}", f"ds_read_b64_tr_b16 v[{r+2}:{r+3}], v{26+i} offset:512"]
        return out

    def pack_stores(self, vm, R):
        u, _, _, base, al, be, ga = self.PK
        out = []
        for i, so in enumerate((base, be, al, u)):
            out.append(f"buffer_store_dwordx4 v[{R+4*i}:{R+3+4*i}], v2, {srd(SW)}, s{so} offen sc1"); vm.issue("early")
        return out

    @staticmethod
    def sched(ops, s, rate):
        out = []
        while ops and len(out) < rate and ops[0][0] <= s:
            out.append(ops.pop(0)[1])
        return out

    def interleave(self, mf, lists):
        items = []
        for idx, (L, lo, hi) in enumerate(lists):
            for i, it in enumerate(L):
                items.append((lo + (i + 0.5) / len(L) * (hi - lo), idx, i, it))
        items.sort(key=lambda z: z[:3])
        pos = [[] for _ in mf]
        for f, _, _, it in items:
            pos[min(len(mf) - 1, int(f * len(mf)))].append(it)
        out = []
        for i, m in enumerate(mf):
            out.append(m)
            out += pos[i]
        res = []
        for it in out:
            if isinstance(it, tuple):
                if res and not res[-1][1]:
                    prev = res.pop()
                    res += [(it[0], True), prev, (it[1], True)]
                else:
                    res += [(it[0], True), ("s_nop 0\ns_nop 0", True), (it[1], True)]
            else:
                res.append((it, isinstance(it, NH)))
        for it, _ in res:
            self(it)

    def a_addr(self, abase):
        self("v_and_b32 v4, 31, v0\nv_lshrrev_b32 v5, 5, v0\nv_bfe_u32 v6, v0, 1, 3\nv_xor_b32 v6, v6, v5")
        self(f"s_lshr_b32 s{T0+1}, s3, 2\ns_lshl_b32 s{T0+1}, s{T0+1}, 13")
        if abase:
            self(f"s_add_u32 s{T0+1}, s{T0+1}, {abase}")
        self(f"v_lshlrev_b32 v6, 4, v6\nv_lshl_add_u32 v6, v4, 7, v6\nv_add_u32 v8, s{T0+1}, v6")
        for q in range(1, 4):
            self(f"v_xor_b32 v{8+q}, {q<<5}, v8")

    def a_dma_addr(self):
        self(f"s_lshl_b32 s{T0+1}, s{S_MT}, 7\ns_lshl3_add_u32 s{T0+1}, s3, s{T0+1}")
        self(f"v_lshrrev_b32 v4, 3, v0\nv_add_u32 v4, s{T0+1}, v4\nv_mul_u32_u24 v4, 1280, v4")
        self(f"s_lshl_b32 s{T0+2}, s3, 2\nv_lshrrev_b32 v5, 4, v0\nv_add_u32 v5, s{T0+2}, v5\nv_xor_b32 v5, v5, v0\nv_and_b32 v5, 7, v5")
        self("v_lshl_add_u32 v12, v5, 4, v4")

    def div24(self, j, dk, du):
        self(f"v_add_u32 v{du}, {64*j}, v0\nv_mul_u32_u24 v{dk}, 2731, v{du}\nv_lshrrev_b32 v{dk}, 16, v{dk}")
        self(f"v_mul_u32_u24 v7, 24, v{dk}\nv_sub_u32 v{du}, v{du}, v7")

    def p2_params(self):
        t, u = T0 + 17, T0 + 18
        return [
            f"s_bfe_u32 s{S_M2}, s2, 0x30003", f"s_lshr_b32 s{S_N2}, s2, 6\ns_mul_i32 s{t}, s{S_N2}, 3",
            f"s_lshr_b32 s{t}, s{t}, 1\ns_add_u32 s{t}, s{t}, s{S_M2}",
            f"s_cmp_ge_u32 s{t}, 6\ns_cselect_b32 s{u}, 6, 0\ns_sub_u32 s{S_ROT}, s{t}, s{u if self.o.get('rot') else t}\ns_lshr_b32 s{t}, s{S_C}, 1",
            f"s_lshl3_add_u32 s{S_M2}, s{t}, s{S_M2}\ns_and_b32 s{t}, s{S_C}, 1",
            f"s_lshl2_add_u32 s{S_N2}, s{t}, s{S_N2}\ns_and_b32 s{t}, s3, 3",
            f"s_mul_i32 s{S_WB}, s{S_N2}, {68*5120}", f"s_add_u32 s{S_WB}, s{S_WB}, {W2P}", f"s_mul_i32 s{S_L5}, s{t}, 5120",
            f"s_add_u32 s{u}, s{S_ROT}, -1\ns_cmp_eq_u32 s{S_ROT}, 0\ns_cselect_b32 s{u}, 5, s{u}\ns_add_u32 s{S_ADDW}, s{t}, 47",
            f"s_cmp_eq_u32 s{t}, 0\ns_cselect_b32 s{S_ADDW}, s{u}, s{S_ADDW}\ns_cselect_b32 s{S_MULW}, 6, 2\ns_nop 0",
            f"s_cmp_eq_u32 s{t}, 3\ns_cselect_b32 s{S_ADDW}, 64, s{S_ADDW}\ns_cselect_b32 s{S_MULW}, 1, s{S_MULW}\ns_nop 0",
            f"s_mul_i32 s{S_ADDW}, s{S_ADDW}, 5120", f"s_mul_i32 s{S_MULW}, s{S_MULW}, 5120", f"s_add_u32 s{S_ADDW}, s{S_ADDW}, s{S_WB}\ns_nop 0",
        ]

    def w2_pair(self, b0, t0, b1, t1):
        so, lb, t = T0 + 14, T0 + 15, T0 + 16
        ops = [(None, f"s_cmp_lt_u32 s3, 4\ns_cselect_b32 s{so}, {t0}, {t1}\ns_cselect_b32 s{lb}, {b0}, {b1}\ns_mul_i32 s{t}, s{so}, s{S_MULW}", None),
               (None, f"s_mul_i32 s{lb}, s{lb}, 20480", None), (None, NH(f"s_add_u32 s{lb}, s{lb}, s{S_L5}\ns_add_u32 s{so}, s{t}, s{S_ADDW}"), None)]
        for tt in range(5):
            o = (tt % 4) * 1024
            pre = f"s_add_u32 m0, s{lb}, {lit(tt*1024 - o)}"
            if tt == 4:
                pre = f"s_add_u32 s{so}, s{so}, 4096\n" + pre
            ops.append((pre, f"buffer_load_dwordx4 v2, {srd(SW)}, s{so} offen offset:{o} sc1 lds", "W"))
        return ops

    def w2_reg(self, i):
        so, t = T0 + 14, T0 + 16
        ops = [(None, f"s_add_u32 s{t}, s{S_ROT}, {i}\ns_cmp_ge_u32 s{t}, 6\ns_cselect_b32 s{so}, 6, 0\ns_sub_u32 s{t}, s{t}, s{so}", None),
               (None, f"s_mul_i32 s{so}, s3, 6\ns_add_u32 s{t}, s{t}, s{so}", None), (None, f"s_mul_i32 s{t}, s{t}, 5120", None),
               (None, f"s_add_u32 s{so}, s{t}, s{S_WB}\ns_nop 0", None)]
        for tt in range(5):
            r = WR[i] + 4 * tt
            ld = f"buffer_load_dwordx4 v[{r}:{r+3}], v2, {srd(SW)}, s{so} offen offset:{(tt%4)*1024} sc1"
            if tt == 4:
                ld = f"s_add_u32 s{so}, s{so}, 4096\n" + ld
            ops.append((None, ld, "W"))
        return ops

    def take(self, vm, q, n=99):
        out = []
        while q and n > 0:
            pre, post, tag = q.pop(0)
            out.append((pre, post) if pre else post)
            if tag:
                vm.issue(tag); n -= 1
        return out

    def emit_items(self, items):
        for it in items:
            self(it[0] + "\ns_nop 0\n" + it[1] if isinstance(it, tuple) else it)

    def publish(self, vm):
        self(f"v_mov_b32 v4, s{S_N}\nv_mov_b32 v5, s{S_N+1}")
        n = vm.wait(lambda t: t == "st")
        self(f"s_waitcnt vmcnt({n})\ns_barrier")
        self.ts(6)
        self(f"buffer_store_dwordx2 v[4:5], v19, {srd(SW)}, s{S_FLAG} offen sc1")

    def emit_ops(self, vm, ds):
        for d in ds:
            if d[0]:
                self(d[0] + "\ns_nop 0")
            self(d[1]); vm.issue(d[2], d[3])

    def fill_ops(self, vm, ds):
        out = []
        for d in ds:
            out.append((d[0], d[1]) if d[0] else d[1]); vm.issue(d[2], d[3])
        return out

    def h_path(self):
        vm = VM()
        o = self.o
        BB = 65536
        CSL = 102400
        S_PQ = S_HM + 1
        apos = lambda S: ((S % 4) ^ 1) * 16384
        ant = lambda S: " nt" if S < o.get("ant", 0) else ""
        PXI = o.get("pxi", 1)
        AF = o.get("afirst", 0)
        self(f"s_memrealtime s[{T0+14}:{T0+15}]")
        self.px_pre(0)
        if AF:
            self.a_dma_addr()
        self(f"s_mov_b32 s{S_A2}, 81920\ns_lshl_b32 s{S_LA}, s3, 10\ns_mov_b32 s{S_HM}, 0")
        self(f"s_mov_b32 s{SX+2}, {2048*1280}\ns_mov_b32 s{SX+3}, 0x20000\ns_mov_b32 s{SA+2}, {640*3840}\ns_mov_b32 s{SA+3}, 0x20000")
        self("v_mul_u32_u24 v4, 43, v0\nv_lshrrev_b32 v4, 8, v4\nv_mul_u32_u24 v5, 6, v4\nv_sub_u32 v5, v0, v5")
        self("v_lshrrev_b32 v6, 1, v5\nv_and_b32 v5, 1, v5\nv_mul_u32_u24 v6, 1280, v6\nv_mul_u32_u24 v5, 156, v5")
        self("v_and_b32 v7, 4, v4\nv_mad_u32_u24 v4, v7, 15, v4")
        self("v_mul_u32_u24 v4, 3840, v4\nv_add3_u32 v4, v4, v5, v6")
        self(f"v_cmp_gt_u32 vcc, 48, v0\nv_mov_b32 v5, {OOB}")
        self(f"s_add_u32 s{S_PQ}, s3, 0\ns_lshl_b32 s{S_PQ}, s{S_PQ}, 5\ns_add_u32 s{S_PQ}, s{S_PQ}, s{S_MT}\ns_mul_i32 s{S_PQ}, s{S_PQ}, {4*3840}")
        self(f"s_mul_i32 s{T0+4}, s{S_C}, 160\ns_add_u32 s{S_PQ}, s{S_PQ}, s{T0+4}")
        self("v_cndmask_b32 v17, v5, v4, vcc")
        self("s_waitcnt lgkmcnt(0)")
        self(f"s_mov_b64 s[{SX}:{SX+1}], s[{P_X}:{P_X+1}]\ns_mov_b64 s[{SA}:{SA+1}], s[{P_QKV}:{P_QKV+1}]")
        self.ts(1)

        BN = o.get("hbn", 1)
        bslot = lambda s: [3, 0, 1, 3][s] if s < 4 else s % 4
        bfree = lambda s: {3: 0, 4: 1, 5: 2, 6: max(BN + 1, 2)}.get(s, s - 4)
        def dmaB(s):
            fl = " nt" if s < o.get("hnt", 20) else ""
            return [(f"s_add_u32 m0, s{S_LB}, {lit(BB + bslot(s)*24576 + j*1024)}",
                     f"buffer_load_dwordx4 v{13+j}, {srd(SB)}, s{S_KB} offen{fl} lds" + (f"\ns_add_u32 s{S_KB}, s{S_KB}, 98304" if j == 2 else ""),
                     ("B", s), False) for j in range(3)]
        def A(S):
            return [(f"s_add_u32 m0, s{S_LA}, {lit(apos(S) + i*8192)}",
                     f"buffer_load_dwordx4 v12, {srd(SX)}, s{S_A2 if i else S_HM} offen{ant(S)} lds\ns_addk_i32 s{S_A2 if i else S_HM}, 128\ns_nop 0",
                     ("A", S), False) for i in range(2)]
        def PQ(cond):
            L = self.label()
            return [(None, f"{cond}\ns_cbranch_scc0 {L}\nbuffer_load_dword v34, v17, {srd(SA)}, s{S_PQ} offen nt\n{L}:", "p", True)]
        NP0 = o.get("np0", 3)
        px = [(None, l, "px", False) for l in self.px_load(VM())]
        assert PXI and not AF
        self.emit_ops(vm, px)
        self.emit_ops(vm, PQ(f"s_cmp_lt_u32 s3, {NP0}"))
        Lp = self.label()
        self.pack_params(0)
        self(f"s_lshl_b32 s{self.PK[1]}, s3, 12\ns_add_u32 s{self.PK[1]}, s{self.PK[1]}, {BB + 2*24576}")
        self(f"s_cmp_ge_u32 s3, 6\ns_cbranch_scc1 {Lp}")
        self.emit_ops(vm, [d[:3] + (True,) for d in self.pack_dma(0)])
        self(f"{Lp}:")
        self.mk_srd(SD, P_DBG, 256)
        L0 = self.label()
        self(f"s_cmp_lg_u32 s{S_ROW}, 0\ns_cbranch_scc1 {L0}")
        self(f"v_mov_b32 v4, s{T0+14}\nv_mov_b32 v5, s{T0+15}\nv_lshlrev_b32 v6, 20, v0")
        self(f"buffer_store_dwordx2 v[4:5], v6, {srd(SD)}, 0 offen sc1\n{L0}:"); vm.issue("p", True)
        if o.get("codepf", 1):
            self(f"s_getpc_b64 s[{T0+4}:{T0+5}]")
            self(f"s_lshl3_add_u32 s{T0+8}, s{S_MT}, s3\ns_lshl_b32 s{T0+8}, s{T0+8}, 9")
            self(f"v_and_b32 v4, 3, v0\nv_lshlrev_b32 v4, 7, v4\nv_add_u32 v4, s{T0+8}, v4")
            self(f"v_min_u32 v4, CODE_SPAN, v4")
            self(f"global_load_dword v35, v4, s[{T0+4}:{T0+5}]"); vm.issue("p")
        self.tstep("a")
        self.pack_dst(0)
        self(f"s_and_b32 s{T0+1}, s3, 3\ns_mul_i32 s{T0+1}, s{T0+1}, {8*3072}\ns_mul_i32 s{T0+2}, s{S_C}, 384\ns_add_u32 s{T0+1}, s{T0+1}, s{T0+2}")
        self(f"s_and_b32 s{T0+2}, s3, 4")
        for j in range(3):
            self.div24(j, 4, 5)
            self(f"v_and_b32 v6, 2, v4\nv_or_b32 v6, s{T0+2}, v6\nv_xor_b32 v5, v5, v6")
            self(f"v_mul_u32_u24 v4, 3072, v4\nv_lshl_add_u32 v4, v5, 4, v4\nv_add_u32 v{13+j}, s{T0+1}, v4")
        self(f"s_mov_b32 s{S_KB}, 0\ns_mul_i32 s{S_LB}, s3, 3072")
        self(f"s_mov_b32 s{SB+2}, {640*3072}\ns_mov_b32 s{SB+3}, 0x20000\ns_cmp_lt_u32 s3, 4")
        self(f"s_cselect_b64 s[{SB}:{SB+1}], s[{P_WG}:{P_WG+1}], s[{P_WU}:{P_WU+1}]")
        if not AF:
            self.a_dma_addr()
            self("s_barrier")
            self.emit_ops(vm, A(0))
        self.emit_ops(vm, dmaB(0))
        self.tstep("e")
        self.misc_pre()
        self.pack_tr_addr()
        self.a_addr(0)
        self("v_bfe_u32 v4, v0, 4, 1\nv_lshrrev_b32 v5, 5, v0\nv_bfe_u32 v6, v0, 2, 2")
        self(f"v_lshl_add_u32 v5, v5, 3, v6\nv_mul_u32_u24 v5, 384, v5\nv_mul_u32_u24 v7, 12288, v4\nv_add_u32 v5, v5, v7\nv_add_u32 v5, {BB}, v5")
        self("v_and_b32 v7, 1, v0\nv_lshl_add_u32 v5, v7, 3, v5")
        self("v_and_b32 v6, 2, v6\nv_lshl_or_b32 v6, v4, 2, v6\nv_bfe_u32 v7, v0, 1, 1")
        self(f"s_and_b32 s{T0+1}, s3, 3\ns_mul_i32 s{T0+1}, s{T0+1}, 6\nv_add_u32 v7, s{T0+1}, v7")
        for n in range(3):
            self(f"v_add_u32 v4, {2*n}, v7\nv_xor_b32 v4, v4, v6\nv_lshl_add_u32 v{20+n}, v4, 4, v5\nv_add_u32 v{23+n}, 49152, v{20+n}")
        if o.get("hstpre", 1):
            self.stats(vm, 0)
        self.tstep("b")
        self("s_barrier")
        pre = dmaB(1) + A(1)
        npre0 = o.get("hpre", 4)
        self.emit_ops(vm, pre[:npre0])
        ops = [(-9, d) for d in pre[npre0:]]
        nb = NP0
        PKS = -9
        lead = o.get("alead", 1)
        nextA = 2
        for b_ in range(2, 20):
            if b_ % 2 == 1 or b_ == 2:
                pass
            ops += [(bfree(b_), d) for d in dmaB(b_)]
            if b_ % 2 == 0:
                while nextA <= min(9, b_ // 2 + lead):
                    ops += [(2 * (nextA - 4) + 1, d) for d in A(nextA)]
                    nextA += 1
                if NP0 < 5 and b_ == o.get("pqb", 8):
                    ops += [(-9, d) for d in PQ(f"s_sub_u32 s{T0+1}, s3, {NP0}\ns_nop 0\ns_cmp_lt_u32 s{T0+1}, {5 - NP0}")]
                if b_ == o.get("hpxb", 4) and not PXI:
                    ops += [(-9, d) for d in px]
                if b_ == 6:
                    ops += [(-9, (None, self.nonce_load(), "nonce", False))]

        def reads(s, Y):
            S = s >> 1
            rd = []
            for sub in range(2):
                for m in range(2):
                    r = Y + (sub * 2 + m) * 4
                    rd.append(f"ds_read_b128 v[{r}:{r+3}], v{8 + (s&1)*2 + sub} offset:{apos(S) + m*4096}")
                for n in range(3):
                    r = Y + 16 + (sub * 3 + n) * 4
                    b = 20 + n + (3 if bslot(s) >= 2 else 0)
                    of = (bslot(s) % 2) * 24576 + sub * 6144
                    rd.append(f"ds_read_b64_tr_b16 v[{r}:{r+1}], v{b} offset:{of}")
                    rd.append(f"ds_read_b64_tr_b16 v[{r+2}:{r+3}], v{b} offset:{of+1536}")
            return rd
        def need(s):
            return lambda t: t == ("B", s) or t == ("A", s >> 1)
        self.ts(2)
        n = vm.wait(need(0))
        self(f"s_waitcnt vmcnt({n})\ns_barrier")
        self.ts(3); self.tstep("f")
        for r in reads(0, 80):
            self(r)
        self.emit_ops(vm, self.sched(ops, -1, o.get("hpost", 2)))
        self("s_waitcnt lgkmcnt(0)")
        self.align8()
        def csreg(n_, r):
            if n_ < 2: return [80, 96][n_] + r
            return (112 + r) if r < 8 else (r)
        ST = o.get("hst", 4)
        CK = o.get("hck", 15)
        EF = o.get("hef", 8)
        ST = -8 if o.get("hstpre", 1) else o.get("hst", 1)
        STS = o.get("hsts", 2) if ST < 0 else ST + 2
        wq = []
        for s in range(20):
            X = 80 + (s & 1) * 40; Y = 80 + ((s + 1) & 1) * 40
            extra = []
            also = {ST: ("px",), PKS: ("pk",), EF: ("early", "nonce"), CK: ("poll",), 18: ("cs",)}.get(s, ())
            p0 = need(s + 1)
            assert not any(p0(d[2]) or d[2] in also for _, d in ops), s
            n = vm.wait(lambda t: p0(t) or t in also)
            self(f"s_waitcnt vmcnt({n})" if n is not None else "s_nop 0")
            if s == CK:
                self.check_spin(26, 35)
            if s == EF:
                self.nonce_get()
            self("s_barrier")
            if s in (CK, EF):
                self.align8()
            self.tstep(s)
            fill = []
            extra2 = []
            if s in (ST, ST + 1):
                comp, st = self.stats_parts(0)
                ch = self.chunks(comp, 22)
                extra2 = ch[:11] if s == ST else ch[11:]
            if s == CK:
                for p in range(2):
                    fill.append(f"buffer_load_dwordx4 v[{56+4*p}:{59+4*p}], v30, {srd(SW)}, s{T0+2} offen offset:{16*p} sc1"); vm.issue("cs")
                for m in range(2):
                    fill.append(f"buffer_load_dwordx2 v[{26+2*m}:{27+2*m}], v31, {srd(SW)}, s{T0+5} offen offset:{m*256} sc1"); vm.issue("cs")
            fill += self.fill_ops(vm, self.sched(ops, s, o.get("hrate", 6)))
            if s == STS:
                for l in self.stats_parts(0)[1]:
                    fill.append(l); vm.issue("early")
            if s == BN:
                extra += self.pack_tr(36)
            PS0, PSN = o.get("hps", 3), o.get("hpsn", 2)
            if PS0 <= s < PS0 + 4 // PSN:
                for l in self.pack_stores(VM(), 36)[PSN * (s - PS0):PSN * (s - PS0 + 1)]:
                    fill.append(l); vm.issue("early")
            if s == EF:
                fill += self.early_flag(); vm.issue("ef")
            if s == 10:
                extra += self.p2_params()
            if s == 11:
                extra += self.check_addr(35)
            if s == CK - 2:
                fill.append(self.check_issue(26, 35)); vm.issue("poll", True)
            if s == 12:
                extra += [f"s_lshl_b32 s{T0+1}, s3, 8\nv_and_b32 v4, 31, v0", f"v_add_u32 v18, s{T0+1}, v3\nv_lshlrev_b32 v31, 3, v4",
                          f"s_mul_i32 s{T0+2}, s{S_C}, {8*1536}", f"s_add_u32 s{T0+2}, s{T0+2}, {CS}",
                          f"s_cmp_lt_u32 s3, 6\nv_lshlrev_b32 v30, 3, v18\ns_cselect_b32 s{T0+2}, s{T0+2}, {OOB}",
                          f"s_lshr_b32 s{T0+5}, s3, 2\ns_lshl1_add_u32 s{T0+5}, s{S_MT}, s{T0+5}", f"v_add_u32 v18, {CSL}, v18",
                          f"s_lshl_b32 s{T0+5}, s{T0+5}, 9\ns_nop 0", f"s_add_u32 s{T0+5}, s{T0+5}, {STATS}",
                          f"s_lshl_b32 s{S_LW}, s3, 2\ns_nop 0", f"s_lshr_b32 s{S_LW}, 0x76054132, s{S_LW}", f"s_and_b32 s{S_LW}, s{S_LW}, 7\ns_nop 0",
                          f"s_mul_i32 s{S_LW}, s{S_LW}, 20480"]
            if s == 13:
                extra += [f"s_and_b32 s{T0+6}, s3, 3\nv_lshrrev_b32 v5, 5, v0", f"s_mul_i32 s{T0+7}, s{T0+6}, 192", f"s_add_u32 s{T0+7}, s{T0+7}, {CSL}",
                          f"v_lshl_add_u32 v17, v5, 4, s{T0+7}",
                          "v_bfe_u32 v6, v0, 4, 1", "v_and_b32 v7, 15, v0\nv_lshlrev_b32 v6, 10, v6", "v_lshl_add_u32 v6, v5, 8, v6", "v_lshl_add_u32 v16, v7, 4, v6",
                          f"s_lshr_b32 s{T0+7}, s3, 2\ns_lshl1_add_u32 s{T0+7}, s{S_MT}, s{T0+7}", f"s_mul_i32 s{T0+7}, s{T0+7}, {68*4096}",
                          f"s_mul_i32 s{T0+8}, s{S_C}, {6*4096}", f"s_add_u32 s{T0+7}, s{T0+7}, s{T0+8}\ns_mul_i32 s{T0+6}, s{T0+6}, 3"]
            if s == 14:
                for n_ in range(3):
                    extra += [f"s_add_u32 s{T0+8}, s{T0+6}, {n_}\ns_lshr_b32 s{T0+9}, s{T0+8}, 1", f"s_lshl_b32 s{T0+9}, s{T0+9}, 12\ns_and_b32 s{T0+8}, s{T0+8}, 1",
                              f"s_lshl_b32 s{T0+8}, s{T0+8}, 9\ns_add_u32 s{T0+9}, s{T0+9}, s{T0+8}", f"s_add_u32 s{T0+10+n_}, s{T0+9}, s{T0+7}\ns_nop 0"]
            if s == 16:
                wq += self.w2_pair(2, 0, 3, 1)
            if s == 17:
                wq += self.w2_pair(1, 2, 4, 3) + self.w2_reg(0)
            if s == 19:
                wq += self.w2_reg(1)
            fill += self.take(vm, wq, o.get("hwr", 5))
            if s == 18:
                extra += ["v_add_f32 v56, v56, v57\nv_add_f32 v58, v58, v59", "v_add_f32 v60, v60, v61\nv_add_f32 v62, v62, v63",
                          "v_add_f32 v56, v56, v58\nv_add_f32 v60, v60, v62", "v_add_f32 v56, v56, v60\nv_mul_f32 v32, v27, v27",
                          f"ds_write_b32 v18, v56", "v_mul_f32 v34, v29, v29\nv_mov_b32 v33, v32",
                          "v_mov_b32 v35, v34\nv_mov_b32 v27, v26", "v_mov_b32 v29, v28\ns_nop 0"]
            if s < 19:
                rd = reads(s + 1, Y)
            else:
                rd = []
                for n_ in range(3):
                    for mat in range(2):
                        for a_ in range(2):
                            r = csreg(n_, (mat * 2 + a_) * 4)
                            rd.append(f"ds_read_b128 v[{r}:{r+3}], v17 offset:{n_*64 + a_*32 + mat*768}")
            mf = []
            for sub in range(2):
                for n_ in range(3):
                    for m in range(2):
                        c = 160 + (m * 3 + n_) * 16
                        cin = "0" if (s == 0 and sub == 0) else f"v[{c}:{c+15}]"
                        b = X + 16 + (sub * 3 + n_) * 4; a_ = X + (sub * 2 + m) * 4
                        mf.append(f"v_mfma_f32_32x32x16_bf16 v[{c}:{c+15}], v[{b}:{b+3}], v[{a_}:{a_+3}], {cin}")
            lists = [(rd, 0.0, 0.8)]
            if fill: lists.append((fill, 0.0, 1.0))
            if extra: lists.append((extra, 0.0, 0.9))
            if extra2: lists.append((extra2, 0.0, 1.0))
            self.interleave(mf, lists)
            self("s_waitcnt lgkmcnt(0)\ns_nop 0")
            assert s < 15 or not ops
        self.ts(4)
        self("s_nop 7\ns_nop 0")
        for n_ in range(3):
            for m in range(2):
                c = 160 + (m * 3 + n_) * 16
                nm = 26 + 2 * m
                for r in range(0, 16, 2):
                    k = csreg(n_, r)
                    self(f"v_pk_fma_f32 v[{c+r}:{c+r+1}], v[{nm}:{nm+1}], v[{k}:{k+1}], v[{c+r}:{c+r+1}]")
                for r in range(0, 8, 2):
                    self(f"v_pk_mul_f32 v[{c+r}:{c+r+1}], v[{c+r}:{c+r+1}], v[{32+2*m}:{33+2*m}]")
                for r in range(0, 8, 2):
                    self(f"v_pk_mul_f32 v[{c+r}:{c+r+1}], v[{c+r}:{c+r+1}], v[{c+8+r}:{c+9+r}]")
                for r in range(4):
                    self(f"v_cvt_pk_bf16_f32 v{c+8+r}, v{c+2*r}, v{c+2*r+1}")
                self(f"buffer_store_dwordx4 v[{c+8}:{c+11}], v16, {srd(SW)}, s{T0+10+n_} offen offset:{m*2048} sc1"); vm.issue("st")
        self.ts(5)
        assert all(not x[0] for x in wq)
        wq += self.w2_reg(2)
        npre = o.get("npre", 5)
        if npre:
            self("s_barrier")
        self.emit_items(self.take(vm, wq, npre))
        self.publish(vm)
        self.emit_items(self.take(vm, wq))
        self("s_branch P2_START")

    QS = 520
    QCSL = 75008
    QZ = 76800
    QST = 120832
    QAB = 65536
    QSCR = 122880

    def q_dmaA(self, S, wm):
        AB = self.QAB
        fl = " nt" if S < self.o.get("ant", 0) else ""
        out = [(f"s_add_u32 m0, s{S_LA}, {lit(AB + (S%3)*18432 + 2048 + i*8192 - S*128)}",
                f"buffer_load_dwordx4 v12, {srd(SX)}, {'s%d' % S_A2 if i else '0'} offen offset:{S*128}{fl} lds",
                ("A", S), False) for i in range(2)]
        if wm != 0:
            L = self.label()
            out.insert(0, (f"s_add_u32 m0, s{S_LA}, {lit(AB + (S%3)*18432 - 4096 - S*128)}",
                        f"s_mov_b64 exec, s[{S_HM}:{S_HM+1}]\ns_cbranch_execz {L}\nbuffer_load_dwordx4 v15, {srd(SX)}, 0 offen offset:{S*128}{fl} lds\n{L}:\ns_mov_b64 exec, -1\ns_nop 0",
                        ("A", S), True))
        return out

    def q_dmaB(self, s):
        fl = " nt" if s < self.o.get("qnt", 20) else ""
        return [(f"s_add_u32 m0, s{S_LB}, {lit((s%4)*16384 + j*1024)}",
                 f"buffer_load_dwordx4 v{13+j}, {srd(SB)}, s{S_KB} offen{fl} lds" + (f"\ns_add_u32 s{S_KB}, s{S_KB}, {32*3840}" if j == 1 else ""),
                 ("B", s), False) for j in range(2)]

    def q_path(self):
        vm = VM()
        AB, SCR = self.QAB, self.QSCR
        GS, GL = T0 + 14, T0 + 15
        self("Q_START:")
        self(f"s_lshr_b32 s{GS}, s{S_MT}, 1\ns_lshl3_add_u32 s{GS}, s3, s{GS}\ns_mul_i32 s{GS}, s{GS}, {8*3072}\ns_mul_i32 s{T0+2}, s{S_C}, 384\ns_add_u32 s{GS}, s{GS}, s{T0+2}")
        for j in range(3):
            self.div24(j, 4, 5)
            self(f"v_mul_u32_u24 v4, 3072, v4\nv_lshl_add_u32 v{23+j}, v5, 4, v4")
        self(f"s_mul_i32 s{GL}, s3, 3072\ns_add_u32 s{GL}, s{GL}, {SCR}")
        self(f"s_mov_b32 s{SA+2}, {640*3072}\ns_mov_b32 s{SA+3}, 0x20000\ns_mov_b32 s{SX+2}, {2048*1280}\ns_mov_b32 s{SX+3}, 0x20000")
        o = self.o
        PXI, AF, NG0 = o.get("pxi", 1), o.get("afirst", 0), o.get("ng0", 10)
        def apre():
            self.a_dma_addr()
            self("v_subrev_u32 v15, 61440, v12")
            self(f"s_mov_b32 s{S_A2}, 81920\ns_lshl_b32 s{S_LA}, s3, 10")
            self(f"s_mov_b64 s[{S_HM}:{S_HM+1}], 0\ns_cmp_eq_u32 s3, 5\ns_cselect_b64 s[{S_HM}:{S_HM+1}], -1, s[{S_HM}:{S_HM+1}]")
            self(f"s_cmp_eq_u32 s3, 4\ns_cselect_b32 s{S_HM}, 0xffffff00, s{S_HM}\ns_cselect_b32 s{S_HM+1}, -1, s{S_HM+1}")
        self.px_pre(1)
        if AF: apre()
        self(f"s_bitcmp0_b32 s{S_MT}, 0\ns_waitcnt lgkmcnt(0)")
        self(f"s_cselect_b64 s[{SA}:{SA+1}], s[{P_WG}:{P_WG+1}], s[{P_WU}:{P_WU+1}]\ns_mov_b64 s[{SX}:{SX+1}], s[{P_X}:{P_X+1}]")
        self.ts(1)
        assert PXI and not AF
        for l in self.px_load(vm): self(l)
        L = self.label()
        if NG0 == 4:
            self(f"s_cmp_ge_u32 s3, 4\ns_cbranch_scc1 {L}")
        for j in range(3):
            self(f"s_add_u32 m0, s{GL}, {j*1024}\ns_nop 0")
            self(f"buffer_load_dwordx4 v{23+j}, {srd(SA)}, s{GS} offen nt lds"); vm.issue("gu", NG0 == 4)
        self(f"{L}:")
        if NG0 == 10:
            L = self.label()
            self(f"s_and_b32 s{T0+1}, s3, 6\ns_cmp_lg_u32 s{T0+1}, 4\ns_cbranch_scc1 {L}\ns_add_u32 s{GS}, s{GS}, {4*64*3072}")
            for j in range(3):
                self(f"s_add_u32 m0, s{GL}, {4*3072 + j*1024}\ns_nop 0")
                self(f"buffer_load_dwordx4 v{23+j}, {srd(SA)}, s{GS} offen nt lds"); vm.issue("gu", True)
            self(f"{L}:")
        self.tstep("a")
        self.mk_srd(SB, P_QKV, 640 * 3840)
        self(f"s_lshl_b32 s{T0+1}, s3, 7\ns_mul_i32 s{T0+2}, s{S_C}, 160")
        for j in range(2):
            self(f"v_add_u32 v5, s{T0+1}, v0")
            if j: self("v_add_u32 v5, 64, v5")
            self("v_mul_u32_u24 v4, 2185, v5\nv_lshrrev_b32 v4, 16, v4\nv_mul_u32_u24 v6, 30, v4\nv_sub_u32 v5, v5, v6")
            self("v_cmp_gt_u32 vcc, 32, v4")
            self("v_and_b32 v6, 24, v4\nv_bfe_u32 v7, v4, 1, 2\nv_add_u32 v6, v6, v7\nv_and_b32 v7, 1, v4\nv_lshl_add_u32 v6, v7, 2, v6")
            self("v_mul_u32_u24 v6, 3840, v6\nv_lshl_add_u32 v6, v5, 4, v6")
            self("v_mul_u32_u24 v7, 26, v5\nv_lshrrev_b32 v7, 8, v7\nv_mul_u32_u24 v7, 1120, v7")
            self(f"v_add3_u32 v6, v6, v7, s{T0+2}\nv_mov_b32 v7, {OOB}\nv_cndmask_b32 v{13+j}, v7, v6, vcc")
        self(f"s_mov_b32 s{S_KB}, 0\ns_lshl_b32 s{S_LB}, s3, 11")
        if not AF:
            apre()
            self("s_barrier")
            self.emit_ops(vm, self.q_dmaA(0, 1))
        self.emit_ops(vm, self.q_dmaB(0))
        self.tstep("e")
        self.misc_pre()
        self.mk_srd(SD, P_DBG, 256)
        for r in range(4):
            self(f"v_mov_b32 v{76+r}, 0x3f803f80")
        self(f"v_lshrrev_b32 v4, 3, v0\nv_min_u32 v4, 2, v4\nv_mul_u32_u24 v4, 18432, v4\nv_and_b32 v5, 7, v0\nv_lshl_add_u32 v4, v5, 4, v4\nv_add_u32 v4, {AB}, v4")
        self("ds_write_b128 v4, v[76:79]")
        self.a_addr(AB)
        self("v_bfe_u32 v4, v0, 4, 1\nv_lshrrev_b32 v5, 5, v0\nv_bfe_u32 v6, v0, 2, 2\nv_and_b32 v7, 3, v0")
        self("v_lshlrev_b32 v7, 3, v7\nv_lshl_add_u32 v7, v4, 5, v7")
        self("v_lshlrev_b32 v4, 3, v5\nv_lshl_add_u32 v5, v6, 1, v4\nv_add_u32 v4, v4, v6")
        self(f"s_and_b32 s{T0+1}, s3, 3\ns_lshl_b32 s{T0+1}, s{T0+1}, 7\ns_lshl_b32 s{T0+2}, s3, 6\ns_add_u32 s{T0+2}, s{T0+2}, {SCR}")
        self(f"v_mul_u32_u24 v5, 480, v5\nv_add3_u32 v20, v5, v7, s{T0+1}")
        self(f"v_mul_u32_u24 v4, 384, v4\nv_add3_u32 v21, v4, v7, s{T0+2}")
        self(f"s_and_b32 s{T0+2}, s{S_MT}, 1\ns_lshl1_add_u32 s{T0+1}, s{S_C}, s{T0+2}\ns_mul_i32 s{T0+1}, s{T0+1}, {192*32}")
        self(f"s_lshr_b32 s{T0+2}, s{S_MT}, 1\ns_lshl2_add_u32 s{T0+1}, s{T0+2}, s{T0+1}")
        self(f"s_lshl_b32 s{T0+2}, s3, 10\ns_add_u32 s{T0+1}, s{T0+1}, s{T0+2}\ns_add_u32 s{T0+1}, s{T0+1}, {CS}")
        self(f"s_cmp_lt_u32 s3, 6\ns_cselect_b32 s{T0+1}, s{T0+1}, {OOB}")
        self("v_lshrrev_b32 v22, 5, v0\nv_lshlrev_b32 v4, 5, v0\nv_lshl_add_u32 v22, v22, 26, v4")
        self(f"s_xor_b32 s{S_LW}, s3, 4\ns_mul_i32 s{S_LW}, s{S_LW}, 20480")
        self.stats(vm, 1)
        self.tstep("b")
        assert NG0 == 10
        n = vm.wait(lambda t: t == "gu")
        self(f"s_waitcnt vmcnt({n})\ns_barrier")
        self.tstep("c")
        for sub in range(5):
            r = 36 + sub * 4
            self(f"ds_read_b64_tr_b16 v[{r}:{r+1}], v21 offset:{sub*6144}\nds_read_b64_tr_b16 v[{r+2}:{r+3}], v21 offset:{sub*6144+1536}")
        self("s_cmp_ge_u32 s3, 4\ns_cbranch_scc1 Q_WM1")
        vm1 = copy.deepcopy(vm)
        self.q_main(vm, 0)
        self("s_branch Q_ATT")
        self("Q_WM1:")
        self.q_main(vm1, 1)
        self("Q_ATT:")
        self.attention()

    def q_main(self, vm, wm):
        o = self.o
        QS, CSL, QZ, QST, AB = self.QS, self.QCSL, self.QZ, self.QST, self.QAB
        GS, GL = T0 + 14, T0 + 15
        NM = 3 if wm == 0 else 2
        toff = [0, 2048, 6144] if wm == 0 else [2048, 6144]
        dmaB = self.q_dmaB
        dmaA = lambda S: self.q_dmaA(S, wm)
        pre = dmaB(1) + dmaA(1)
        npre0 = o.get("qpre", 3) + wm
        self.emit_ops(vm, pre[:npre0])
        self("s_waitcnt lgkmcnt(0)")
        for sub in range(5):
            r = 36 + sub * 4
            self(f"v_mfma_f32_32x32x16_bf16 v[56:71], v[76:79], v[{r}:{r+3}], {'0' if sub == 0 else 'v[56:71]'}")
        ops = [(-9, d) for d in pre[npre0:]]
        PD = -9
        BN = -9
        CSs = o.get("qcs", 6)
        ST = o.get("qst", 3)
        AT = o.get("qat", 7)
        CK = o.get("qck", 15)
        PXI, NG0 = o.get("pxi", 1), o.get("ng0", 10)
        ST = -8
        CSs = -9
        STS = o.get("qsts", 3)
        wq = []
        px = [(None, l, "px", False) for l in self.px_load(VM())]
        gu1 = [(f"s_add_u32 m0, s{GL}, {lit(j*1024)}", f"buffer_load_dwordx4 v{23+j}, {srd(SA)}, s{GS} offen nt lds", "gu", False) for j in range(3)]
        gu2 = []
        for j in range(3):
            L = self.label()
            gu2.append(((f"s_add_u32 s{GS}, s{GS}, {4*64*3072}\n" if j == 0 else "") + f"s_add_u32 m0, s{GL}, {lit(4*3072 + j*1024)}",
                        f"s_cmp_ge_u32 s3, 6\ns_cbranch_scc1 {L}\nbuffer_load_dwordx4 v{23+j}, {srd(SA)}, s{GS} offen nt lds\n{L}:", "gu", True))
        if wm == 1 and NG0 == 4:
            ops += [(-9, d) for d in gu1]
        for b_ in range(2, 20):
            ops += [(b_ - 4, d) for d in dmaB(b_)]
            if b_ == PD:
                ops += [(-9, d) for d in self.pack_dma(0)]
            if b_ % 2 == 1 and b_ // 2 + 1 < 10:
                S_ = b_ // 2 + 1
                ops += [(2 * (S_ - 3) + 1, d) for d in dmaA(S_)]
                if b_ == 7:
                    ops += [(-9, (None, self.nonce_load(), "nonce", False))]
                if b_ == 3:
                    if not PXI:
                        ops += [(-9, d) for d in px]
                if b_ == 5 and wm == 1:
                    if NG0 != 10:
                        ops += [(-9, d) for d in gu2]
        def reads(s, Y):
            S = s >> 1
            rd = []
            for sub in range(2):
                for m in range(NM):
                    r = Y + (sub * 3 + m) * 4
                    rd.append(f"ds_read_b128 v[{r}:{r+3}], v{8 + (s&1)*2 + sub} offset:{(S%3)*18432 + toff[m]}")
                for n in range(2):
                    r = Y + 24 + (sub * 2 + n) * 4
                    of = (s % 4) * 16384 + sub * 7680 + n * 64
                    rd.append(f"ds_read_b64_tr_b16 v[{r}:{r+1}], v20 offset:{of}")
                    rd.append(f"ds_read_b64_tr_b16 v[{r+2}:{r+3}], v20 offset:{of+480}")
            return rd
        def need(s):
            return lambda t: t == ("B", s) or t == ("A", s >> 1)
        self.ts(2)
        n = vm.wait(need(0))
        self(f"s_waitcnt vmcnt({n}) lgkmcnt(0)\ns_barrier")
        self.ts(3); self.tstep("f")
        for r in reads(0, 80):
            self(r)
        self.emit_ops(vm, self.sched(ops, -1, o.get("qpost", 2)))
        self("s_waitcnt lgkmcnt(0)")
        self.align8()
        sc = 20 ** -0.5 * 1.4426950408889634
        for s in range(20):
            X = 80 + (s & 1) * 40; Y = 80 + ((s + 1) & 1) * 40
            also = ()
            for k_, t_ in ((ST, "px"), (BN, "pk"), (CSs, "gu"), (AT, "early"), (AT, "nonce"), (CK, "poll"), (CK + 2, "stat")):
                if s == k_: also += (t_,)
            p0 = need(s + 1)
            assert not any(p0(d[2]) or d[2] in also for _, d in ops), (s, wm)
            n = vm.wait(lambda t: p0(t) or t in also)
            self(f"s_waitcnt vmcnt({n})" if n is not None else "s_nop 0")
            if s == CK:
                self.check_spin(26, 35)
            if s == AT:
                self.nonce_get()
            self("s_barrier")
            if s in (CK, AT):
                self.align8()
            self.tstep(s)
            fill = []; extra = []; extra2 = []; mfx = []
            if s in (ST, ST + 1):
                comp, st = self.stats_parts(1)
                ch = self.chunks(comp, 16)
                extra2 = ch[:8] if s == ST else ch[8:]
            if s == ST + 2:
                for l in self.stats_parts(1)[1]:
                    fill.append(l); vm.issue("early")
            if s == BN - 1:
                assert not any(d[2] == "pk" for _, d in ops)
                extra += self.scc_chunks(self.capture(lambda: self.pack_dst(0)), 4)
            if s == BN:
                extra += self.pack_tr(36)
            if s == CSs:
                for sub in range(5):
                    r = 36 + sub * 4
                    extra += [f"ds_read_b64_tr_b16 v[{r}:{r+1}], v21 offset:{sub*6144}", f"ds_read_b64_tr_b16 v[{r+2}:{r+3}], v21 offset:{sub*6144+1536}"]
            if s == CSs + 1:
                for sub in range(5):
                    r = 36 + sub * 4
                    mfx.append(f"v_mfma_f32_32x32x16_bf16 v[56:71], v[76:79], v[{r}:{r+3}], {'0' if sub == 0 else 'v[56:71]'}")
            if s == CSs + 2:
                fill.append(f"buffer_store_dword v56, v22, {srd(SW)}, s{T0+1} offen sc1"); vm.issue("early")
            if s == CK:
                fill.append(f"buffer_load_dwordx2 v[30:31], v6, {srd(SW)}, s{T0+5} offen sc1"); vm.issue("stat")
            fill += self.fill_ops(vm, self.sched(ops, s, o.get("qrate", 5) + wm * o.get("qrate1", 1)))
            if s == STS:
                fill += [self.stats_parts(1)[1][0], f"buffer_store_dword v56, v22, {srd(SW)}, s{T0+1} offen sc1"]; vm.issue("early"); vm.issue("early")
            if s in (BN + 1, BN + 2):
                k_ = 2 * (s - BN - 1)
                fill += self.pack_stores(VM(), 36)[k_:k_ + 2]; vm.issue("early"); vm.issue("early")
            if s == AT:
                fill += self.early_flag(); vm.issue("ef")
            if s == 9:
                extra += self.p2_params()
            if s == 10:
                extra += self.check_addr(35)
            if s == 11:
                zq = QZ - 16 * QS
                extra += ["v_and_b32 v4, 15, v0\nv_lshrrev_b32 v5, 4, v0", f"s_mul_i32 s{T0+1}, s3, {16*QS}", f"v_mul_u32_u24 v6, {QS}, v4",
                          f"v_add_u32 v7, s{T0+1}, v6\nv_add_u32 v34, v7, v6", "v_lshl_add_u32 v25, v5, 3, v34", "v_lshl_add_u32 v6, v5, 3, v7",
                          f"v_mov_b32 v4, {zq}",
                          f"s_mov_b32 vcc_lo, 0x55555555\ns_mov_b32 vcc_hi, 0x55555555\nv_cndmask_b32 v21, v4, v6, vcc\nv_cndmask_b32 v23, v6, v4, vcc",
                          f"s_mov_b64 vcc, 0x5555\nv_cndmask_b32 v22, v4, v7, vcc\ns_nop 0", f"s_mov_b64 vcc, 0xaaaa\nv_cndmask_b32 v24, v4, v7, vcc\ns_nop 0"]
            if s == 12:
                extra += ["v_lshrrev_b32 v6, 2, v0\nv_and_b32 v7, 3, v0", f"v_mul_u32_u24 v6, {2*QS}, v6", f"v_add_u32 v6, s{T0+1}, v6\ns_nop 0",
                          "v_lshl_add_u32 v1, v7, 3, v6", "v_mad_u32_u24 v18, v7, 40, v6",
                          f"s_and_b32 s{T0+6}, s3, 3\nv_lshrrev_b32 v5, 5, v0", f"s_lshl_b32 s{T0+7}, s{T0+6}, 8\nv_and_b32 v4, 15, v0", f"s_add_u32 s{T0+7}, s{T0+7}, {CSL}",
                          f"v_lshl_add_u32 v17, v5, 4, s{T0+7}", "v_lshlrev_b32 v6, 8, v5\nv_lshlrev_b32 v4, 4, v4", "v_bfe_u32 v7, v0, 4, 1",
                          "v_lshl_add_u32 v7, v7, 26, v6", "v_add_u32 v16, v7, v4\ns_nop 0"]
            if s == 13:
                extra += [f"s_lshr_b32 s{T0+1}, s3, 2\ns_lshl1_add_u32 s{T0+1}, s{S_MT}, s{T0+1}", f"s_mul_i32 s{T0+1}, s{T0+1}, {68*4096}",
                          f"s_and_b32 s{T0+2}, s3, 3\ns_lshl_b32 s{T0+2}, s{T0+2}, 10", f"s_add_u32 s{T0+1}, s{T0+1}, s{T0+2}\ns_lshl_b32 s{T0+2}, s{S_C}, 13",
                          f"s_add_u32 s{T0+2}, s{T0+2}, s{T0+1}\ns_lshr_b32 s{T0+12}, s{S_C}, 1", f"s_add_u32 s{T0+2}, s{T0+2}, {48*4096}", f"s_add_u32 s{T0+3}, s{T0+2}, 4096",
                          f"s_lshl_b32 s{T0+12}, s{T0+12}, 12\ns_add_u32 s{T0+1}, s{T0+1}, s{T0+12}",
                          f"s_and_b32 s{T0+12}, s{S_C}, 1\ns_lshl_b32 s{T0+12}, s{T0+12}, 9", f"s_add_u32 s{T0+1}, s{T0+1}, s{T0+12}\ns_nop 0", f"s_add_u32 s{T0+1}, s{T0+1}, {64*4096}"]
            if s == CK - 2:
                fill.append(self.check_issue(26, 35)); vm.issue("poll", True)
            if s == CK - 1:
                extra += [f"s_lshl_b32 s{T0+5}, s3, 6\ns_lshl_b32 s{T0+4}, s{S_MT}, 7", f"v_add_u32 v4, s{T0+5}, v0\ns_sub_u32 s{T0+4}, s{T0+4}, 16",
                          "v_min_u32 v4, 143, v4", f"v_add_u32 v5, s{T0+4}, v4\nv_max_i32 v5, 0, v5",
                          f"v_lshlrev_b32 v6, 3, v5\nv_lshlrev_b32 v4, 3, v4", f"v_add_u32 v32, {QST}, v4", f"s_mov_b32 s{T0+5}, {STATS}",
                          f"s_cmp_lt_u32 s3, 3\ns_nop 0\ns_cselect_b32 s{T0+5}, s{T0+5}, {OOB}"]
            if s == 16:
                wq += self.w2_pair(6, 2, 7, 3) + self.w2_reg(0)
                extra += [f"s_or_b32 s{T0+4}, s{S_MT}, s3\ns_cmp_eq_u32 s{T0+4}, 0\ns_cselect_b32 s{T0+4}, 8, 0\nv_lshrrev_b32 v5, 4, v0",
                          "v_bfe_u32 v6, v0, 1, 3", f"v_add_u32 v7, 1, v6\nv_max_u32 v7, s{T0+4}, v7", f"v_add_u32 v6, 8, v6\nv_lshlrev_b32 v5, 2, v5",
                          "v_sub_u32 v6, v6, v7\nv_sub_u32 v5, v5, v7", f"v_mov_b32 v4, {f2u(-1e30)}"]
                for r in range(4):
                    extra += [f"v_add_u32 v7, {r}, v5\nv_cmp_ge_u32 vcc, v6, v7\ns_nop 1\ns_nop 0\nv_cndmask_b32_e64 v{12+r}, v4, 0, vcc"]
            if s == 17:
                assert CK + 2 <= 17
                if wm == 0:
                    L = self.label()
                    extra += [f"s_cmp_ge_u32 s3, 3\ns_cbranch_scc1 {L}\nds_write_b64 v32, v[30:31]\n{L}:"]
                extra += [f"s_and_b32 s{T0+6}, s3, 3\nv_and_b32 v4, 31, v0", f"v_mul_u32_u24 v6, {QS}, v4", f"s_lshl_b32 s{T0+6}, s{T0+6}, 7\nv_lshrrev_b32 v5, 5, v0",
                          f"v_lshlrev_b32 v5, 3, v5\nv_lshlrev_b32 v4, 3, v4", f"v_add3_u32 v35, v6, v5, s{T0+6}",
                          f"v_add_u32 v4, {QST}, v4", f"s_lshl_b32 s{T0+4}, s3, 7\nv_lshrrev_b32 v5, 4, v0", f"s_add_u32 s{T0+4}, s{T0+4}, {QST}",
                          "v_and_b32 v6, 15, v0\nv_and_b32 v7, 1, v0", f"v_lshl_add_u32 v6, v6, 3, s{T0+4}", f"v_lshl_add_u32 v7, v7, 3, s{T0+4}",
                          "v_lshl_add_u32 v7, v5, 6, v7"]
                for h in range(1, 4):
                    extra.append(f"v_cmp_eq_u32_e64 s[{T0+4+2*h}:{T0+5+2*h}], {h}, v5")
            if s == 18:
                rowoff = [0, 16, 48] if wm == 0 else [80, 112]
                for m in range(NM):
                    extra.append(f"ds_read_b32 v{26+m}, v4 offset:{rowoff[m]*8}")
                extra.append(f"ds_read_b32 v29, v6 offset:{16*8+4}")
                for r in range(4):
                    extra.append(f"ds_read_b32 v{30+r}, v7 offset:{4+16*r}")
            if s == 19:
                wq += self.w2_pair(4, 0, 5, 1) + self.w2_reg(1)
            fill += self.take(vm, wq, o.get("qwr", 4))
            def mfma(sub, n_, m):
                c = 160 + (m * 2 + n_) * 16
                cin = "0" if (s == 0 and sub == 0) else f"v[{c}:{c+15}]"
                b = X + 24 + (sub * 2 + n_) * 4; a_ = X + (sub * 3 + m) * 4
                return f"v_mfma_f32_32x32x16_bf16 v[{c}:{c+15}], v[{b}:{b+3}], v[{a_}:{a_+3}], {cin}"
            if s < 19:
                mf = mfx + [mfma(sub, n_, m) for sub in range(2) for n_ in range(2) for m in range(NM)]
                lists = [(reads(s + 1, Y), 0.0, 0.8)]
                if fill: lists.append((fill, 0.0, 1.0))
                if extra: lists.append((extra, 0.0, 0.9))
                if extra2: lists.append((extra2, 0.0, 0.9))
                self.interleave(mf, lists)
                self("s_waitcnt lgkmcnt(0)\ns_nop 0")
            else:
                mf = [mfma(sub, n_, m) for m in range(NM) for sub in range(2) for n_ in range(2)]
                extra = ["v_and_b32 v6, 1, v0\nv_mov_b32 v4, 0", "v_add_u32 v8, -1, v6\nv_sub_u32 v9, 0, v6",
                         f"v_add_u32 v5, {QZ}, v3", "ds_write_b32 v5, v4",
                         f"v_mul_f32 v29, {f2u(sc)}, v29", "v_mul_f32 v76, v29, v30\nv_mul_f32 v77, v29, v31", "v_mul_f32 v78, v29, v32\nv_mul_f32 v79, v29, v33",
                         "v_mov_b32 v10, v27\nv_mov_b32 v11, v27", "v_mov_b32 v27, v26\nv_mov_b32 v29, v28"]
                self.interleave(mf[:-4], [(fill, 0.0, 1.0), (extra, 0.0, 1.0)])
                if wm == 0:
                    self("s_nop 7\ns_mov_b32 exec_lo, 1\ns_mov_b32 exec_hi, 1\ns_nop 0")
                    for n_ in range(2):
                        for a_ in range(4):
                            c = 160 + n_ * 16 + a_ * 4
                            self(f"ds_write_b128 v17, v[{c}:{c+3}] offset:{n_*128 + a_*32}")
                    self("s_mov_b64 exec, -1\ns_nop 0")
                self(mf[-4]); self(mf[-3])
                self("s_waitcnt lgkmcnt(0)\ns_barrier")
                for n_ in range(2):
                    for a_ in range(4):
                        r = 80 + n_ * 16 + a_ * 4
                        self(f"ds_read_b128 v[{r}:{r+3}], v17 offset:{n_*128 + a_*32}")
                self(mf[-2]); self(mf[-1])
            assert s < 15 or not ops
        self.ts(4)
        wq += self.w2_reg(2)
        w2 = self.take(vm, wq, o.get("qwf", 4))
        self.q_rest = wq
        self("s_waitcnt lgkmcnt(0)\ns_nop 0")
        rowoff = [0, 16, 48] if wm == 0 else [80, 112]
        body = []
        for m in range(NM):
            pr = [26, 10, 28][m]
            for n_ in range(2):
                c = 160 + (m * 2 + n_) * 16
                for a_ in range(4):
                    for r in (4 * a_, 4 * a_ + 2):
                        body.append(f"v_pk_fma_f32 v[{c+r}:{c+r+1}], v[{pr}:{pr+1}], v[{80+n_*16+r}:{81+n_*16+r}], v[{c+r}:{c+r+1}]")
                for a_ in range(4):
                    body.append(f"v_cvt_pk_bf16_f32 v{c+4*a_}, v{c+4*a_}, v{c+4*a_+1}\nv_cvt_pk_bf16_f32 v{c+4*a_+1}, v{c+4*a_+2}, v{c+4*a_+3}")
                    body.append(f"ds_write_b64 v35, v[{c+4*a_}:{c+4*a_+1}] offset:{rowoff[m]*QS + n_*64 + a_*16}")
        if o.get("qw2fold", 1):
            self.interleave(body, [(w2, 0.0, 1.0)])
        else:
            for it in body + w2: self(it)

    def attention(self):
        QS = self.QS
        vm = VM()
        self("s_waitcnt lgkmcnt(0)\ns_barrier")
        self.ts(5)
        Qe, Qo, Ke, Ko, Vf, Vr = 160, 176, 192, 208, 224, 96
        Sx, Pf, O, R = 240, 80, 160, 176
        for h in range(4):
            self(f"ds_read_b64 v[{Qe+4*h}:{Qe+4*h+1}], v21 offset:{16*QS + 40*h}")
            self(f"ds_read_b64 v[{Qe+4*h+2}:{Qe+4*h+3}], v22 offset:{16*QS + 40*h + 32}")
            self(f"ds_read_b64 v[{Ke+4*h}:{Ke+4*h+1}], v25 offset:{160 + 40*h}")
            self(f"ds_read_b64 v[{Ke+4*h+2}:{Ke+4*h+3}], v34 offset:{160 + 40*h + 32}")
        for h in range(4):
            self(f"ds_read_b64 v[{Qo+4*h}:{Qo+4*h+1}], v23 offset:{16*QS + 40*h}")
            self(f"ds_read_b64 v[{Qo+4*h+2}:{Qo+4*h+3}], v24 offset:{16*QS + 40*h + 32}")
            self(f"ds_read_b64 v[{Ko+4*h}:{Ko+4*h+1}], v25 offset:{QS + 160 + 40*h}")
            self(f"ds_read_b64 v[{Ko+4*h+2}:{Ko+4*h+3}], v34 offset:{QS + 160 + 40*h + 32}")
        wq = self.q_rest
        na = self.o.get("qwa", 2)
        self.emit_items(self.take(vm, wq, na))
        self("s_waitcnt lgkmcnt(0)" if self.instr else "s_waitcnt lgkmcnt(15)")
        self.align8()
        for h in range(4):
            self(f"v_mfma_f32_16x16x32_bf16 v[{Sx+4*h}:{Sx+4*h+3}], v[{Ke+4*h}:{Ke+4*h+3}], v[{Qe+4*h}:{Qe+4*h+3}], v[12:15]")
        self("s_waitcnt lgkmcnt(0)\ns_nop 0")
        for h in range(4):
            self(f"v_mfma_f32_16x16x32_bf16 v[{Sx+4*h}:{Sx+4*h+3}], v[{Ko+4*h}:{Ko+4*h+3}], v[{Qo+4*h}:{Qo+4*h+3}], v[{Sx+4*h}:{Sx+4*h+3}]")
        for h in range(4):
            self(f"ds_read_b64_tr_b16 v[{Vf+4*h}:{Vf+4*h+1}], v1 offset:{320 + 40*h}")
            self(f"ds_read_b64_tr_b16 v[{Vf+4*h+2}:{Vf+4*h+3}], v1 offset:{QS + 320 + 40*h}")
        self(f"ds_read_b64_tr_b16 v[{Vr}:{Vr+1}], v18 offset:{320 + 32}")
        self(f"ds_read_b64_tr_b16 v[{Vr+2}:{Vr+3}], v18 offset:{QS + 320 + 32}")
        M = 4
        for h in range(4):
            s = Sx + 4 * h
            self(f"v_pk_mul_f32 v[{s}:{s+1}], v[{s}:{s+1}], v[76:77]\nv_pk_mul_f32 v[{s+2}:{s+3}], v[{s+2}:{s+3}], v[78:79]")
        for h in range(4):
            s = Sx + 4 * h
            self(f"v_max3_f32 v{M+h}, v{s}, v{s+1}, v{s+2}")
        for h in range(4):
            s = Sx + 4 * h
            self(f"v_max_f32 v{M+h}, v{M+h}, v{s+3}")
        def red(op, post):
            self(f"s_nop 1\nv_permlane16_swap_b32 v{M}, v{M+1}\nv_permlane16_swap_b32 v{M+2}, v{M+3}\ns_nop 0")
            self(f"{op} v{M}, v{M}, v{M+1}\n{op} v{M+2}, v{M+2}, v{M+3}\ns_nop 1\nv_permlane32_swap_b32 v{M}, v{M+2}\ns_nop 0\n{op} v{M}, v{M}, v{M+2}")
            if post: self(post)
            self(f"v_mov_b32 v{M+2}, v{M}\ns_nop 1\nv_permlane32_swap_b32 v{M}, v{M+2}\ns_nop 0")
            self(f"v_mov_b32 v{M+1}, v{M}\nv_mov_b32 v{M+3}, v{M+2}\ns_nop 1\nv_permlane16_swap_b32 v{M}, v{M+1}\nv_permlane16_swap_b32 v{M+2}, v{M+3}\ns_nop 0")
        red("v_max_f32", None)
        self.emit_items(self.take(vm, wq, na))
        for h in range(4):
            for r in range(4):
                self(f"v_sub_f32 v{Sx+4*h+r}, v{Sx+4*h+r}, v{M+h}")
        for h in range(4):
            for r in range(4):
                self(f"v_exp_f32 v{Sx+4*h+r}, v{Sx+4*h+r}")
        self("s_nop 0")
        for h in range(4):
            s = Sx + 4 * h
            self(f"v_add_f32 v{M+h}, v{s}, v{s+1}\nv_add_f32 v10, v{s+2}, v{s+3}\nv_add_f32 v{M+h}, v{M+h}, v10")
        self.align8()
        for h in range(4):
            s = Sx + 4 * h
            self(f"v_pk_mul_f32 v[{s}:{s+1}], v[{s}:{s+1}], v[30:31]\nv_pk_mul_f32 v[{s+2}:{s+3}], v[{s+2}:{s+3}], v[32:33]")
        red("v_add_f32", f"v_rcp_f32 v{M}, v{M}\ns_nop 0")
        assert all(not x[0] for x in wq)
        for h in range(4):
            s = Sx + 4 * h
            for r in range(4):
                self(f"v_mul_f32 v{s+r}, v{s+r}, v{M+h}")
            self(f"v_cvt_pk_bf16_f32 v{s}, v{s}, v{s+1}\nv_cvt_pk_bf16_f32 v{s+1}, v{s+2}, v{s+3}")
            p = Pf + 4 * h
            self(f"v_and_b32 v{p}, v{s}, v8\nv_and_b32 v{p+1}, v{s+1}, v8\nv_and_b32 v{p+2}, v{s}, v9\nv_and_b32 v{p+3}, v{s+1}, v9")
        self("s_waitcnt lgkmcnt(0)\ns_nop 0")
        for h in range(4):
            self(f"v_mfma_f32_16x16x32_bf16 v[{O+4*h}:{O+4*h+3}], v[{Vf+4*h}:{Vf+4*h+3}], v[{Pf+4*h}:{Pf+4*h+3}], 0")
        for h in range(4):
            self(f"v_mfma_f32_16x16x32_bf16 v[{R+4*h}:{R+4*h+3}], v[{Vr}:{Vr+3}], v[{Pf+4*h}:{Pf+4*h+3}], 0")
        self("s_nop 3")
        for k in range(2):
            d = 192 + 4 * k
            for q in range(4):
                self(f"v_cvt_pk_bf16_f32 v{d+q}, v{O+8*k+2*q}, v{O+8*k+2*q+1}")
            self(f"buffer_store_dwordx4 v[{d}:{d+3}], v2, {srd(SW)}, s{T0+2+k} offen sc1"); vm.issue("st")
        for h in range(1, 4):
            for r in range(4):
                self(f"v_cndmask_b32_e64 v{R+r}, v{R+r}, v{R+4*h+r}, s[{T0+4+2*h}:{T0+5+2*h}]")
        self(f"v_cvt_pk_bf16_f32 v200, v{R}, v{R+1}\nv_cvt_pk_bf16_f32 v201, v{R+2}, v{R+3}")
        self("v_mov_b32 v202, v200\nv_mov_b32 v203, v201\ns_nop 1\nv_permlane16_swap_b32 v200, v202\nv_permlane16_swap_b32 v201, v203\ns_nop 0")
        self(f"buffer_store_dwordx4 v[200:203], v16, {srd(SW)}, s{T0+1} offen sc1"); vm.issue("st")
        if self.o.get("tsa"): self.ts(2)
        self.emit_items(self.take(vm, wq))
        self.publish(vm)

    def p2(self):
        vm = VM()
        o = self.o
        self("P2_START:")
        PH, t, so, fo = T0 + 3, T0 + 5, T0 + 6, T0 + 4
        LW = S_LW
        KS = T0 + 7
        KL = 4
        self.emit_items(self.take(vm, self.w2_reg(3)))
        self(f"s_lshr_b32 s{fo}, s{S_M2}, 1\ns_lshl_b32 s{fo}, s{fo}, 11\ns_add_u32 s{fo}, s{fo}, {FLAGS}")
        self(f"s_lshl_b32 s{t}, s3, 8\ns_add_u32 s{PH}, s{t}, 128")
        self(f"v_mov_b32 v12, s{PH}\nv_writelane_b32 v12, s{t}, 0")
        self(f"s_lshl1_add_u32 s{t}, s{t}, 128\ns_cmp_lt_u32 s3, 4\ns_cselect_b32 s{t}, s{t}, s{PH}\nv_writelane_b32 v12, s{t}, 2")
        self(f"s_cselect_b32 s{PH}, 256, 0\ns_add_u32 s{t}, s{t}, s{PH}\nv_writelane_b32 v12, s{t}, 3")
        poll = f"buffer_load_dwordx2 v[14:15], v12, {srd(SW)}, s{fo} offen sc1"
        self(poll)
        self(f"s_mul_i32 s{t}, s3, 6")
        for i in range(6):
            self(f"s_add_u32 s{KS+i}, s{S_ROT}, {i}\ns_cmp_ge_u32 s{KS+i}, 6\ns_cselect_b32 s{so}, 6, 0\ns_sub_u32 s{KS+i}, s{KS+i}, s{so}\ns_add_u32 s{KS+i}, s{KS+i}, s{t}")
        self(f"s_lshl1_add_u32 s{KS+6}, s3, 48\ns_add_u32 s{KS+7}, s{KS+6}, 1\ns_add_u32 s{KS+8}, s3, 64")
        for k, i in enumerate((5, 6, 7, 4)):
            self(f"s_mul_i32 s{KL+k}, s{KS+i}, 5120\ns_add_u32 s{KL+k}, s{KL+k}, s{S_WB}")
        self(f"s_mul_i32 s{t}, s{S_M2}, {68*4096}")
        for i in range(9):
            self(f"s_lshl_b32 s{KS+i}, s{KS+i}, 12\ns_add_u32 s{KS+i}, s{KS+i}, s{t}")
        ACC = 176
        self(f"v_add_u32 v11, s{LW}, v2\nv_add_u32 v13, 4096, v2")
        self.mk_srd(SA, P_OUT, 2048 * 1280)
        self(f"s_lshl_b32 s{t}, s{S_M2}, 6\ns_lshl3_add_u32 s{t}, s3, s{t}\ns_mul_i32 s{t}, s{t}, 1280\ns_mul_i32 s{PH}, s{S_N2}, 160\ns_add_u32 s{PH}, s{PH}, s{t}")
        for rnd in range(3):
            self(f"v_add_u32 v16, {64*rnd}, v0\nv_mul_u32_u24 v17, 3277, v16\nv_lshrrev_b32 v17, 16, v17\nv_mul_u32_u24 v18, 20, v17\nv_sub_u32 v16, v16, v18")
            self("v_bfe_u32 v18, v17, 1, 2\nv_xor_b32 v16, v16, v18\nv_mul_u32_u24 v17, 1280, v17")
            self(f"v_lshl_add_u32 v{4+rnd}, v16, 3, v17")
        self("v_lshrrev_b32 v16, 5, v0\nv_lshl_add_u32 v6, v16, 26, v6")
        self("v_and_b32 v16, 15, v0\nv_lshrrev_b32 v17, 4, v0\nv_bfe_u32 v18, v0, 1, 2\nv_xor_b32 v17, v17, v18\nv_mul_u32_u24 v16, 320, v16")
        self(f"v_lshl_add_u32 v16, v17, 4, v16\nv_add_u32 v7, s{LW}, v16")
        self(f"s_mul_i32 s{t}, s3, 2560\nv_add_u32 v8, s{t}, v2\nv_add_u32 v9, 61440, v8\nv_add_u32 v10, 122880, v8")
        self("s_waitcnt vmcnt(0)")
        vm = VM()
        cmpn = f"v_cmp_ne_u64 vcc, s[{S_N}:{S_N+1}], v[14:15]"
        self.spin(cmpn + "\ns_nop 1\ns_and_b64 vcc, vcc, 1", poll, False, o.get("psl", 2))
        self.ts(7)
        NB = 3
        AR = lambda i: [80, 160, 20][i % NB]
        def ldA(i):
            return [f"buffer_load_dwordx4 v[{AR(i)+4*m}:{AR(i)+4*m+3}], v2, {srd(SW)}, s{KS+i} offen offset:{m*1024} sc1" for m in range(4)]
        for i in range(NB):
            for l in ldA(i):
                self(l); vm.issue(("A", i))
        XR = WR[4]
        def variant(vm, late):
            NS = 8 if late else 9
            for i in range(NS):
                also = [("W", i), ("L", i - 4)]
                chk = i == 6 - NB + 1
                if chk: also.append("poll")
                n = vm.wait(lambda t: t == ("A", i) or t in also)
                self(f"s_waitcnt vmcnt({n}) lgkmcnt(0)\ns_nop 0")
                if chk:
                    self.spin(cmpn, poll, False, o.get("psl", 2)); self.align8()
                mf = []
                for m in range(4):
                    for tt in range(5):
                        c = ACC + (m * 5 + tt) * 4
                        w = WR[i % 5] + 4 * tt
                        mf.append(f"v_mfma_f32_16x16x32_bf16 v[{c}:{c+3}], v[{w}:{w+3}], v[{AR(i)+4*m}:{AR(i)+4*m+3}], {'0' if i == 0 else 'v[%d:%d]' % (c, c+3)}")
                fill = []
                if i == 0:
                    for tt in range(5):
                        r = WR[4] + 4 * tt
                        fill.append(f"buffer_load_dwordx4 v[{r}:{r+3}], v{13 if tt == 4 else 2}, {srd(SW)}, s{KL+3} offen offset:{(tt%4)*1024} sc1"); vm.issue(("W", 4))
                if i == 1:
                    fill.append(poll); vm.issue("poll")
                j = i - 1 + NB
                if i >= 1 and j < NS:
                    fill += ldA(j)
                    for _ in range(4): vm.issue(("A", j))
                if late and 1 <= i <= 3:
                    k = i - 1
                    for tt in range(5):
                        of = (tt % 4) * 1024
                        fill.append((f"s_add_u32 m0, s{LW}, {lit(k*5120 + tt*1024 - of)}",
                                     f"buffer_load_dwordx4 v{13 if tt == 4 else 2}, {srd(SW)}, s{KL+k} offen offset:{of} sc1 lds")); vm.issue(("L", k))
                if i == 6:
                    for rnd in range(3):
                        fill.append(f"buffer_load_dwordx2 v[{XR+2*rnd}:{XR+2*rnd+1}], v{4+rnd}, {srd(SX)}, s{PH} offen"); vm.issue("x")
                rl = []
                k = (i - 4) if late else (i - 1)
                if 0 <= k < NS - 5:
                    rl = [f"ds_read_b128 v[{WR[k]+4*tt}:{WR[k]+4*tt+3}], v11 offset:{k*5120 + tt*1024}" for tt in range(5)]
                if i < NS - 1:
                    lists = []
                    if fill: lists.append((fill, 0.0, 0.9))
                    if rl: lists.append((rl, 0.0, 0.6))
                    self.interleave(mf, lists)
                else:
                    assert not fill and not rl
                    wr = [f"ds_write_b128 v7, v[{ACC+(m*5+tt)*4}:{ACC+(m*5+tt)*4+3}] offset:{m*5120 + tt*64}" for m in range(4) for tt in range(5)]
                    LAG = 8
                    for k in range(20 + LAG):
                        if k < 20: self(mf[k])
                        if k == 20: self("s_nop 1\ns_nop 0")
                        if k >= LAG: self(wr[k - LAG])
        self("s_cmp_ge_u32 s3, 4\ns_cbranch_scc1 P2_B")
        self.align8()
        vm2 = copy.deepcopy(vm)
        variant(vm, False)
        self("s_branch P2_RED")
        self.align8()
        self("P2_B:")
        variant(vm2, True)
        self("P2_RED:")
        self.ts(8)
        self("s_waitcnt lgkmcnt(0)\ns_barrier")
        RB = [36, 120, 176]
        for rnd in range(3):
            for src in range(8):
                r = RB[rnd] + src * 4
                self(f"ds_read_b128 v[{r}:{r+3}], v{8 + src//3} offset:{(src%3)*20480 + rnd*1024}")
        self("s_waitcnt vmcnt(0)\ns_nop 0")
        ofl = {0: "", 1: " sc1", 2: " nt", 3: " sc0 sc1"}[self.o.get("ost", 0)]
        for rnd in range(3):
            b = RB[rnd]
            x = XR + 2 * rnd
            self(f"v_lshlrev_b32 v{XR+8}, 16, v{x}\nv_lshlrev_b32 v{XR+10}, 16, v{x+1}\nv_and_b32 v{XR+9}, 0xffff0000, v{x}\nv_and_b32 v{XR+11}, 0xffff0000, v{x+1}")
            self("s_waitcnt lgkmcnt(0)\ns_nop 0" if self.instr else f"s_waitcnt lgkmcnt({[15,8,0][rnd]})\ns_nop 0")
            for st in (4, 8, 16):
                for k in range(0, 32, 2 * st):
                    for r in (0, 2):
                        self(f"v_pk_add_f32 v[{b+k+r}:{b+k+r+1}], v[{b+k+r}:{b+k+r+1}], v[{b+k+st+r}:{b+k+st+r+1}]")
            for r in (0, 2):
                self(f"v_pk_add_f32 v[{b+r}:{b+r+1}], v[{b+r}:{b+r+1}], v[{XR+8+r}:{XR+9+r}]")
            self(f"v_cvt_pk_bf16_f32 v{b}, v{b}, v{b+1}\nv_cvt_pk_bf16_f32 v{b+1}, v{b+2}, v{b+3}")
            self(f"buffer_store_dwordx2 v[{b}:{b+1}], v{4+rnd}, {srd(SA)}, s{PH} offen{ofl}")
        if self.instr:
            self("s_waitcnt vmcnt(0)")
            self.ts(9)
            self(f"s_memrealtime s[{T0+2}:{T0+3}]\ns_waitcnt lgkmcnt(0)")
            if "ampj" in self.o:
                i_, j_, K_ = self.o.get("ampi", 0), self.o["ampj"], self.o.get("ampk", 1)
                self(f"s_sub_u32 s{T0+4}, s{TSB+2*j_}, s{TSB+2*i_}\ns_mul_i32 s{T0+4}, s{T0+4}, {K_}")
                if not self.o.get("rt"):
                    self(f"s_mul_i32 s{T0+4}, s{T0+4}, 6554\ns_lshr_b32 s{T0+4}, s{T0+4}, 16")
                if "ampt" in self.o:
                    self(f"s_bitcmp{self.o['ampt']}_b32 s2, 3\ns_cselect_b32 s{T0+4}, s{T0+4}, 0")
                self(f"s_min_u32 s{T0+4}, s{T0+4}, 20000")
                self(f"LAMP:\ns_memrealtime s[{T0+6}:{T0+7}]\ns_waitcnt lgkmcnt(0)\ns_sub_u32 s{T0+5}, s{T0+6}, s{T0+2}\ns_cmp_lt_u32 s{T0+5}, s{T0+4}\ns_cbranch_scc1 LAMP")
                return
            for i in range(1, 10):
                self(f"s_sub_u32 s{T0}, s{TSB+2*i}, s{TSB}\nv_mov_b32 v{20+i}, s{T0}")
            self(f"v_mov_b32 v20, s100\nv_mov_b32 v30, s{T0+2}\nv_mov_b32 v31, 0")
            self(f"s_lshl3_add_u32 s{T0}, s2, s3\ns_lshl_b32 s{T0}, s{T0}, 6\ns_add_u32 s{T0}, s{T0}, {TS}\nv_lshlrev_b32 v12, 26, v0")
            for q in range(3):
                self(f"buffer_store_dwordx4 v[{20+4*q}:{23+4*q}], v12, {srd(SW)}, s{T0} offen offset:{16*q}")

    def build(self):
        k = NAME + "_kernel"
        self(header([f"@launch grid=(256,1,1) block=(512,1,1) lds={160*1024}"]))
        self(kbegin(k))
        self.ts(0)
        if self.instr:
            self("s_memrealtime s[100:101]")
        self("s_load_dwordx16 s[4:19], s[0:1], 0\ns_load_dwordx4 s[20:23], s[0:1], 64")
        self("v_lshrrev_b32 v1, 6, v0\nv_and_b32 v0, 63, v0")
        self("s_cmp_ge_u32 s2, 256\ns_cbranch_scc1 K_END")
        self("v_readfirstlane_b32 s3, v1")
        self(f"s_and_b32 s{S_C}, s2, 7\ns_lshr_b32 s{S_MT}, s2, 4")
        self("s_bitcmp1_b32 s2, 3\ns_cbranch_scc1 Q_START")
        self.h_path()
        self.q_path()
        self.p2()
        self("K_END:\ns_endpgm")
        self("K_LAST:")
        self(f".set CODE_SPAN, K_LAST - {k} - 1024")
        self(kdesc(k, 256, 102, 256))
        return self.a.text()

if __name__ == "__main__":
    out = sys.argv[1]
    instr = "instr" in sys.argv[2:]
    opts = {}
    for x in sys.argv[2:]:
        if "=" in x:
            kk, vv = x.split("="); opts[kk] = int(vv)
    open(out, "w").write(G(instr, opts).build())
```

```python
import sys, struct, copy
from gen_common import *

def f2u(x):
    return hex(struct.unpack('<I', struct.pack('<f', x))[0])

A2F = 0
W2P = 16 << 20
STATS = 20 << 20
CS = 21 << 20
FLAGS = 22 << 20
TS = 24 << 20
WSN = 32 << 20
OOB = 0x80000000
SPIN = 200000

P_X, P_QKV, P_WO, P_BX, P_WG, P_WU, P_WD, P_OUT, P_DBG, P_WS = 4, 6, 8, 10, 12, 14, 16, 18, 20, 22
SX, SB, SW, SD, SA = 24, 28, 32, 36, 40
SP = 4
S_C, S_MT, S_ROW = 44, 45, 46
S_M2, S_N2, S_ROT = 47, 48, 49
S_KB, S_A2, S_LB, S_LA = 50, 51, 52, 53
S_FLAG, S_LW = 54, 55
S_N = 0
EFL = 65536
S_HM = 56
S_MULW, S_ADDW = 58, 59
T0 = 60
S_WB, S_L5 = 10, 11
TSB = 80
WR = [36, 56, 120, 140, 100]

def srd(r):
    return f"s[{r}:{r+3}]"

def lit(v):
    return str(v) + ("\ns_nop 0" if -16 <= v <= 64 else "")

class NH(str):
    pass

class VM:
    def __init__(self):
        self.q = []
    def issue(self, tag, optional=False):
        self.q.append((tag, optional))
        assert len(self.q) <= 63, self.q
    def wait(self, pred):
        last = -1
        for i, (t, o) in enumerate(self.q):
            if pred(t):
                last = i
        if last < 0:
            return None
        rest = self.q[last + 1:]
        n = sum(1 for t, o in rest if not o)
        self.q = rest
        return n
    def has(self, tag):
        return any(t == tag for t, o in self.q)

class G:
    def __init__(self, instr=False, opts=None):
        self.a = Asm()
        self.instr = instr
        self.o = opts or {}
        self.lab = 0

    def __call__(self, s=""):
        self.a(s)

    def label(self, p="L"):
        self.lab += 1
        return f"{p}{self.lab}"

    def tstep(self, s):
        if self.instr and self.o.get("steps"):
            m = {0: 1, 2: 2, 4: 3, 6: 4, 8: 5, 11: 6, 14: 7, 17: 8}
            if self.o.get("steps") == 2:
                m = {12: 1, 13: 2, 14: 3, 15: 4, 16: 5, 17: 6, 18: 7, 19: 8}
            if self.o.get("steps") == 3:
                m = {0: 1, 1: 2, 2: 3, 3: 4, 4: 5, 5: 6, 6: 7, 7: 8}
            if self.o.get("steps") == 4:
                m = {"a": 1, "b": 2, "c": 3, "d": 4, "e": 5, "f": 6, 0: 7, 2: 8}
            if s in m:
                self.ts(m[s], True)

    def ts(self, i, force=False):
        if self.o.get("steps") and not force and i not in (0, 9):
            return
        if self.instr:
            op = "s_memrealtime" if self.o.get("rt") else "s_memtime"
            self(f"{op} s[{TSB+2*i}:{TSB+2*i+1}]")

    def mk_srd(self, d, base, n):
        self(f"s_mov_b32 s{d}, s{base}\ns_mov_b32 s{d+1}, s{base+1}\ns_mov_b32 s{d+2}, {n}\ns_mov_b32 s{d+3}, 0x20000")

    def align8(self):
        self(".p2align 3")

    def wave_sum(self, v, t):
        for d in ("quad_perm:[1,0,3,2]", "quad_perm:[2,3,0,1]", "row_half_mirror", "row_mirror"):
            self(f"s_nop 1\nv_add_f32_dpp v{v}, v{v}, v{v} {d} row_mask:0xf bank_mask:0xf")
        self(f"v_mov_b32 v{t}, v{v}\ns_nop 1\nv_permlane16_swap_b32 v{t}, v{v}\ns_nop 0\nv_add_f32 v{v}, v{v}, v{t}")
        self(f"v_mov_b32 v{t}, v{v}\ns_nop 1\nv_permlane32_swap_b32 v{t}, v{v}\ns_nop 0\nv_add_f32 v{v}, v{v}, v{t}")

    def px_pre(self, typ):
        self(f"s_lshl3_add_u32 s{S_FLAG}, s{S_MT}, s{S_C}\ns_lshl1_add_u32 s{S_FLAG}, s{S_FLAG}, {typ}")
        self(f"s_lshl3_add_u32 s{S_ROW}, s{S_FLAG}, s3")
        self(f"s_mul_i32 s{T0}, s{S_ROW}, 1280")
        self("v_lshlrev_b32 v2, 4, v0\nv_lshlrev_b32 v3, 2, v0")

    def misc_pre(self):
        self(f"s_lshl_b32 s{S_FLAG}, s{S_FLAG}, 7\ns_add_u32 s{S_FLAG}, s{S_FLAG}, {FLAGS}")
        self(f"v_add_lshl_u32 v19, v0, s3, 25")
        self.mk_srd(SW, P_WS, WSN)

    def nonce_load(self):
        return f"buffer_load_dwordx2 v[30:31], off, {srd(SD)}, 0 sc1"

    def nonce_get(self):
        self.spin("v_cmp_eq_u64 vcc, 0, v[30:31]", self.nonce_load(), False, 8)
        self(f"v_readfirstlane_b32 s{S_N}, v30\nv_readfirstlane_b32 s{S_N+1}, v31")

    def early_flag(self):
        return [f"s_add_u32 s{T0}, s{S_FLAG}, {EFL}", f"buffer_store_dwordx2 v[30:31], v19, {srd(SW)}, s{T0} offen sc1"]

    def check_addr(self, v):
        t = T0 + 17
        L = [f"s_lshl_b32 s{t}, s{S_MT}, 4", f"s_sub_u32 s{t}, s{t}, 2", f"v_add_u32 v4, s{t}, v0", "v_max_i32 v4, 0, v4",
             f"s_lshl1_add_u32 s{t}, s{S_C}, {(1 - 18*16) & 0xffffffff}", f"v_lshl_add_u32 v5, v0, 4, s{t}",
             f"s_mul_i32 s{t}, s{S_N2}, 5", f"s_lshr_b32 s{t}, s{t}, 2", f"s_sub_u32 s{t}, s{t}, 170",
             "v_min_u32 v6, 57, v0", "v_lshrrev_b32 v7, 1, v6", "v_and_b32 v6, 1, v6", "v_mad_u32_u24 v6, v7, 10, v6",
             f"v_add_u32 v6, s{t}, v6", "v_lshlrev_b32 v6, 1, v6",
             "v_cmp_gt_u32 vcc, 34, v0\ns_nop 1\nv_cndmask_b32 v5, v6, v5, vcc",
             "v_cmp_gt_u32 vcc, 18, v0\ns_nop 1\nv_cndmask_b32 v5, v5, v4, vcc",
             "v_lshlrev_b32 v5, 7, v5", f"v_mov_b32 v{v}, v5", f"s_mov_b32 s{T0+18}, {FLAGS + EFL}"]
        return self.chunks(L, 10)

    def check_issue(self, vreg, va):
        L = self.label()
        return f"s_cmp_lg_u32 s3, 0\ns_cbranch_scc1 {L}\nbuffer_load_dwordx2 v[{vreg}:{vreg+1}], v{va}, {srd(SW)}, s{T0+18} offen sc1\n{L}:"

    def check_spin(self, vreg, va):
        self.spin(f"v_cmp_ne_u64 vcc, s[{S_N}:{S_N+1}], v[{vreg}:{vreg+1}]",
                  f"buffer_load_dwordx2 v[{vreg}:{vreg+1}], v{va}, {srd(SW)}, s{T0+18} offen sc1", True, 8)

    def px_load(self, vm):
        fl = " nt" if self.o.get("pxnt", 1) else ""
        vm.issue("px"); vm.issue("px")
        return [f"buffer_load_dwordx4 v[56:59], v2, {srd(SX)}, s{T0} offen{fl}",
                f"buffer_load_dword v60, v3, {srd(SX)}, s{T0} offen offset:1024{fl}"]

    def stats_parts(self, typ):
        keep = self.a; self.a = Asm()
        E = 62
        for j in range(5):
            self(f"v_lshlrev_b32 v{E+2*j}, 16, v{56+j}\nv_and_b32 v{E+1+2*j}, 0xffff0000, v{56+j}")
        self(f"v_add_f32 v72, v{E}, v{E+1}\nv_add_f32 v73, v{E+2}, v{E+3}\nv_add_f32 v74, v{E+4}, v{E+5}\nv_add_f32 v75, v{E+6}, v{E+7}\nv_add_f32 v61, v{E+8}, v{E+9}")
        self("v_add_f32 v72, v72, v73\nv_add_f32 v74, v74, v75\nv_add_f32 v72, v72, v61\nv_add_f32 v72, v72, v74")
        self.wave_sum(72, 73)
        self(f"v_mul_f32 v72, {f2u(-1.0/640)}, v72")
        for j in range(10):
            self(f"v_add_f32 v{E+j}, v{E+j}, v72")
        self(f"v_mul_f32 v74, v{E}, v{E}\nv_mul_f32 v75, v{E+1}, v{E+1}")
        for j in range(2, 10):
            self(f"v_fmac_f32 v{74+(j&1)}, v{E+j}, v{E+j}")
        self("v_add_f32 v74, v74, v75")
        self.wave_sum(74, 75)
        self(f"v_mov_b32 v73, {f2u(1e-5)}")
        self(f"v_fmac_f32 v73, {f2u(1.0/640)}, v74")
        self("v_rsq_f32 v73, v73")
        self(f"s_lshl_b32 s{T0}, s{S_ROW}, 3\ns_add_u32 s{T0}, s{T0}, {STATS}")
        self("v_lshlrev_b32 v75, 26, v0")
        comp = self.a.lines; self.a = keep
        st = [f"buffer_store_dwordx2 v[72:73], v75, {srd(SW)}, s{T0} offen sc1"]
        return comp, st

    def stats(self, vm, typ):
        n = vm.wait(lambda t: t == "px")
        if n is not None:
            self(f"s_waitcnt vmcnt({n})")
        comp, st = self.stats_parts(typ)
        for l in comp: self(l)

    def chunks(self, lines, n):
        k = -(-len(lines) // n)
        return ["\n".join(lines[i:i + k]) + "\n.p2align 3" for i in range(0, len(lines), k)]

    def spin(self, cmp, reload, wave0=False, sleep=1):
        L = self.label(); Ld = self.label()
        s = ""
        if wave0:
            s += f"s_cmp_lg_u32 s3, 0\ns_cbranch_scc1 {Ld}\n"
        s += f"s_mov_b32 s{T0+19}, 0\n{L}:\n{cmp}\ns_nop 4\ns_cbranch_vccz {Ld}\n"
        s += f"s_addk_i32 s{T0+19}, 1\ns_cmp_ge_u32 s{T0+19}, {SPIN}\ns_cbranch_scc1 {Ld}\n"
        s += f"s_sleep {sleep}\n{reload}\ns_waitcnt vmcnt(0)\ns_branch {L}\n{Ld}:"
        self(s)

    def capture(self, fn):
        keep = self.a; self.a = Asm()
        fn()
        lines = self.a.lines; self.a = keep
        return lines

    def scc_chunks(self, lines, k=3):
        items = []; cur = []
        for i, l in enumerate(lines):
            cur.append(l)
            nxt = lines[i + 1:]
            live = False
            for m in nxt:
                if m.startswith("s_cselect") or m.startswith("s_cbranch"): live = True; break
                if m.startswith("s_cmp") or m.startswith("s_add") or m.startswith("s_sub") or m.startswith("s_ls") or m.startswith("s_and") or m.startswith("s_bitcmp"): break
            if len(cur) >= k and not live:
                items.append("\n".join(cur) + "\n.p2align 3"); cur = []
        if cur: items.append("\n".join(cur) + "\n.p2align 3")
        return items

    PK = (T0 + 6, T0 + 7, T0 + 8, T0 + 9, T0 + 10, T0 + 11, T0 + 12)

    def pack_params(self, rnd):
        u, _, _, base, al, be, ga = self.PK
        ks, Lc = T0 + 2 + 2 * rnd, T0 + 3 + 2 * rnd
        t = T0 + 13
        self(f"s_lshl3_add_u32 s{u}, s{S_MT}, s{S_C}\ns_mul_i32 s{ks}, s{u}, 6554\ns_lshr_b32 s{ks}, s{ks}, 16\ns_mul_i32 s{Lc}, s{ks}, 10\ns_sub_u32 s{Lc}, s{u}, s{Lc}")
        self(f"s_mul_i32 s{t}, s3, 12\ns_add_u32 s{ks}, s{ks}, s{t}\ns_cmp_ge_u32 s{u}, 120\ns_cselect_b32 s{ks}, 99, s{ks}")
        self(f"s_lshl_b32 s{base}, s{ks}, 5")
        self(f"s_sub_u32 s{al}, s{ks}, 48\ns_mul_i32 s{al}, s{al}, 40\ns_mov_b32 s{t}, {640*1280}")
        self(f"s_cmp_lt_u32 s{ks}, 48\ns_cselect_b32 s{base}, s{base}, s{al}\ns_cselect_b32 s{al}, 16, 8\ns_cselect_b32 s{ga}, 8, 20")
        self(f"s_cselect_b64 s[{SP}:{SP+1}], s[{P_WD}:{P_WD+1}], s[{P_WO}:{P_WO+1}]\ns_cselect_b32 s{SP+2}, {1536*1280}, s{t}\ns_mov_b32 s{be}, 4")
        self(f"s_sub_u32 s{t}, s{ks}, 64\ns_mul_i32 s{t}, s{t}, 160\ns_add_u32 s{t}, s{t}, 16\ns_cmp_ge_u32 s{ks}, 64")
        self(f"s_cselect_b32 s{base}, s{t}, s{base}\ns_cselect_b32 s{be}, 40, s{be}\ns_cselect_b32 s{al}, 80, s{al}")
        self(f"s_cmp_ge_u32 s{ks}, 68\ns_cselect_b32 s{SP+2}, 0, s{SP+2}\ns_mov_b32 s{SP+3}, 0x20000")
        self(f"s_mul_i32 s{base}, s{base}, 1280\ns_lshl_b32 s{t}, s{Lc}, 7\ns_add_u32 s{base}, s{base}, s{t}")
        self(f"s_mul_i32 s{al}, s{al}, 1280\ns_mul_i32 s{be}, s{be}, 1280")
        self(f"s_add_u32 s{al}, s{al}, s{base}\ns_add_u32 s{u}, s{al}, s{be}\ns_add_u32 s{be}, s{be}, s{base}")
        self(f"v_lshrrev_b32 v5, 5, v0\nv_mul_u32_u24 v5, s{ga}, v5\nv_and_b32 v7, 7, v0\nv_bfe_u32 v6, v0, 3, 2\nv_add_u32 v5, v5, v6")
        self("v_and_b32 v6, 2, v6\nv_xor_b32 v7, v7, v6")
        self("v_mul_u32_u24 v5, 1280, v5\nv_lshl_add_u32 v32, v7, 4, v5\nv_xor_b32 v33, 64, v32")

    def pack_dma(self, scr):
        u, lb, _, base, al, be, ga = self.PK
        return [(f"s_add_u32 m0, s{lb}, {lit(i*1024)}", f"buffer_load_dwordx4 v{32 + (i&1)}, {srd(SP)}, s{so} offen nt lds", "pk", False)
                for i, so in enumerate((base, be, al, u))]

    def pack_dst(self, rnd):
        u, _, _, base, al, be, ga = self.PK
        ks, Lc = T0 + 2 + 2 * rnd, T0 + 3 + 2 * rnd
        t = T0 + 13
        self(f"s_mul_i32 s{t}, s{ks}, 5120\ns_add_u32 s{t}, s{t}, {W2P}\ns_cmp_ge_u32 s{ks}, 68\ns_cselect_b32 s{t}, {OOB}, s{t}")
        for i, d in enumerate((base, be, al, u)):
            self(f"s_lshl2_add_u32 s{d}, s{Lc}, {i}\ns_mul_i32 s{ga}, s{d}, 52\ns_lshr_b32 s{ga}, s{ga}, 8\ns_lshl_b32 s{d}, s{d}, 10")
            self(f"s_mul_i32 s{ga}, s{ga}, {67*5120}\ns_add_u32 s{d}, s{d}, s{ga}\ns_add_u32 s{d}, s{d}, s{t}")

    def pack_tr_addr(self):
        lb = self.PK[1]
        self("v_lshrrev_b32 v5, 4, v0\nv_and_b32 v7, 3, v0\nv_bfe_u32 v6, v0, 2, 2\nv_lshl_add_u32 v4, v5, 3, v6")
        self(f"v_lshlrev_b32 v4, 7, v4\nv_lshlrev_b32 v7, 3, v7\nv_add3_u32 v4, v4, v7, s{lb}")
        self("v_lshrrev_b32 v6, 1, v6\nv_and_b32 v5, 1, v5\nv_lshl_or_b32 v6, v5, 1, v6\nv_lshl_add_u32 v26, v6, 5, v4")
        for i in range(1, 4):
            self(f"v_xor_b32 v{26+i}, {32*i}, v26")

    def pack_tr(self, R):
        out = []
        for i in range(4):
            r = R + i * 4
            out += [f"ds_read_b64_tr_b16 v[{r}:{r+1}], v{26+i}", f"ds_read_b64_tr_b16 v[{r+2}:{r+3}], v{26+i} offset:512"]
        return out

    def pack_stores(self, vm, R):
        u, _, _, base, al, be, ga = self.PK
        out = []
        for i, so in enumerate((base, be, al, u)):
            out.append(f"buffer_store_dwordx4 v[{R+4*i}:{R+3+4*i}], v2, {srd(SW)}, s{so} offen sc1"); vm.issue("early")
        return out

    @staticmethod
    def sched(ops, s, rate):
        out = []
        while ops and len(out) < rate and ops[0][0] <= s:
            out.append(ops.pop(0)[1])
        return out

    def interleave(self, mf, lists):
        items = []
        for idx, (L, lo, hi) in enumerate(lists):
            for i, it in enumerate(L):
                items.append((lo + (i + 0.5) / len(L) * (hi - lo), idx, i, it))
        items.sort(key=lambda z: z[:3])
        pos = [[] for _ in mf]
        for f, _, _, it in items:
            pos[min(len(mf) - 1, int(f * len(mf)))].append(it)
        out = []
        for i, m in enumerate(mf):
            out.append(m)
            out += pos[i]
        res = []
        for it in out:
            if isinstance(it, tuple):
                if res and not res[-1][1]:
                    prev = res.pop()
                    res += [(it[0], True), prev, (it[1], True)]
                else:
                    res += [(it[0], True), ("s_nop 0\ns_nop 0", True), (it[1], True)]
            else:
                res.append((it, isinstance(it, NH)))
        for it, _ in res:
            self(it)

    def a_addr(self, abase):
        self("v_and_b32 v4, 31, v0\nv_lshrrev_b32 v5, 5, v0\nv_bfe_u32 v6, v0, 1, 3\nv_xor_b32 v6, v6, v5")
        self(f"s_lshr_b32 s{T0+1}, s3, 2\ns_lshl_b32 s{T0+1}, s{T0+1}, 13")
        if abase:
            self(f"s_add_u32 s{T0+1}, s{T0+1}, {abase}")
        self(f"v_lshlrev_b32 v6, 4, v6\nv_lshl_add_u32 v6, v4, 7, v6\nv_add_u32 v8, s{T0+1}, v6")
        for q in range(1, 4):
            self(f"v_xor_b32 v{8+q}, {q<<5}, v8")

    def a_dma_addr(self):
        self(f"s_lshl_b32 s{T0+1}, s{S_MT}, 7\ns_lshl3_add_u32 s{T0+1}, s3, s{T0+1}")
        self(f"v_lshrrev_b32 v4, 3, v0\nv_add_u32 v4, s{T0+1}, v4\nv_mul_u32_u24 v4, 1280, v4")
        self(f"s_lshl_b32 s{T0+2}, s3, 2\nv_lshrrev_b32 v5, 4, v0\nv_add_u32 v5, s{T0+2}, v5\nv_xor_b32 v5, v5, v0\nv_and_b32 v5, 7, v5")
        self("v_lshl_add_u32 v12, v5, 4, v4")

    def div24(self, j, dk, du):
        self(f"v_add_u32 v{du}, {64*j}, v0\nv_mul_u32_u24 v{dk}, 2731, v{du}\nv_lshrrev_b32 v{dk}, 16, v{dk}")
        self(f"v_mul_u32_u24 v7, 24, v{dk}\nv_sub_u32 v{du}, v{du}, v7")

    def p2_params(self):
        t, u = T0 + 17, T0 + 18
        return [
            f"s_bfe_u32 s{S_M2}, s2, 0x30003", f"s_lshr_b32 s{S_N2}, s2, 6\ns_mul_i32 s{t}, s{S_N2}, 3",
            f"s_lshr_b32 s{t}, s{t}, 1\ns_add_u32 s{t}, s{t}, s{S_M2}",
            f"s_cmp_ge_u32 s{t}, 6\ns_cselect_b32 s{u}, 6, 0\ns_sub_u32 s{S_ROT}, s{t}, s{u if self.o.get('rot') else t}\ns_lshr_b32 s{t}, s{S_C}, 1",
            f"s_lshl3_add_u32 s{S_M2}, s{t}, s{S_M2}\ns_and_b32 s{t}, s{S_C}, 1",
            f"s_lshl2_add_u32 s{S_N2}, s{t}, s{S_N2}\ns_and_b32 s{t}, s3, 3",
            f"s_mul_i32 s{S_WB}, s{S_N2}, {68*5120}", f"s_add_u32 s{S_WB}, s{S_WB}, {W2P}", f"s_mul_i32 s{S_L5}, s{t}, 5120",
            f"s_add_u32 s{u}, s{S_ROT}, -1\ns_cmp_eq_u32 s{S_ROT}, 0\ns_cselect_b32 s{u}, 5, s{u}\ns_add_u32 s{S_ADDW}, s{t}, 47",
            f"s_cmp_eq_u32 s{t}, 0\ns_cselect_b32 s{S_ADDW}, s{u}, s{S_ADDW}\ns_cselect_b32 s{S_MULW}, 6, 2\ns_nop 0",
            f"s_cmp_eq_u32 s{t}, 3\ns_cselect_b32 s{S_ADDW}, 64, s{S_ADDW}\ns_cselect_b32 s{S_MULW}, 1, s{S_MULW}\ns_nop 0",
            f"s_mul_i32 s{S_ADDW}, s{S_ADDW}, 5120", f"s_mul_i32 s{S_MULW}, s{S_MULW}, 5120", f"s_add_u32 s{S_ADDW}, s{S_ADDW}, s{S_WB}\ns_nop 0",
        ]

    def w2_pair(self, b0, t0, b1, t1):
        so, lb, t = T0 + 14, T0 + 15, T0 + 16
        ops = [(None, f"s_cmp_lt_u32 s3, 4\ns_cselect_b32 s{so}, {t0}, {t1}\ns_cselect_b32 s{lb}, {b0}, {b1}\ns_mul_i32 s{t}, s{so}, s{S_MULW}", None),
               (None, f"s_mul_i32 s{lb}, s{lb}, 20480", None), (None, NH(f"s_add_u32 s{lb}, s{lb}, s{S_L5}\ns_add_u32 s{so}, s{t}, s{S_ADDW}"), None)]
        for tt in range(5):
            o = (tt % 4) * 1024
            pre = f"s_add_u32 m0, s{lb}, {lit(tt*1024 - o)}"
            if tt == 4:
                pre = f"s_add_u32 s{so}, s{so}, 4096\n" + pre
            ops.append((pre, f"buffer_load_dwordx4 v2, {srd(SW)}, s{so} offen offset:{o} sc1 lds", "W"))
        return ops

    def w2_reg(self, i):
        so, t = T0 + 14, T0 + 16
        ops = [(None, f"s_add_u32 s{t}, s{S_ROT}, {i}\ns_cmp_ge_u32 s{t}, 6\ns_cselect_b32 s{so}, 6, 0\ns_sub_u32 s{t}, s{t}, s{so}", None),
               (None, f"s_mul_i32 s{so}, s3, 6\ns_add_u32 s{t}, s{t}, s{so}", None), (None, f"s_mul_i32 s{t}, s{t}, 5120", None),
               (None, f"s_add_u32 s{so}, s{t}, s{S_WB}\ns_nop 0", None)]
        for tt in range(5):
            r = WR[i] + 4 * tt
            ld = f"buffer_load_dwordx4 v[{r}:{r+3}], v2, {srd(SW)}, s{so} offen offset:{(tt%4)*1024} sc1"
            if tt == 4:
                ld = f"s_add_u32 s{so}, s{so}, 4096\n" + ld
            ops.append((None, ld, "W"))
        return ops

    def take(self, vm, q, n=99):
        out = []
        while q and n > 0:
            pre, post, tag = q.pop(0)
            out.append((pre, post) if pre else post)
            if tag:
                vm.issue(tag); n -= 1
        return out

    def emit_items(self, items):
        for it in items:
            self(it[0] + "\ns_nop 0\n" + it[1] if isinstance(it, tuple) else it)

    def publish(self, vm):
        self(f"v_mov_b32 v4, s{S_N}\nv_mov_b32 v5, s{S_N+1}")
        n = vm.wait(lambda t: t == "st")
        self(f"s_waitcnt vmcnt({n})\ns_barrier")
        self.ts(6)
        self(f"buffer_store_dwordx2 v[4:5], v19, {srd(SW)}, s{S_FLAG} offen sc1")

    def emit_ops(self, vm, ds):
        for d in ds:
            if d[0]:
                self(d[0] + "\ns_nop 0")
            self(d[1]); vm.issue(d[2], d[3])

    def fill_ops(self, vm, ds):
        out = []
        for d in ds:
            out.append((d[0], d[1]) if d[0] else d[1]); vm.issue(d[2], d[3])
        return out

    def h_path(self):
        vm = VM()
        o = self.o
        BB = 65536
        CSL = 102400
        S_PQ = S_HM + 1
        apos = lambda S: ((S % 4) ^ 1) * 16384
        ant = lambda S: " nt" if S < o.get("ant", 0) else ""
        PXI = o.get("pxi", 1)
        AF = o.get("afirst", 0)
        self(f"s_memrealtime s[{T0+14}:{T0+15}]")
        self.px_pre(0)
        if AF:
            self.a_dma_addr()
        self(f"s_mov_b32 s{S_A2}, 81920\ns_lshl_b32 s{S_LA}, s3, 10\ns_mov_b32 s{S_HM}, 0")
        self(f"s_mov_b32 s{SX+2}, {2048*1280}\ns_mov_b32 s{SX+3}, 0x20000\ns_mov_b32 s{SA+2}, {640*3840}\ns_mov_b32 s{SA+3}, 0x20000")
        self("v_mul_u32_u24 v4, 43, v0\nv_lshrrev_b32 v4, 8, v4\nv_mul_u32_u24 v5, 6, v4\nv_sub_u32 v5, v0, v5")
        self("v_lshrrev_b32 v6, 1, v5\nv_and_b32 v5, 1, v5\nv_mul_u32_u24 v6, 1280, v6\nv_mul_u32_u24 v5, 156, v5")
        self("v_and_b32 v7, 4, v4\nv_mad_u32_u24 v4, v7, 15, v4")
        self("v_mul_u32_u24 v4, 3840, v4\nv_add3_u32 v4, v4, v5, v6")
        self(f"v_cmp_gt_u32 vcc, 48, v0\nv_mov_b32 v5, {OOB}")
        self(f"s_add_u32 s{S_PQ}, s3, 0\ns_lshl_b32 s{S_PQ}, s{S_PQ}, 5\ns_add_u32 s{S_PQ}, s{S_PQ}, s{S_MT}\ns_mul_i32 s{S_PQ}, s{S_PQ}, {4*3840}")
        self(f"s_mul_i32 s{T0+4}, s{S_C}, 160\ns_add_u32 s{S_PQ}, s{S_PQ}, s{T0+4}")
        self("v_cndmask_b32 v17, v5, v4, vcc")
        self("s_waitcnt lgkmcnt(0)")
        self(f"s_mov_b64 s[{SX}:{SX+1}], s[{P_X}:{P_X+1}]\ns_mov_b64 s[{SA}:{SA+1}], s[{P_QKV}:{P_QKV+1}]")
        self.ts(1)

        BN = o.get("hbn", 1)
        bslot = lambda s: [3, 0, 1, 3][s] if s < 4 else s % 4
        bfree = lambda s: {3: 0, 4: 1, 5: 2, 6: max(BN + 1, 2)}.get(s, s - 4)
        def dmaB(s):
            fl = " nt" if s < o.get("hnt", 20) else ""
            return [(f"s_add_u32 m0, s{S_LB}, {lit(BB + bslot(s)*24576 + j*1024)}",
                     f"buffer_load_dwordx4 v{13+j}, {srd(SB)}, s{S_KB} offen{fl} lds" + (f"\ns_add_u32 s{S_KB}, s{S_KB}, 98304" if j == 2 else ""),
                     ("B", s), False) for j in range(3)]
        def A(S):
            return [(f"s_add_u32 m0, s{S_LA}, {lit(apos(S) + i*8192)}",
                     f"buffer_load_dwordx4 v12, {srd(SX)}, s{S_A2 if i else S_HM} offen{ant(S)} lds\ns_addk_i32 s{S_A2 if i else S_HM}, 128\ns_nop 0",
                     ("A", S), False) for i in range(2)]
        def PQ(cond):
            L = self.label()
            return [(None, f"{cond}\ns_cbranch_scc0 {L}\nbuffer_load_dword v34, v17, {srd(SA)}, s{S_PQ} offen nt\n{L}:", "p", True)]
        NP0 = o.get("np0", 3)
        px = [(None, l, "px", False) for l in self.px_load(VM())]
        assert PXI and not AF
        self.emit_ops(vm, px)
        self.emit_ops(vm, PQ(f"s_cmp_lt_u32 s3, {NP0}"))
        Lp = self.label()
        self.pack_params(0)
        self(f"s_lshl_b32 s{self.PK[1]}, s3, 12\ns_add_u32 s{self.PK[1]}, s{self.PK[1]}, {BB + 2*24576}")
        self(f"s_cmp_ge_u32 s3, 6\ns_cbranch_scc1 {Lp}")
        self.emit_ops(vm, [d[:3] + (True,) for d in self.pack_dma(0)])
        self(f"{Lp}:")
        self.mk_srd(SD, P_DBG, 256)
        L0 = self.label()
        self(f"s_cmp_lg_u32 s{S_ROW}, 0\ns_cbranch_scc1 {L0}")
        self(f"v_mov_b32 v4, s{T0+14}\nv_mov_b32 v5, s{T0+15}\nv_lshlrev_b32 v6, 20, v0")
        self(f"buffer_store_dwordx2 v[4:5], v6, {srd(SD)}, 0 offen sc1\n{L0}:"); vm.issue("p", True)
        if o.get("codepf", 1):
            self(f"s_getpc_b64 s[{T0+4}:{T0+5}]")
            self(f"s_lshl3_add_u32 s{T0+8}, s{S_MT}, s3\ns_lshl_b32 s{T0+8}, s{T0+8}, 9")
            self(f"v_and_b32 v4, 3, v0\nv_lshlrev_b32 v4, 7, v4\nv_add_u32 v4, s{T0+8}, v4")
            self(f"v_min_u32 v4, CODE_SPAN, v4")
            self(f"global_load_dword v35, v4, s[{T0+4}:{T0+5}]"); vm.issue("p")
        self.tstep("a")
        self.pack_dst(0)
        self(f"s_and_b32 s{T0+1}, s3, 3\ns_mul_i32 s{T0+1}, s{T0+1}, {8*3072}\ns_mul_i32 s{T0+2}, s{S_C}, 384\ns_add_u32 s{T0+1}, s{T0+1}, s{T0+2}")
        self(f"s_and_b32 s{T0+2}, s3, 4")
        for j in range(3):
            self.div24(j, 4, 5)
            self(f"v_and_b32 v6, 2, v4\nv_or_b32 v6, s{T0+2}, v6\nv_xor_b32 v5, v5, v6")
            self(f"v_mul_u32_u24 v4, 3072, v4\nv_lshl_add_u32 v4, v5, 4, v4\nv_add_u32 v{13+j}, s{T0+1}, v4")
        self(f"s_mov_b32 s{S_KB}, 0\ns_mul_i32 s{S_LB}, s3, 3072")
        self(f"s_mov_b32 s{SB+2}, {640*3072}\ns_mov_b32 s{SB+3}, 0x20000\ns_cmp_lt_u32 s3, 4")
        self(f"s_cselect_b64 s[{SB}:{SB+1}], s[{P_WG}:{P_WG+1}], s[{P_WU}:{P_WU+1}]")
        if not AF:
            self.a_dma_addr()
            self("s_barrier")
            self.emit_ops(vm, A(0))
        self.emit_ops(vm, dmaB(0))
        self.tstep("e")
        self.misc_pre()
        self.pack_tr_addr()
        self.a_addr(0)
        self("v_bfe_u32 v4, v0, 4, 1\nv_lshrrev_b32 v5, 5, v0\nv_bfe_u32 v6, v0, 2, 2")
        self(f"v_lshl_add_u32 v5, v5, 3, v6\nv_mul_u32_u24 v5, 384, v5\nv_mul_u32_u24 v7, 12288, v4\nv_add_u32 v5, v5, v7\nv_add_u32 v5, {BB}, v5")
        self("v_and_b32 v7, 1, v0\nv_lshl_add_u32 v5, v7, 3, v5")
        self("v_and_b32 v6, 2, v6\nv_lshl_or_b32 v6, v4, 2, v6\nv_bfe_u32 v7, v0, 1, 1")
        self(f"s_and_b32 s{T0+1}, s3, 3\ns_mul_i32 s{T0+1}, s{T0+1}, 6\nv_add_u32 v7, s{T0+1}, v7")
        for n in range(3):
            self(f"v_add_u32 v4, {2*n}, v7\nv_xor_b32 v4, v4, v6\nv_lshl_add_u32 v{20+n}, v4, 4, v5\nv_add_u32 v{23+n}, 49152, v{20+n}")
        if o.get("hstpre", 1):
            self.stats(vm, 0)
        self.tstep("b")
        self("s_barrier")
        pre = dmaB(1) + A(1)
        npre0 = o.get("hpre", 4)
        self.emit_ops(vm, pre[:npre0])
        ops = [(-9, d) for d in pre[npre0:]]
        nb = NP0
        PKS = -9
        lead = o.get("alead", 1)
        nextA = 2
        for b_ in range(2, 20):
            if b_ % 2 == 1 or b_ == 2:
                pass
            ops += [(bfree(b_), d) for d in dmaB(b_)]
            if b_ % 2 == 0:
                while nextA <= min(9, b_ // 2 + lead):
                    ops += [(2 * (nextA - 4) + 1, d) for d in A(nextA)]
                    nextA += 1
                if NP0 < 5 and b_ == o.get("pqb", 8):
                    ops += [(-9, d) for d in PQ(f"s_sub_u32 s{T0+1}, s3, {NP0}\ns_nop 0\ns_cmp_lt_u32 s{T0+1}, {5 - NP0}")]
                if b_ == o.get("hpxb", 4) and not PXI:
                    ops += [(-9, d) for d in px]
                if b_ == 6:
                    ops += [(-9, (None, self.nonce_load(), "nonce", False))]

        def reads(s, Y):
            S = s >> 1
            rd = []
            for sub in range(2):
                for m in range(2):
                    r = Y + (sub * 2 + m) * 4
                    rd.append(f"ds_read_b128 v[{r}:{r+3}], v{8 + (s&1)*2 + sub} offset:{apos(S) + m*4096}")
                for n in range(3):
                    r = Y + 16 + (sub * 3 + n) * 4
                    b = 20 + n + (3 if bslot(s) >= 2 else 0)
                    of = (bslot(s) % 2) * 24576 + sub * 6144
                    rd.append(f"ds_read_b64_tr_b16 v[{r}:{r+1}], v{b} offset:{of}")
                    rd.append(f"ds_read_b64_tr_b16 v[{r+2}:{r+3}], v{b} offset:{of+1536}")
            return rd
        def need(s):
            return lambda t: t == ("B", s) or t == ("A", s >> 1)
        self.ts(2)
        n = vm.wait(need(0))
        self(f"s_waitcnt vmcnt({n})\ns_barrier")
        self.ts(3); self.tstep("f")
        for r in reads(0, 80):
            self(r)
        self.emit_ops(vm, self.sched(ops, -1, o.get("hpost", 2)))
        self("s_waitcnt lgkmcnt(0)")
        self.align8()
        def csreg(n_, r):
            if n_ < 2: return [80, 96][n_] + r
            return (112 + r) if r < 8 else (r)
        ST = o.get("hst", 4)
        CK = o.get("hck", 15)
        EF = o.get("hef", 8)
        ST = -8 if o.get("hstpre", 1) else o.get("hst", 1)
        STS = o.get("hsts", 2) if ST < 0 else ST + 2
        wq = []
        for s in range(20):
            X = 80 + (s & 1) * 40; Y = 80 + ((s + 1) & 1) * 40
            extra = []
            also = {ST: ("px",), PKS: ("pk",), EF: ("early", "nonce"), CK: ("poll",), 18: ("cs",)}.get(s, ())
            p0 = need(s + 1)
            assert not any(p0(d[2]) or d[2] in also for _, d in ops), s
            n = vm.wait(lambda t: p0(t) or t in also)
            self(f"s_waitcnt vmcnt({n})" if n is not None else "s_nop 0")
            if s == CK:
                self.check_spin(26, 35)
            if s == EF:
                self.nonce_get()
            self("s_barrier")
            if s in (CK, EF):
                self.align8()
            self.tstep(s)
            fill = []
            extra2 = []
            if s in (ST, ST + 1):
                comp, st = self.stats_parts(0)
                ch = self.chunks(comp, 22)
                extra2 = ch[:11] if s == ST else ch[11:]
            if s == CK:
                for p in range(2):
                    fill.append(f"buffer_load_dwordx4 v[{56+4*p}:{59+4*p}], v30, {srd(SW)}, s{T0+2} offen offset:{16*p} sc1"); vm.issue("cs")
                for m in range(2):
                    fill.append(f"buffer_load_dwordx2 v[{26+2*m}:{27+2*m}], v31, {srd(SW)}, s{T0+5} offen offset:{m*256} sc1"); vm.issue("cs")
            fill += self.fill_ops(vm, self.sched(ops, s, o.get("hrate", 6)))
            if s == STS:
                for l in self.stats_parts(0)[1]:
                    fill.append(l); vm.issue("early")
            if s == BN:
                extra += self.pack_tr(36)
            PS0, PSN = o.get("hps", 3), o.get("hpsn", 2)
            if PS0 <= s < PS0 + 4 // PSN:
                for l in self.pack_stores(VM(), 36)[PSN * (s - PS0):PSN * (s - PS0 + 1)]:
                    fill.append(l); vm.issue("early")
            if s == EF:
                fill += self.early_flag(); vm.issue("ef")
            if s == 10:
                extra += self.p2_params()
            if s == 11:
                extra += self.check_addr(35)
            if s == CK - 2:
                fill.append(self.check_issue(26, 35)); vm.issue("poll", True)
            if s == 12:
                extra += [f"s_lshl_b32 s{T0+1}, s3, 8\nv_and_b32 v4, 31, v0", f"v_add_u32 v18, s{T0+1}, v3\nv_lshlrev_b32 v31, 3, v4",
                          f"s_mul_i32 s{T0+2}, s{S_C}, {8*1536}", f"s_add_u32 s{T0+2}, s{T0+2}, {CS}",
                          f"s_cmp_lt_u32 s3, 6\nv_lshlrev_b32 v30, 3, v18\ns_cselect_b32 s{T0+2}, s{T0+2}, {OOB}",
                          f"s_lshr_b32 s{T0+5}, s3, 2\ns_lshl1_add_u32 s{T0+5}, s{S_MT}, s{T0+5}", f"v_add_u32 v18, {CSL}, v18",
                          f"s_lshl_b32 s{T0+5}, s{T0+5}, 9\ns_nop 0", f"s_add_u32 s{T0+5}, s{T0+5}, {STATS}",
                          f"s_lshl_b32 s{S_LW}, s3, 2\ns_nop 0", f"s_lshr_b32 s{S_LW}, 0x76054132, s{S_LW}", f"s_and_b32 s{S_LW}, s{S_LW}, 7\ns_nop 0",
                          f"s_mul_i32 s{S_LW}, s{S_LW}, 20480"]
            if s == 13:
                extra += [f"s_and_b32 s{T0+6}, s3, 3\nv_lshrrev_b32 v5, 5, v0", f"s_mul_i32 s{T0+7}, s{T0+6}, 192", f"s_add_u32 s{T0+7}, s{T0+7}, {CSL}",
                          f"v_lshl_add_u32 v17, v5, 4, s{T0+7}",
                          "v_bfe_u32 v6, v0, 4, 1", "v_and_b32 v7, 15, v0\nv_lshlrev_b32 v6, 10, v6", "v_lshl_add_u32 v6, v5, 8, v6", "v_lshl_add_u32 v16, v7, 4, v6",
                          f"s_lshr_b32 s{T0+7}, s3, 2\ns_lshl1_add_u32 s{T0+7}, s{S_MT}, s{T0+7}", f"s_mul_i32 s{T0+7}, s{T0+7}, {68*4096}",
                          f"s_mul_i32 s{T0+8}, s{S_C}, {6*4096}", f"s_add_u32 s{T0+7}, s{T0+7}, s{T0+8}\ns_mul_i32 s{T0+6}, s{T0+6}, 3"]
            if s == 14:
                for n_ in range(3):
                    extra += [f"s_add_u32 s{T0+8}, s{T0+6}, {n_}\ns_lshr_b32 s{T0+9}, s{T0+8}, 1", f"s_lshl_b32 s{T0+9}, s{T0+9}, 12\ns_and_b32 s{T0+8}, s{T0+8}, 1",
                              f"s_lshl_b32 s{T0+8}, s{T0+8}, 9\ns_add_u32 s{T0+9}, s{T0+9}, s{T0+8}", f"s_add_u32 s{T0+10+n_}, s{T0+9}, s{T0+7}\ns_nop 0"]
            if s == 16:
                wq += self.w2_pair(2, 0, 3, 1)
            if s == 17:
                wq += self.w2_pair(1, 2, 4, 3) + self.w2_reg(0)
            if s == 19:
                wq += self.w2_reg(1)
            fill += self.take(vm, wq, o.get("hwr", 5))
            if s == 18:
                extra += ["v_add_f32 v56, v56, v57\nv_add_f32 v58, v58, v59", "v_add_f32 v60, v60, v61\nv_add_f32 v62, v62, v63",
                          "v_add_f32 v56, v56, v58\nv_add_f32 v60, v60, v62", "v_add_f32 v56, v56, v60\nv_mul_f32 v32, v27, v27",
                          f"ds_write_b32 v18, v56", "v_mul_f32 v34, v29, v29\nv_mov_b32 v33, v32",
                          "v_mov_b32 v35, v34\nv_mov_b32 v27, v26", "v_mov_b32 v29, v28\ns_nop 0"]
            if s < 19:
                rd = reads(s + 1, Y)
            else:
                rd = []
                for n_ in range(3):
                    for mat in range(2):
                        for a_ in range(2):
                            r = csreg(n_, (mat * 2 + a_) * 4)
                            rd.append(f"ds_read_b128 v[{r}:{r+3}], v17 offset:{n_*64 + a_*32 + mat*768}")
            mf = []
            for sub in range(2):
                for n_ in range(3):
                    for m in range(2):
                        c = 160 + (m * 3 + n_) * 16
                        cin = "0" if (s == 0 and sub == 0) else f"v[{c}:{c+15}]"
                        b = X + 16 + (sub * 3 + n_) * 4; a_ = X + (sub * 2 + m) * 4
                        mf.append(f"v_mfma_f32_32x32x16_bf16 v[{c}:{c+15}], v[{b}:{b+3}], v[{a_}:{a_+3}], {cin}")
            lists = [(rd, 0.0, 0.8)]
            if fill: lists.append((fill, 0.0, 1.0))
            if extra: lists.append((extra, 0.0, 0.9))
            if extra2: lists.append((extra2, 0.0, 1.0))
            self.interleave(mf, lists)
            self("s_waitcnt lgkmcnt(0)\ns_nop 0")
            assert s < 15 or not ops
        self.ts(4)
        self("s_nop 7\ns_nop 0")
        for n_ in range(3):
            for m in range(2):
                c = 160 + (m * 3 + n_) * 16
                nm = 26 + 2 * m
                for r in range(0, 16, 2):
                    k = csreg(n_, r)
                    self(f"v_pk_fma_f32 v[{c+r}:{c+r+1}], v[{nm}:{nm+1}], v[{k}:{k+1}], v[{c+r}:{c+r+1}]")
                for r in range(0, 8, 2):
                    self(f"v_pk_mul_f32 v[{c+r}:{c+r+1}], v[{c+r}:{c+r+1}], v[{32+2*m}:{33+2*m}]")
                for r in range(0, 8, 2):
                    self(f"v_pk_mul_f32 v[{c+r}:{c+r+1}], v[{c+r}:{c+r+1}], v[{c+8+r}:{c+9+r}]")
                for r in range(4):
                    self(f"v_cvt_pk_bf16_f32 v{c+8+r}, v{c+2*r}, v{c+2*r+1}")
                self(f"buffer_store_dwordx4 v[{c+8}:{c+11}], v16, {srd(SW)}, s{T0+10+n_} offen offset:{m*2048} sc1"); vm.issue("st")
        self.ts(5)
        assert all(not x[0] for x in wq)
        wq += self.w2_reg(2)
        npre = o.get("npre", 5)
        if npre:
            self("s_barrier")
        self.emit_items(self.take(vm, wq, npre))
        self.publish(vm)
        self.emit_items(self.take(vm, wq))
        self("s_branch P2_START")

    QS = 520
    QCSL = 75008
    QZ = 76800
    QST = 120832
    QAB = 65536
    QSCR = 122880

    def q_dmaA(self, S, wm):
        AB = self.QAB
        fl = " nt" if S < self.o.get("ant", 0) else ""
        out = [(f"s_add_u32 m0, s{S_LA}, {lit(AB + (S%3)*18432 + 2048 + i*8192 - S*128)}",
                f"buffer_load_dwordx4 v12, {srd(SX)}, {'s%d' % S_A2 if i else '0'} offen offset:{S*128}{fl} lds",
                ("A", S), False) for i in range(2)]
        if wm != 0:
            L = self.label()
            out.insert(0, (f"s_add_u32 m0, s{S_LA}, {lit(AB + (S%3)*18432 - 4096 - S*128)}",
                        f"s_mov_b64 exec, s[{S_HM}:{S_HM+1}]\ns_cbranch_execz {L}\nbuffer_load_dwordx4 v15, {srd(SX)}, 0 offen offset:{S*128}{fl} lds\n{L}:\ns_mov_b64 exec, -1\ns_nop 0",
                        ("A", S), True))
        return out

    def q_dmaB(self, s):
        fl = " nt" if s < self.o.get("qnt", 20) else ""
        return [(f"s_add_u32 m0, s{S_LB}, {lit((s%4)*16384 + j*1024)}",
                 f"buffer_load_dwordx4 v{13+j}, {srd(SB)}, s{S_KB} offen{fl} lds" + (f"\ns_add_u32 s{S_KB}, s{S_KB}, {32*3840}" if j == 1 else ""),
                 ("B", s), False) for j in range(2)]

    def q_path(self):
        vm = VM()
        AB, SCR = self.QAB, self.QSCR
        GS, GL = T0 + 14, T0 + 15
        self("Q_START:")
        self(f"s_lshr_b32 s{GS}, s{S_MT}, 1\ns_lshl3_add_u32 s{GS}, s3, s{GS}\ns_mul_i32 s{GS}, s{GS}, {8*3072}\ns_mul_i32 s{T0+2}, s{S_C}, 384\ns_add_u32 s{GS}, s{GS}, s{T0+2}")
        for j in range(3):
            self.div24(j, 4, 5)
            self(f"v_mul_u32_u24 v4, 3072, v4\nv_lshl_add_u32 v{23+j}, v5, 4, v4")
        self(f"s_mul_i32 s{GL}, s3, 3072\ns_add_u32 s{GL}, s{GL}, {SCR}")
        self(f"s_mov_b32 s{SA+2}, {640*3072}\ns_mov_b32 s{SA+3}, 0x20000\ns_mov_b32 s{SX+2}, {2048*1280}\ns_mov_b32 s{SX+3}, 0x20000")
        o = self.o
        PXI, AF, NG0 = o.get("pxi", 1), o.get("afirst", 0), o.get("ng0", 10)
        def apre():
            self.a_dma_addr()
            self("v_subrev_u32 v15, 61440, v12")
            self(f"s_mov_b32 s{S_A2}, 81920\ns_lshl_b32 s{S_LA}, s3, 10")
            self(f"s_mov_b64 s[{S_HM}:{S_HM+1}], 0\ns_cmp_eq_u32 s3, 5\ns_cselect_b64 s[{S_HM}:{S_HM+1}], -1, s[{S_HM}:{S_HM+1}]")
            self(f"s_cmp_eq_u32 s3, 4\ns_cselect_b32 s{S_HM}, 0xffffff00, s{S_HM}\ns_cselect_b32 s{S_HM+1}, -1, s{S_HM+1}")
        self.px_pre(1)
        if AF: apre()
        self(f"s_bitcmp0_b32 s{S_MT}, 0\ns_waitcnt lgkmcnt(0)")
        self(f"s_cselect_b64 s[{SA}:{SA+1}], s[{P_WG}:{P_WG+1}], s[{P_WU}:{P_WU+1}]\ns_mov_b64 s[{SX}:{SX+1}], s[{P_X}:{P_X+1}]")
        self.ts(1)
        assert PXI and not AF
        for l in self.px_load(vm): self(l)
        L = self.label()
        if NG0 == 4:
            self(f"s_cmp_ge_u32 s3, 4\ns_cbranch_scc1 {L}")
        for j in range(3):
            self(f"s_add_u32 m0, s{GL}, {j*1024}\ns_nop 0")
            self(f"buffer_load_dwordx4 v{23+j}, {srd(SA)}, s{GS} offen nt lds"); vm.issue("gu", NG0 == 4)
        self(f"{L}:")
        if NG0 == 10:
            L = self.label()
            self(f"s_and_b32 s{T0+1}, s3, 6\ns_cmp_lg_u32 s{T0+1}, 4\ns_cbranch_scc1 {L}\ns_add_u32 s{GS}, s{GS}, {4*64*3072}")
            for j in range(3):
                self(f"s_add_u32 m0, s{GL}, {4*3072 + j*1024}\ns_nop 0")
                self(f"buffer_load_dwordx4 v{23+j}, {srd(SA)}, s{GS} offen nt lds"); vm.issue("gu", True)
            self(f"{L}:")
        self.tstep("a")
        self.mk_srd(SB, P_QKV, 640 * 3840)
        self(f"s_lshl_b32 s{T0+1}, s3, 7\ns_mul_i32 s{T0+2}, s{S_C}, 160")
        for j in range(2):
            self(f"v_add_u32 v5, s{T0+1}, v0")
            if j: self("v_add_u32 v5, 64, v5")
            self("v_mul_u32_u24 v4, 2185, v5\nv_lshrrev_b32 v4, 16, v4\nv_mul_u32_u24 v6, 30, v4\nv_sub_u32 v5, v5, v6")
            self("v_cmp_gt_u32 vcc, 32, v4")
            self("v_and_b32 v6, 24, v4\nv_bfe_u32 v7, v4, 1, 2\nv_add_u32 v6, v6, v7\nv_and_b32 v7, 1, v4\nv_lshl_add_u32 v6, v7, 2, v6")
            self("v_mul_u32_u24 v6, 3840, v6\nv_lshl_add_u32 v6, v5, 4, v6")
            self("v_mul_u32_u24 v7, 26, v5\nv_lshrrev_b32 v7, 8, v7\nv_mul_u32_u24 v7, 1120, v7")
            self(f"v_add3_u32 v6, v6, v7, s{T0+2}\nv_mov_b32 v7, {OOB}\nv_cndmask_b32 v{13+j}, v7, v6, vcc")
        self(f"s_mov_b32 s{S_KB}, 0\ns_lshl_b32 s{S_LB}, s3, 11")
        if not AF:
            apre()
            self("s_barrier")
            self.emit_ops(vm, self.q_dmaA(0, 1))
        self.emit_ops(vm, self.q_dmaB(0))
        self.tstep("e")
        self.misc_pre()
        self.mk_srd(SD, P_DBG, 256)
        for r in range(4):
            self(f"v_mov_b32 v{76+r}, 0x3f803f80")
        self(f"v_lshrrev_b32 v4, 3, v0\nv_min_u32 v4, 2, v4\nv_mul_u32_u24 v4, 18432, v4\nv_and_b32 v5, 7, v0\nv_lshl_add_u32 v4, v5, 4, v4\nv_add_u32 v4, {AB}, v4")
        self("ds_write_b128 v4, v[76:79]")
        self.a_addr(AB)
        self("v_bfe_u32 v4, v0, 4, 1\nv_lshrrev_b32 v5, 5, v0\nv_bfe_u32 v6, v0, 2, 2\nv_and_b32 v7, 3, v0")
        self("v_lshlrev_b32 v7, 3, v7\nv_lshl_add_u32 v7, v4, 5, v7")
        self("v_lshlrev_b32 v4, 3, v5\nv_lshl_add_u32 v5, v6, 1, v4\nv_add_u32 v4, v4, v6")
        self(f"s_and_b32 s{T0+1}, s3, 3\ns_lshl_b32 s{T0+1}, s{T0+1}, 7\ns_lshl_b32 s{T0+2}, s3, 6\ns_add_u32 s{T0+2}, s{T0+2}, {SCR}")
        self(f"v_mul_u32_u24 v5, 480, v5\nv_add3_u32 v20, v5, v7, s{T0+1}")
        self(f"v_mul_u32_u24 v4, 384, v4\nv_add3_u32 v21, v4, v7, s{T0+2}")
        self(f"s_and_b32 s{T0+2}, s{S_MT}, 1\ns_lshl1_add_u32 s{T0+1}, s{S_C}, s{T0+2}\ns_mul_i32 s{T0+1}, s{T0+1}, {192*32}")
        self(f"s_lshr_b32 s{T0+2}, s{S_MT}, 1\ns_lshl2_add_u32 s{T0+1}, s{T0+2}, s{T0+1}")
        self(f"s_lshl_b32 s{T0+2}, s3, 10\ns_add_u32 s{T0+1}, s{T0+1}, s{T0+2}\ns_add_u32 s{T0+1}, s{T0+1}, {CS}")
        self(f"s_cmp_lt_u32 s3, 6\ns_cselect_b32 s{T0+1}, s{T0+1}, {OOB}")
        self("v_lshrrev_b32 v22, 5, v0\nv_lshlrev_b32 v4, 5, v0\nv_lshl_add_u32 v22, v22, 26, v4")
        self(f"s_xor_b32 s{S_LW}, s3, 4\ns_mul_i32 s{S_LW}, s{S_LW}, 20480")
        self.stats(vm, 1)
        self.tstep("b")
        assert NG0 == 10
        n = vm.wait(lambda t: t == "gu")
        self(f"s_waitcnt vmcnt({n})\ns_barrier")
        self.tstep("c")
        for sub in range(5):
            r = 36 + sub * 4
            self(f"ds_read_b64_tr_b16 v[{r}:{r+1}], v21 offset:{sub*6144}\nds_read_b64_tr_b16 v[{r+2}:{r+3}], v21 offset:{sub*6144+1536}")
        self("s_cmp_ge_u32 s3, 4\ns_cbranch_scc1 Q_WM1")
        vm1 = copy.deepcopy(vm)
        self.q_main(vm, 0)
        self("s_branch Q_ATT")
        self("Q_WM1:")
        self.q_main(vm1, 1)
        self("Q_ATT:")
        self.attention()

    def q_main(self, vm, wm):
        o = self.o
        QS, CSL, QZ, QST, AB = self.QS, self.QCSL, self.QZ, self.QST, self.QAB
        GS, GL = T0 + 14, T0 + 15
        NM = 3 if wm == 0 else 2
        toff = [0, 2048, 6144] if wm == 0 else [2048, 6144]
        dmaB = self.q_dmaB
        dmaA = lambda S: self.q_dmaA(S, wm)
        pre = dmaB(1) + dmaA(1)
        npre0 = o.get("qpre", 3) + wm
        self.emit_ops(vm, pre[:npre0])
        self("s_waitcnt lgkmcnt(0)")
        for sub in range(5):
            r = 36 + sub * 4
            self(f"v_mfma_f32_32x32x16_bf16 v[56:71], v[76:79], v[{r}:{r+3}], {'0' if sub == 0 else 'v[56:71]'}")
        ops = [(-9, d) for d in pre[npre0:]]
        PD = -9
        BN = -9
        CSs = o.get("qcs", 6)
        ST = o.get("qst", 3)
        AT = o.get("qat", 7)
        CK = o.get("qck", 15)
        PXI, NG0 = o.get("pxi", 1), o.get("ng0", 10)
        ST = -8
        CSs = -9
        STS = o.get("qsts", 3)
        wq = []
        px = [(None, l, "px", False) for l in self.px_load(VM())]
        gu1 = [(f"s_add_u32 m0, s{GL}, {lit(j*1024)}", f"buffer_load_dwordx4 v{23+j}, {srd(SA)}, s{GS} offen nt lds", "gu", False) for j in range(3)]
        gu2 = []
        for j in range(3):
            L = self.label()
            gu2.append(((f"s_add_u32 s{GS}, s{GS}, {4*64*3072}\n" if j == 0 else "") + f"s_add_u32 m0, s{GL}, {lit(4*3072 + j*1024)}",
                        f"s_cmp_ge_u32 s3, 6\ns_cbranch_scc1 {L}\nbuffer_load_dwordx4 v{23+j}, {srd(SA)}, s{GS} offen nt lds\n{L}:", "gu", True))
        if wm == 1 and NG0 == 4:
            ops += [(-9, d) for d in gu1]
        for b_ in range(2, 20):
            ops += [(b_ - 4, d) for d in dmaB(b_)]
            if b_ == PD:
                ops += [(-9, d) for d in self.pack_dma(0)]
            if b_ % 2 == 1 and b_ // 2 + 1 < 10:
                S_ = b_ // 2 + 1
                ops += [(2 * (S_ - 3) + 1, d) for d in dmaA(S_)]
                if b_ == 7:
                    ops += [(-9, (None, self.nonce_load(), "nonce", False))]
                if b_ == 3:
                    if not PXI:
                        ops += [(-9, d) for d in px]
                if b_ == 5 and wm == 1:
                    if NG0 != 10:
                        ops += [(-9, d) for d in gu2]
        def reads(s, Y):
            S = s >> 1
            rd = []
            for sub in range(2):
                for m in range(NM):
                    r = Y + (sub * 3 + m) * 4
                    rd.append(f"ds_read_b128 v[{r}:{r+3}], v{8 + (s&1)*2 + sub} offset:{(S%3)*18432 + toff[m]}")
                for n in range(2):
                    r = Y + 24 + (sub * 2 + n) * 4
                    of = (s % 4) * 16384 + sub * 7680 + n * 64
                    rd.append(f"ds_read_b64_tr_b16 v[{r}:{r+1}], v20 offset:{of}")
                    rd.append(f"ds_read_b64_tr_b16 v[{r+2}:{r+3}], v20 offset:{of+480}")
            return rd
        def need(s):
            return lambda t: t == ("B", s) or t == ("A", s >> 1)
        self.ts(2)
        n = vm.wait(need(0))
        self(f"s_waitcnt vmcnt({n}) lgkmcnt(0)\ns_barrier")
        self.ts(3); self.tstep("f")
        for r in reads(0, 80):
            self(r)
        self.emit_ops(vm, self.sched(ops, -1, o.get("qpost", 2)))
        self("s_waitcnt lgkmcnt(0)")
        self.align8()
        sc = 20 ** -0.5 * 1.4426950408889634
        for s in range(20):
            X = 80 + (s & 1) * 40; Y = 80 + ((s + 1) & 1) * 40
            also = ()
            for k_, t_ in ((ST, "px"), (BN, "pk"), (CSs, "gu"), (AT, "early"), (AT, "nonce"), (CK, "poll"), (CK + 2, "stat")):
                if s == k_: also += (t_,)
            p0 = need(s + 1)
            assert not any(p0(d[2]) or d[2] in also for _, d in ops), (s, wm)
            n = vm.wait(lambda t: p0(t) or t in also)
            self(f"s_waitcnt vmcnt({n})" if n is not None else "s_nop 0")
            if s == CK:
                self.check_spin(26, 35)
            if s == AT:
                self.nonce_get()
            self("s_barrier")
            if s in (CK, AT):
                self.align8()
            self.tstep(s)
            fill = []; extra = []; extra2 = []; mfx = []
            if s in (ST, ST + 1):
                comp, st = self.stats_parts(1)
                ch = self.chunks(comp, 16)
                extra2 = ch[:8] if s == ST else ch[8:]
            if s == ST + 2:
                for l in self.stats_parts(1)[1]:
                    fill.append(l); vm.issue("early")
            if s == BN - 1:
                assert not any(d[2] == "pk" for _, d in ops)
                extra += self.scc_chunks(self.capture(lambda: self.pack_dst(0)), 4)
            if s == BN:
                extra += self.pack_tr(36)
            if s == CSs:
                for sub in range(5):
                    r = 36 + sub * 4
                    extra += [f"ds_read_b64_tr_b16 v[{r}:{r+1}], v21 offset:{sub*6144}", f"ds_read_b64_tr_b16 v[{r+2}:{r+3}], v21 offset:{sub*6144+1536}"]
            if s == CSs + 1:
                for sub in range(5):
                    r = 36 + sub * 4
                    mfx.append(f"v_mfma_f32_32x32x16_bf16 v[56:71], v[76:79], v[{r}:{r+3}], {'0' if sub == 0 else 'v[56:71]'}")
            if s == CSs + 2:
                fill.append(f"buffer_store_dword v56, v22, {srd(SW)}, s{T0+1} offen sc1"); vm.issue("early")
            if s == CK:
                fill.append(f"buffer_load_dwordx2 v[30:31], v6, {srd(SW)}, s{T0+5} offen sc1"); vm.issue("stat")
            fill += self.fill_ops(vm, self.sched(ops, s, o.get("qrate", 5) + wm * o.get("qrate1", 1)))
            if s == STS:
                fill += [self.stats_parts(1)[1][0], f"buffer_store_dword v56, v22, {srd(SW)}, s{T0+1} offen sc1"]; vm.issue("early"); vm.issue("early")
            if s in (BN + 1, BN + 2):
                k_ = 2 * (s - BN - 1)
                fill += self.pack_stores(VM(), 36)[k_:k_ + 2]; vm.issue("early"); vm.issue("early")
            if s == AT:
                fill += self.early_flag(); vm.issue("ef")
            if s == 9:
                extra += self.p2_params()
            if s == 10:
                extra += self.check_addr(35)
            if s == 11:
                zq = QZ - 16 * QS
                extra += ["v_and_b32 v4, 15, v0\nv_lshrrev_b32 v5, 4, v0", f"s_mul_i32 s{T0+1}, s3, {16*QS}", f"v_mul_u32_u24 v6, {QS}, v4",
                          f"v_add_u32 v7, s{T0+1}, v6\nv_add_u32 v34, v7, v6", "v_lshl_add_u32 v25, v5, 3, v34", "v_lshl_add_u32 v6, v5, 3, v7",
                          f"v_mov_b32 v4, {zq}",
                          f"s_mov_b32 vcc_lo, 0x55555555\ns_mov_b32 vcc_hi, 0x55555555\nv_cndmask_b32 v21, v4, v6, vcc\nv_cndmask_b32 v23, v6, v4, vcc",
                          f"s_mov_b64 vcc, 0x5555\nv_cndmask_b32 v22, v4, v7, vcc\ns_nop 0", f"s_mov_b64 vcc, 0xaaaa\nv_cndmask_b32 v24, v4, v7, vcc\ns_nop 0"]
            if s == 12:
                extra += ["v_lshrrev_b32 v6, 2, v0\nv_and_b32 v7, 3, v0", f"v_mul_u32_u24 v6, {2*QS}, v6", f"v_add_u32 v6, s{T0+1}, v6\ns_nop 0",
                          "v_lshl_add_u32 v1, v7, 3, v6", "v_mad_u32_u24 v18, v7, 40, v6",
                          f"s_and_b32 s{T0+6}, s3, 3\nv_lshrrev_b32 v5, 5, v0", f"s_lshl_b32 s{T0+7}, s{T0+6}, 8\nv_and_b32 v4, 15, v0", f"s_add_u32 s{T0+7}, s{T0+7}, {CSL}",
                          f"v_lshl_add_u32 v17, v5, 4, s{T0+7}", "v_lshlrev_b32 v6, 8, v5\nv_lshlrev_b32 v4, 4, v4", "v_bfe_u32 v7, v0, 4, 1",
                          "v_lshl_add_u32 v7, v7, 26, v6", "v_add_u32 v16, v7, v4\ns_nop 0"]
            if s == 13:
                extra += [f"s_lshr_b32 s{T0+1}, s3, 2\ns_lshl1_add_u32 s{T0+1}, s{S_MT}, s{T0+1}", f"s_mul_i32 s{T0+1}, s{T0+1}, {68*4096}",
                          f"s_and_b32 s{T0+2}, s3, 3\ns_lshl_b32 s{T0+2}, s{T0+2}, 10", f"s_add_u32 s{T0+1}, s{T0+1}, s{T0+2}\ns_lshl_b32 s{T0+2}, s{S_C}, 13",
                          f"s_add_u32 s{T0+2}, s{T0+2}, s{T0+1}\ns_lshr_b32 s{T0+12}, s{S_C}, 1", f"s_add_u32 s{T0+2}, s{T0+2}, {48*4096}", f"s_add_u32 s{T0+3}, s{T0+2}, 4096",
                          f"s_lshl_b32 s{T0+12}, s{T0+12}, 12\ns_add_u32 s{T0+1}, s{T0+1}, s{T0+12}",
                          f"s_and_b32 s{T0+12}, s{S_C}, 1\ns_lshl_b32 s{T0+12}, s{T0+12}, 9", f"s_add_u32 s{T0+1}, s{T0+1}, s{T0+12}\ns_nop 0", f"s_add_u32 s{T0+1}, s{T0+1}, {64*4096}"]
            if s == CK - 2:
                fill.append(self.check_issue(26, 35)); vm.issue("poll", True)
            if s == CK - 1:
                extra += [f"s_lshl_b32 s{T0+5}, s3, 6\ns_lshl_b32 s{T0+4}, s{S_MT}, 7", f"v_add_u32 v4, s{T0+5}, v0\ns_sub_u32 s{T0+4}, s{T0+4}, 16",
                          "v_min_u32 v4, 143, v4", f"v_add_u32 v5, s{T0+4}, v4\nv_max_i32 v5, 0, v5",
                          f"v_lshlrev_b32 v6, 3, v5\nv_lshlrev_b32 v4, 3, v4", f"v_add_u32 v32, {QST}, v4", f"s_mov_b32 s{T0+5}, {STATS}",
                          f"s_cmp_lt_u32 s3, 3\ns_nop 0\ns_cselect_b32 s{T0+5}, s{T0+5}, {OOB}"]
            if s == 16:
                wq += self.w2_pair(6, 2, 7, 3) + self.w2_reg(0)
                extra += [f"s_or_b32 s{T0+4}, s{S_MT}, s3\ns_cmp_eq_u32 s{T0+4}, 0\ns_cselect_b32 s{T0+4}, 8, 0\nv_lshrrev_b32 v5, 4, v0",
                          "v_bfe_u32 v6, v0, 1, 3", f"v_add_u32 v7, 1, v6\nv_max_u32 v7, s{T0+4}, v7", f"v_add_u32 v6, 8, v6\nv_lshlrev_b32 v5, 2, v5",
                          "v_sub_u32 v6, v6, v7\nv_sub_u32 v5, v5, v7", f"v_mov_b32 v4, {f2u(-1e30)}"]
                for r in range(4):
                    extra += [f"v_add_u32 v7, {r}, v5\nv_cmp_ge_u32 vcc, v6, v7\ns_nop 1\ns_nop 0\nv_cndmask_b32_e64 v{12+r}, v4, 0, vcc"]
            if s == 17:
                assert CK + 2 <= 17
                if wm == 0:
                    L = self.label()
                    extra += [f"s_cmp_ge_u32 s3, 3\ns_cbranch_scc1 {L}\nds_write_b64 v32, v[30:31]\n{L}:"]
                extra += [f"s_and_b32 s{T0+6}, s3, 3\nv_and_b32 v4, 31, v0", f"v_mul_u32_u24 v6, {QS}, v4", f"s_lshl_b32 s{T0+6}, s{T0+6}, 7\nv_lshrrev_b32 v5, 5, v0",
                          f"v_lshlrev_b32 v5, 3, v5\nv_lshlrev_b32 v4, 3, v4", f"v_add3_u32 v35, v6, v5, s{T0+6}",
                          f"v_add_u32 v4, {QST}, v4", f"s_lshl_b32 s{T0+4}, s3, 7\nv_lshrrev_b32 v5, 4, v0", f"s_add_u32 s{T0+4}, s{T0+4}, {QST}",
                          "v_and_b32 v6, 15, v0\nv_and_b32 v7, 1, v0", f"v_lshl_add_u32 v6, v6, 3, s{T0+4}", f"v_lshl_add_u32 v7, v7, 3, s{T0+4}",
                          "v_lshl_add_u32 v7, v5, 6, v7"]
                for h in range(1, 4):
                    extra.append(f"v_cmp_eq_u32_e64 s[{T0+4+2*h}:{T0+5+2*h}], {h}, v5")
            if s == 18:
                rowoff = [0, 16, 48] if wm == 0 else [80, 112]
                for m in range(NM):
                    extra.append(f"ds_read_b32 v{26+m}, v4 offset:{rowoff[m]*8}")
                extra.append(f"ds_read_b32 v29, v6 offset:{16*8+4}")
                for r in range(4):
                    extra.append(f"ds_read_b32 v{30+r}, v7 offset:{4+16*r}")
            if s == 19:
                wq += self.w2_pair(4, 0, 5, 1) + self.w2_reg(1)
            fill += self.take(vm, wq, o.get("qwr", 4))
            def mfma(sub, n_, m):
                c = 160 + (m * 2 + n_) * 16
                cin = "0" if (s == 0 and sub == 0) else f"v[{c}:{c+15}]"
                b = X + 24 + (sub * 2 + n_) * 4; a_ = X + (sub * 3 + m) * 4
                return f"v_mfma_f32_32x32x16_bf16 v[{c}:{c+15}], v[{b}:{b+3}], v[{a_}:{a_+3}], {cin}"
            if s < 19:
                mf = mfx + [mfma(sub, n_, m) for sub in range(2) for n_ in range(2) for m in range(NM)]
                lists = [(reads(s + 1, Y), 0.0, 0.8)]
                if fill: lists.append((fill, 0.0, 1.0))
                if extra: lists.append((extra, 0.0, 0.9))
                if extra2: lists.append((extra2, 0.0, 0.9))
                self.interleave(mf, lists)
                self("s_waitcnt lgkmcnt(0)\ns_nop 0")
            else:
                mf = [mfma(sub, n_, m) for m in range(NM) for sub in range(2) for n_ in range(2)]
                extra = ["v_and_b32 v6, 1, v0\nv_mov_b32 v4, 0", "v_add_u32 v8, -1, v6\nv_sub_u32 v9, 0, v6",
                         f"v_add_u32 v5, {QZ}, v3", "ds_write_b32 v5, v4",
                         f"v_mul_f32 v29, {f2u(sc)}, v29", "v_mul_f32 v76, v29, v30\nv_mul_f32 v77, v29, v31", "v_mul_f32 v78, v29, v32\nv_mul_f32 v79, v29, v33",
                         "v_mov_b32 v10, v27\nv_mov_b32 v11, v27", "v_mov_b32 v27, v26\nv_mov_b32 v29, v28"]
                self.interleave(mf[:-4], [(fill, 0.0, 1.0), (extra, 0.0, 1.0)])
                if wm == 0:
                    self("s_nop 7\ns_mov_b32 exec_lo, 1\ns_mov_b32 exec_hi, 1\ns_nop 0")
                    for n_ in range(2):
                        for a_ in range(4):
                            c = 160 + n_ * 16 + a_ * 4
                            self(f"ds_write_b128 v17, v[{c}:{c+3}] offset:{n_*128 + a_*32}")
                    self("s_mov_b64 exec, -1\ns_nop 0")
                self(mf[-4]); self(mf[-3])
                self("s_waitcnt lgkmcnt(0)\ns_barrier")
                for n_ in range(2):
                    for a_ in range(4):
                        r = 80 + n_ * 16 + a_ * 4
                        self(f"ds_read_b128 v[{r}:{r+3}], v17 offset:{n_*128 + a_*32}")
                self(mf[-2]); self(mf[-1])
            assert s < 15 or not ops
        self.ts(4)
        wq += self.w2_reg(2)
        w2 = self.take(vm, wq, o.get("qwf", 4))
        self.q_rest = wq
        self("s_waitcnt lgkmcnt(0)\ns_nop 0")
        rowoff = [0, 16, 48] if wm == 0 else [80, 112]
        body = []
        for m in range(NM):
            pr = [26, 10, 28][m]
            for n_ in range(2):
                c = 160 + (m * 2 + n_) * 16
                for a_ in range(4):
                    for r in (4 * a_, 4 * a_ + 2):
                        body.append(f"v_pk_fma_f32 v[{c+r}:{c+r+1}], v[{pr}:{pr+1}], v[{80+n_*16+r}:{81+n_*16+r}], v[{c+r}:{c+r+1}]")
                for a_ in range(4):
                    body.append(f"v_cvt_pk_bf16_f32 v{c+4*a_}, v{c+4*a_}, v{c+4*a_+1}\nv_cvt_pk_bf16_f32 v{c+4*a_+1}, v{c+4*a_+2}, v{c+4*a_+3}")
                    body.append(f"ds_write_b64 v35, v[{c+4*a_}:{c+4*a_+1}] offset:{rowoff[m]*QS + n_*64 + a_*16}")
        if o.get("qw2fold", 1):
            self.interleave(body, [(w2, 0.0, 1.0)])
        else:
            for it in body + w2: self(it)

    def attention(self):
        QS = self.QS
        vm = VM()
        self("s_waitcnt lgkmcnt(0)\ns_barrier")
        self.ts(5)
        Qe, Qo, Ke, Ko, Vf, Vr = 160, 176, 192, 208, 224, 96
        Sx, Pf, O, R = 240, 80, 160, 176
        for h in range(4):
            self(f"ds_read_b64 v[{Qe+4*h}:{Qe+4*h+1}], v21 offset:{16*QS + 40*h}")
            self(f"ds_read_b64 v[{Qe+4*h+2}:{Qe+4*h+3}], v22 offset:{16*QS + 40*h + 32}")
            self(f"ds_read_b64 v[{Ke+4*h}:{Ke+4*h+1}], v25 offset:{160 + 40*h}")
            self(f"ds_read_b64 v[{Ke+4*h+2}:{Ke+4*h+3}], v34 offset:{160 + 40*h + 32}")
        for h in range(4):
            self(f"ds_read_b64 v[{Qo+4*h}:{Qo+4*h+1}], v23 offset:{16*QS + 40*h}")
            self(f"ds_read_b64 v[{Qo+4*h+2}:{Qo+4*h+3}], v24 offset:{16*QS + 40*h + 32}")
            self(f"ds_read_b64 v[{Ko+4*h}:{Ko+4*h+1}], v25 offset:{QS + 160 + 40*h}")
            self(f"ds_read_b64 v[{Ko+4*h+2}:{Ko+4*h+3}], v34 offset:{QS + 160 + 40*h + 32}")
        wq = self.q_rest
        na = self.o.get("qwa", 2)
        self.emit_items(self.take(vm, wq, na))
        self("s_waitcnt lgkmcnt(0)" if self.instr else "s_waitcnt lgkmcnt(15)")
        self.align8()
        for h in range(4):
            self(f"v_mfma_f32_16x16x32_bf16 v[{Sx+4*h}:{Sx+4*h+3}], v[{Ke+4*h}:{Ke+4*h+3}], v[{Qe+4*h}:{Qe+4*h+3}], v[12:15]")
        self("s_waitcnt lgkmcnt(0)\ns_nop 0")
        for h in range(4):
            self(f"v_mfma_f32_16x16x32_bf16 v[{Sx+4*h}:{Sx+4*h+3}], v[{Ko+4*h}:{Ko+4*h+3}], v[{Qo+4*h}:{Qo+4*h+3}], v[{Sx+4*h}:{Sx+4*h+3}]")
        for h in range(4):
            self(f"ds_read_b64_tr_b16 v[{Vf+4*h}:{Vf+4*h+1}], v1 offset:{320 + 40*h}")
            self(f"ds_read_b64_tr_b16 v[{Vf+4*h+2}:{Vf+4*h+3}], v1 offset:{QS + 320 + 40*h}")
        self(f"ds_read_b64_tr_b16 v[{Vr}:{Vr+1}], v18 offset:{320 + 32}")
        self(f"ds_read_b64_tr_b16 v[{Vr+2}:{Vr+3}], v18 offset:{QS + 320 + 32}")
        M = 4
        for h in range(4):
            s = Sx + 4 * h
            self(f"v_pk_mul_f32 v[{s}:{s+1}], v[{s}:{s+1}], v[76:77]\nv_pk_mul_f32 v[{s+2}:{s+3}], v[{s+2}:{s+3}], v[78:79]")
        for h in range(4):
            s = Sx + 4 * h
            self(f"v_max3_f32 v{M+h}, v{s}, v{s+1}, v{s+2}")
        for h in range(4):
            s = Sx + 4 * h
            self(f"v_max_f32 v{M+h}, v{M+h}, v{s+3}")
        def red(op, post):
            self(f"s_nop 1\nv_permlane16_swap_b32 v{M}, v{M+1}\nv_permlane16_swap_b32 v{M+2}, v{M+3}\ns_nop 0")
            self(f"{op} v{M}, v{M}, v{M+1}\n{op} v{M+2}, v{M+2}, v{M+3}\ns_nop 1\nv_permlane32_swap_b32 v{M}, v{M+2}\ns_nop 0\n{op} v{M}, v{M}, v{M+2}")
            if post: self(post)
            self(f"v_mov_b32 v{M+2}, v{M}\ns_nop 1\nv_permlane32_swap_b32 v{M}, v{M+2}\ns_nop 0")
            self(f"v_mov_b32 v{M+1}, v{M}\nv_mov_b32 v{M+3}, v{M+2}\ns_nop 1\nv_permlane16_swap_b32 v{M}, v{M+1}\nv_permlane16_swap_b32 v{M+2}, v{M+3}\ns_nop 0")
        red("v_max_f32", None)
        self.emit_items(self.take(vm, wq, na))
        for h in range(4):
            for r in range(4):
                self(f"v_sub_f32 v{Sx+4*h+r}, v{Sx+4*h+r}, v{M+h}")
        for h in range(4):
            for r in range(4):
                self(f"v_exp_f32 v{Sx+4*h+r}, v{Sx+4*h+r}")
        self("s_nop 0")
        for h in range(4):
            s = Sx + 4 * h
            self(f"v_add_f32 v{M+h}, v{s}, v{s+1}\nv_add_f32 v10, v{s+2}, v{s+3}\nv_add_f32 v{M+h}, v{M+h}, v10")
        self.align8()
        for h in range(4):
            s = Sx + 4 * h
            self(f"v_pk_mul_f32 v[{s}:{s+1}], v[{s}:{s+1}], v[30:31]\nv_pk_mul_f32 v[{s+2}:{s+3}], v[{s+2}:{s+3}], v[32:33]")
        red("v_add_f32", f"v_rcp_f32 v{M}, v{M}\ns_nop 0")
        assert all(not x[0] for x in wq)
        for h in range(4):
            s = Sx + 4 * h
            for r in range(4):
                self(f"v_mul_f32 v{s+r}, v{s+r}, v{M+h}")
            self(f"v_cvt_pk_bf16_f32 v{s}, v{s}, v{s+1}\nv_cvt_pk_bf16_f32 v{s+1}, v{s+2}, v{s+3}")
            p = Pf + 4 * h
            self(f"v_and_b32 v{p}, v{s}, v8\nv_and_b32 v{p+1}, v{s+1}, v8\nv_and_b32 v{p+2}, v{s}, v9\nv_and_b32 v{p+3}, v{s+1}, v9")
        self("s_waitcnt lgkmcnt(0)\ns_nop 0")
        for h in range(4):
            self(f"v_mfma_f32_16x16x32_bf16 v[{O+4*h}:{O+4*h+3}], v[{Vf+4*h}:{Vf+4*h+3}], v[{Pf+4*h}:{Pf+4*h+3}], 0")
        for h in range(4):
            self(f"v_mfma_f32_16x16x32_bf16 v[{R+4*h}:{R+4*h+3}], v[{Vr}:{Vr+3}], v[{Pf+4*h}:{Pf+4*h+3}], 0")
        self("s_nop 3")
        for k in range(2):
            d = 192 + 4 * k
            for q in range(4):
                self(f"v_cvt_pk_bf16_f32 v{d+q}, v{O+8*k+2*q}, v{O+8*k+2*q+1}")
            self(f"buffer_store_dwordx4 v[{d}:{d+3}], v2, {srd(SW)}, s{T0+2+k} offen sc1"); vm.issue("st")
        for h in range(1, 4):
            for r in range(4):
                self(f"v_cndmask_b32_e64 v{R+r}, v{R+r}, v{R+4*h+r}, s[{T0+4+2*h}:{T0+5+2*h}]")
        self(f"v_cvt_pk_bf16_f32 v200, v{R}, v{R+1}\nv_cvt_pk_bf16_f32 v201, v{R+2}, v{R+3}")
        self("v_mov_b32 v202, v200\nv_mov_b32 v203, v201\ns_nop 1\nv_permlane16_swap_b32 v200, v202\nv_permlane16_swap_b32 v201, v203\ns_nop 0")
        self(f"buffer_store_dwordx4 v[200:203], v16, {srd(SW)}, s{T0+1} offen sc1"); vm.issue("st")
        if self.o.get("tsa"): self.ts(2)
        self.emit_items(self.take(vm, wq))
        self.publish(vm)

    def p2(self):
        vm = VM()
        o = self.o
        self("P2_START:")
        PH, t, so, fo = T0 + 3, T0 + 5, T0 + 6, T0 + 4
        LW = S_LW
        KS = T0 + 7
        KL = 4
        self.emit_items(self.take(vm, self.w2_reg(3)))
        self(f"s_lshr_b32 s{fo}, s{S_M2}, 1\ns_lshl_b32 s{fo}, s{fo}, 11\ns_add_u32 s{fo}, s{fo}, {FLAGS}")
        self(f"s_lshl_b32 s{t}, s3, 8\ns_add_u32 s{PH}, s{t}, 128")
        self(f"v_mov_b32 v12, s{PH}\nv_writelane_b32 v12, s{t}, 0")
        self(f"s_lshl1_add_u32 s{t}, s{t}, 128\ns_cmp_lt_u32 s3, 4\ns_cselect_b32 s{t}, s{t}, s{PH}\nv_writelane_b32 v12, s{t}, 2")
        self(f"s_cselect_b32 s{PH}, 256, 0\ns_add_u32 s{t}, s{t}, s{PH}\nv_writelane_b32 v12, s{t}, 3")
        poll = f"buffer_load_dwordx2 v[14:15], v12, {srd(SW)}, s{fo} offen sc1"
        self(poll)
        self(f"s_mul_i32 s{t}, s3, 6")
        for i in range(6):
            self(f"s_add_u32 s{KS+i}, s{S_ROT}, {i}\ns_cmp_ge_u32 s{KS+i}, 6\ns_cselect_b32 s{so}, 6, 0\ns_sub_u32 s{KS+i}, s{KS+i}, s{so}\ns_add_u32 s{KS+i}, s{KS+i}, s{t}")
        self(f"s_lshl1_add_u32 s{KS+6}, s3, 48\ns_add_u32 s{KS+7}, s{KS+6}, 1\ns_add_u32 s{KS+8}, s3, 64")
        for k, i in enumerate((5, 6, 7, 4)):
            self(f"s_mul_i32 s{KL+k}, s{KS+i}, 5120\ns_add_u32 s{KL+k}, s{KL+k}, s{S_WB}")
        self(f"s_mul_i32 s{t}, s{S_M2}, {68*4096}")
        for i in range(9):
            self(f"s_lshl_b32 s{KS+i}, s{KS+i}, 12\ns_add_u32 s{KS+i}, s{KS+i}, s{t}")
        ACC = 176
        self(f"v_add_u32 v11, s{LW}, v2\nv_add_u32 v13, 4096, v2")
        self.mk_srd(SA, P_OUT, 2048 * 1280)
        self(f"s_lshl_b32 s{t}, s{S_M2}, 6\ns_lshl3_add_u32 s{t}, s3, s{t}\ns_mul_i32 s{t}, s{t}, 1280\ns_mul_i32 s{PH}, s{S_N2}, 160\ns_add_u32 s{PH}, s{PH}, s{t}")
        for rnd in range(3):
            self(f"v_add_u32 v16, {64*rnd}, v0\nv_mul_u32_u24 v17, 3277, v16\nv_lshrrev_b32 v17, 16, v17\nv_mul_u32_u24 v18, 20, v17\nv_sub_u32 v16, v16, v18")
            self("v_bfe_u32 v18, v17, 1, 2\nv_xor_b32 v16, v16, v18\nv_mul_u32_u24 v17, 1280, v17")
            self(f"v_lshl_add_u32 v{4+rnd}, v16, 3, v17")
        self("v_lshrrev_b32 v16, 5, v0\nv_lshl_add_u32 v6, v16, 26, v6")
        self("v_and_b32 v16, 15, v0\nv_lshrrev_b32 v17, 4, v0\nv_bfe_u32 v18, v0, 1, 2\nv_xor_b32 v17, v17, v18\nv_mul_u32_u24 v16, 320, v16")
        self(f"v_lshl_add_u32 v16, v17, 4, v16\nv_add_u32 v7, s{LW}, v16")
        self(f"s_mul_i32 s{t}, s3, 2560\nv_add_u32 v8, s{t}, v2\nv_add_u32 v9, 61440, v8\nv_add_u32 v10, 122880, v8")
        self("s_waitcnt vmcnt(0)")
        vm = VM()
        cmpn = f"v_cmp_ne_u64 vcc, s[{S_N}:{S_N+1}], v[14:15]"
        self.spin(cmpn + "\ns_nop 1\ns_and_b64 vcc, vcc, 1", poll, False, o.get("psl", 2))
        self.ts(7)
        NB = 3
        AR = lambda i: [80, 160, 20][i % NB]
        def ldA(i):
            return [f"buffer_load_dwordx4 v[{AR(i)+4*m}:{AR(i)+4*m+3}], v2, {srd(SW)}, s{KS+i} offen offset:{m*1024} sc1" for m in range(4)]
        for i in range(NB):
            for l in ldA(i):
                self(l); vm.issue(("A", i))
        XR = WR[4]
        def variant(vm, late):
            NS = 8 if late else 9
            for i in range(NS):
                also = [("W", i), ("L", i - 4)]
                chk = i == 6 - NB + 1
                if chk: also.append("poll")
                n = vm.wait(lambda t: t == ("A", i) or t in also)
                self(f"s_waitcnt vmcnt({n}) lgkmcnt(0)\ns_nop 0")
                if chk:
                    self.spin(cmpn, poll, False, o.get("psl", 2)); self.align8()
                mf = []
                for m in range(4):
                    for tt in range(5):
                        c = ACC + (m * 5 + tt) * 4
                        w = WR[i % 5] + 4 * tt
                        mf.append(f"v_mfma_f32_16x16x32_bf16 v[{c}:{c+3}], v[{w}:{w+3}], v[{AR(i)+4*m}:{AR(i)+4*m+3}], {'0' if i == 0 else 'v[%d:%d]' % (c, c+3)}")
                fill = []
                if i == 0:
                    for tt in range(5):
                        r = WR[4] + 4 * tt
                        fill.append(f"buffer_load_dwordx4 v[{r}:{r+3}], v{13 if tt == 4 else 2}, {srd(SW)}, s{KL+3} offen offset:{(tt%4)*1024} sc1"); vm.issue(("W", 4))
                if i == 1:
                    fill.append(poll); vm.issue("poll")
                j = i - 1 + NB
                if i >= 1 and j < NS:
                    fill += ldA(j)
                    for _ in range(4): vm.issue(("A", j))
                if late and 1 <= i <= 3:
                    k = i - 1
                    for tt in range(5):
                        of = (tt % 4) * 1024
                        fill.append((f"s_add_u32 m0, s{LW}, {lit(k*5120 + tt*1024 - of)}",
                                     f"buffer_load_dwordx4 v{13 if tt == 4 else 2}, {srd(SW)}, s{KL+k} offen offset:{of} sc1 lds")); vm.issue(("L", k))
                if i == 6:
                    for rnd in range(3):
                        fill.append(f"buffer_load_dwordx2 v[{XR+2*rnd}:{XR+2*rnd+1}], v{4+rnd}, {srd(SX)}, s{PH} offen"); vm.issue("x")
                rl = []
                k = (i - 4) if late else (i - 1)
                if 0 <= k < NS - 5:
                    rl = [f"ds_read_b128 v[{WR[k]+4*tt}:{WR[k]+4*tt+3}], v11 offset:{k*5120 + tt*1024}" for tt in range(5)]
                if i < NS - 1:
                    lists = []
                    if fill: lists.append((fill, 0.0, 0.9))
                    if rl: lists.append((rl, 0.0, 0.6))
                    self.interleave(mf, lists)
                else:
                    assert not fill and not rl
                    wr = [f"ds_write_b128 v7, v[{ACC+(m*5+tt)*4}:{ACC+(m*5+tt)*4+3}] offset:{m*5120 + tt*64}" for m in range(4) for tt in range(5)]
                    LAG = 8
                    for k in range(20 + LAG):
                        if k < 20: self(mf[k])
                        if k == 20: self("s_nop 1\ns_nop 0")
                        if k >= LAG: self(wr[k - LAG])
        self("s_cmp_ge_u32 s3, 4\ns_cbranch_scc1 P2_B")
        self.align8()
        vm2 = copy.deepcopy(vm)
        variant(vm, False)
        self("s_branch P2_RED")
        self.align8()
        self("P2_B:")
        variant(vm2, True)
        self("P2_RED:")
        self.ts(8)
        self("s_waitcnt lgkmcnt(0)\ns_barrier")
        RB = [36, 120, 176]
        for rnd in range(3):
            for src in range(8):
                r = RB[rnd] + src * 4
                self(f"ds_read_b128 v[{r}:{r+3}], v{8 + src//3} offset:{(src%3)*20480 + rnd*1024}")
        self("s_waitcnt vmcnt(0)\ns_nop 0")
        ofl = {0: "", 1: " sc1", 2: " nt", 3: " sc0 sc1"}[self.o.get("ost", 0)]
        for rnd in range(3):
            b = RB[rnd]
            x = XR + 2 * rnd
            self(f"v_lshlrev_b32 v{XR+8}, 16, v{x}\nv_lshlrev_b32 v{XR+10}, 16, v{x+1}\nv_and_b32 v{XR+9}, 0xffff0000, v{x}\nv_and_b32 v{XR+11}, 0xffff0000, v{x+1}")
            self("s_waitcnt lgkmcnt(0)\ns_nop 0" if self.instr else f"s_waitcnt lgkmcnt({[15,8,0][rnd]})\ns_nop 0")
            for st in (4, 8, 16):
                for k in range(0, 32, 2 * st):
                    for r in (0, 2):
                        self(f"v_pk_add_f32 v[{b+k+r}:{b+k+r+1}], v[{b+k+r}:{b+k+r+1}], v[{b+k+st+r}:{b+k+st+r+1}]")
            for r in (0, 2):
                self(f"v_pk_add_f32 v[{b+r}:{b+r+1}], v[{b+r}:{b+r+1}], v[{XR+8+r}:{XR+9+r}]")
            self(f"v_cvt_pk_bf16_f32 v{b}, v{b}, v{b+1}\nv_cvt_pk_bf16_f32 v{b+1}, v{b+2}, v{b+3}")
            self(f"buffer_store_dwordx2 v[{b}:{b+1}], v{4+rnd}, {srd(SA)}, s{PH} offen{ofl}")
        if self.instr:
            self("s_waitcnt vmcnt(0)")
            self.ts(9)
            self(f"s_memrealtime s[{T0+2}:{T0+3}]\ns_waitcnt lgkmcnt(0)")
            if "ampj" in self.o:
                i_, j_, K_ = self.o.get("ampi", 0), self.o["ampj"], self.o.get("ampk", 1)
                self(f"s_sub_u32 s{T0+4}, s{TSB+2*j_}, s{TSB+2*i_}\ns_mul_i32 s{T0+4}, s{T0+4}, {K_}")
                if not self.o.get("rt"):
                    self(f"s_mul_i32 s{T0+4}, s{T0+4}, 6554\ns_lshr_b32 s{T0+4}, s{T0+4}, 16")
                if "ampt" in self.o:
                    self(f"s_bitcmp{self.o['ampt']}_b32 s2, 3\ns_cselect_b32 s{T0+4}, s{T0+4}, 0")
                if "ampx" in self.o:
                    self(f"s_and_b32 s{T0+5}, s2, 7\ns_cmp_eq_u32 s{T0+5}, {self.o['ampx']}\ns_cselect_b32 s{T0+4}, s{T0+4}, 0")
                if "xcc" in self.o:
                    self(f"s_getreg_b32 s{T0+4}, hwreg(HW_REG_XCC_ID)\ns_sub_u32 s{T0+4}, s{T0+4}, s2\ns_and_b32 s{T0+4}, s{T0+4}, 7")
                    if self.o["xcc"]:
                        self(f"s_sub_u32 s{T0+4}, 7, s{T0+4}")
                    self(f"s_mul_i32 s{T0+4}, s{T0+4}, 200")
                self(f"s_min_u32 s{T0+4}, s{T0+4}, 20000")
                self(f"LAMP:\ns_memrealtime s[{T0+6}:{T0+7}]\ns_waitcnt lgkmcnt(0)\ns_sub_u32 s{T0+5}, s{T0+6}, s{T0+2}\ns_cmp_lt_u32 s{T0+5}, s{T0+4}\ns_cbranch_scc1 LAMP")
                return
            for i in range(1, 10):
                self(f"s_sub_u32 s{T0}, s{TSB+2*i}, s{TSB}\nv_mov_b32 v{20+i}, s{T0}")
            self(f"v_mov_b32 v20, s100\nv_mov_b32 v30, s{T0+2}\nv_mov_b32 v31, 0")
            self(f"s_lshl3_add_u32 s{T0}, s2, s3\ns_lshl_b32 s{T0}, s{T0}, 6\ns_add_u32 s{T0}, s{T0}, {TS}\nv_lshlrev_b32 v12, 26, v0")
            for q in range(3):
                self(f"buffer_store_dwordx4 v[{20+4*q}:{23+4*q}], v12, {srd(SW)}, s{T0} offen offset:{16*q}")

    def build(self):
        k = NAME + "_kernel"
        self(header([f"@launch grid=(256,1,1) block=(512,1,1) lds={160*1024}"]))
        self(kbegin(k))
        self.ts(0)
        if self.instr:
            self("s_memrealtime s[100:101]")
        self("s_load_dwordx16 s[4:19], s[0:1], 0\ns_load_dwordx4 s[20:23], s[0:1], 64")
        self("v_lshrrev_b32 v1, 6, v0\nv_and_b32 v0, 63, v0")
        self("s_cmp_ge_u32 s2, 256\ns_cbranch_scc1 K_END")
        self("v_readfirstlane_b32 s3, v1")
        self(f"s_and_b32 s{S_C}, s2, 7\ns_lshr_b32 s{S_MT}, s2, 4")
        self("s_bitcmp1_b32 s2, 3\ns_cbranch_scc1 Q_START")
        self.h_path()
        self.q_path()
        self.p2()
        self("K_END:\ns_endpgm")
        self("K_LAST:")
        self(f".set CODE_SPAN, K_LAST - {k} - 1024")
        self(kdesc(k, 256, 102, 256))
        return self.a.text()

if __name__ == "__main__":
    out = sys.argv[1]
    instr = "instr" in sys.argv[2:]
    opts = {}
    for x in sys.argv[2:]:
        if "=" in x:
            kk, vv = x.split("="); opts[kk] = int(vv)
    open(out, "w").write(G(instr, opts).build())
```

```python
import sys, struct, copy
from gen_common import *

def f2u(x):
    return hex(struct.unpack('<I', struct.pack('<f', x))[0])

A2F = 0
W2P = 16 << 20
STATS = 20 << 20
CS = 21 << 20
FLAGS = 22 << 20
TS = 24 << 20
WSN = 32 << 20
OOB = 0x80000000
SPIN = 200000

P_X, P_QKV, P_WO, P_BX, P_WG, P_WU, P_WD, P_OUT, P_DBG, P_WS = 4, 6, 8, 10, 12, 14, 16, 18, 20, 22
SX, SB, SW, SD, SA = 24, 28, 32, 36, 40
SP = 4
S_C, S_MT, S_ROW = 44, 45, 46
S_M2, S_N2, S_ROT = 47, 48, 49
S_KB, S_A2, S_LB, S_LA = 50, 51, 52, 53
S_FLAG, S_LW = 54, 55
S_N = 0
EFL = 65536
S_HM = 56
S_MULW, S_ADDW = 58, 59
T0 = 60
S_WB, S_L5 = 10, 11
TSB = 80
WR = [36, 56, 120, 140, 100]

def srd(r):
    return f"s[{r}:{r+3}]"

def lit(v):
    return str(v) + ("\ns_nop 0" if -16 <= v <= 64 else "")

class NH(str):
    pass

class VM:
    def __init__(self):
        self.q = []
    def issue(self, tag, optional=False):
        self.q.append((tag, optional))
        assert len(self.q) <= 63, self.q
    def wait(self, pred):
        last = -1
        for i, (t, o) in enumerate(self.q):
            if pred(t):
                last = i
        if last < 0:
            return None
        rest = self.q[last + 1:]
        n = sum(1 for t, o in rest if not o)
        self.q = rest
        return n
    def has(self, tag):
        return any(t == tag for t, o in self.q)

class G:
    def __init__(self, instr=False, opts=None):
        self.a = Asm()
        self.instr = instr
        self.o = opts or {}
        self.lab = 0

    def __call__(self, s=""):
        self.a(s)

    def label(self, p="L"):
        self.lab += 1
        return f"{p}{self.lab}"

    def tstep(self, s):
        if self.instr and self.o.get("steps"):
            m = {0: 1, 2: 2, 4: 3, 6: 4, 8: 5, 11: 6, 14: 7, 17: 8}
            if self.o.get("steps") == 2:
                m = {12: 1, 13: 2, 14: 3, 15: 4, 16: 5, 17: 6, 18: 7, 19: 8}
            if self.o.get("steps") == 3:
                m = {0: 1, 1: 2, 2: 3, 3: 4, 4: 5, 5: 6, 6: 7, 7: 8}
            if self.o.get("steps") == 4:
                m = {"a": 1, "b": 2, "c": 3, "d": 4, "e": 5, "f": 6, 0: 7, 2: 8}
            if s in m:
                self.ts(m[s], True)

    def ts(self, i, force=False):
        if self.o.get("steps") and not force and i not in (0, 9):
            return
        if self.instr:
            op = "s_memrealtime" if self.o.get("rt") else "s_memtime"
            self(f"{op} s[{TSB+2*i}:{TSB+2*i+1}]")

    def mk_srd(self, d, base, n):
        self(f"s_mov_b32 s{d}, s{base}\ns_mov_b32 s{d+1}, s{base+1}\ns_mov_b32 s{d+2}, {n}\ns_mov_b32 s{d+3}, 0x20000")

    def align8(self):
        self(".p2align 3")

    def wave_sum(self, v, t):
        for d in ("quad_perm:[1,0,3,2]", "quad_perm:[2,3,0,1]", "row_half_mirror", "row_mirror"):
            self(f"s_nop 1\nv_add_f32_dpp v{v}, v{v}, v{v} {d} row_mask:0xf bank_mask:0xf")
        self(f"v_mov_b32 v{t}, v{v}\ns_nop 1\nv_permlane16_swap_b32 v{t}, v{v}\ns_nop 0\nv_add_f32 v{v}, v{v}, v{t}")
        self(f"v_mov_b32 v{t}, v{v}\ns_nop 1\nv_permlane32_swap_b32 v{t}, v{v}\ns_nop 0\nv_add_f32 v{v}, v{v}, v{t}")

    def px_pre(self, typ):
        self(f"s_lshl3_add_u32 s{S_FLAG}, s{S_MT}, s{S_C}\ns_lshl1_add_u32 s{S_FLAG}, s{S_FLAG}, {typ}")
        self(f"s_lshl3_add_u32 s{S_ROW}, s{S_FLAG}, s3")
        self(f"s_mul_i32 s{T0}, s{S_ROW}, 1280")
        self("v_lshlrev_b32 v2, 4, v0\nv_lshlrev_b32 v3, 2, v0")

    def misc_pre(self):
        self(f"s_lshl_b32 s{S_FLAG}, s{S_FLAG}, 7\ns_add_u32 s{S_FLAG}, s{S_FLAG}, {FLAGS}")
        self(f"v_add_lshl_u32 v19, v0, s3, 25")
        self.mk_srd(SW, P_WS, WSN)

    def nonce_load(self):
        return f"buffer_load_dwordx2 v[30:31], off, {srd(SD)}, 0 sc1"

    def nonce_get(self):
        self.spin("v_cmp_eq_u64 vcc, 0, v[30:31]", self.nonce_load(), False, 8)
        self(f"v_readfirstlane_b32 s{S_N}, v30\nv_readfirstlane_b32 s{S_N+1}, v31")

    def early_flag(self):
        return [f"s_add_u32 s{T0}, s{S_FLAG}, {EFL}", f"buffer_store_dwordx2 v[30:31], v19, {srd(SW)}, s{T0} offen sc1"]

    def check_addr(self, v):
        t = T0 + 17
        L = [f"s_lshl_b32 s{t}, s{S_MT}, 4", f"s_sub_u32 s{t}, s{t}, 2", f"v_add_u32 v4, s{t}, v0", "v_max_i32 v4, 0, v4",
             f"s_lshl1_add_u32 s{t}, s{S_C}, {(1 - 18*16) & 0xffffffff}", f"v_lshl_add_u32 v5, v0, 4, s{t}",
             f"s_mul_i32 s{t}, s{S_N2}, 5", f"s_lshr_b32 s{t}, s{t}, 2", f"s_sub_u32 s{t}, s{t}, 170",
             "v_min_u32 v6, 57, v0", "v_lshrrev_b32 v7, 1, v6", "v_and_b32 v6, 1, v6", "v_mad_u32_u24 v6, v7, 10, v6",
             f"v_add_u32 v6, s{t}, v6", "v_lshlrev_b32 v6, 1, v6",
             "v_cmp_gt_u32 vcc, 34, v0\ns_nop 1\nv_cndmask_b32 v5, v6, v5, vcc",
             "v_cmp_gt_u32 vcc, 18, v0\ns_nop 1\nv_cndmask_b32 v5, v5, v4, vcc",
             "v_lshlrev_b32 v5, 7, v5", f"v_mov_b32 v{v}, v5", f"s_mov_b32 s{T0+18}, {FLAGS + EFL}"]
        return self.chunks(L, 10)

    def check_issue(self, vreg, va):
        L = self.label()
        return f"s_cmp_lg_u32 s3, 0\ns_cbranch_scc1 {L}\nbuffer_load_dwordx2 v[{vreg}:{vreg+1}], v{va}, {srd(SW)}, s{T0+18} offen sc1\n{L}:"

    def check_spin(self, vreg, va):
        self.spin(f"v_cmp_ne_u64 vcc, s[{S_N}:{S_N+1}], v[{vreg}:{vreg+1}]",
                  f"buffer_load_dwordx2 v[{vreg}:{vreg+1}], v{va}, {srd(SW)}, s{T0+18} offen sc1", True, 8)

    def px_load(self, vm):
        fl = " nt" if self.o.get("pxnt", 1) else ""
        vm.issue("px"); vm.issue("px")
        return [f"buffer_load_dwordx4 v[56:59], v2, {srd(SX)}, s{T0} offen{fl}",
                f"buffer_load_dword v60, v3, {srd(SX)}, s{T0} offen offset:1024{fl}"]

    def stats_parts(self, typ):
        keep = self.a; self.a = Asm()
        E = 62
        for j in range(5):
            self(f"v_lshlrev_b32 v{E+2*j}, 16, v{56+j}\nv_and_b32 v{E+1+2*j}, 0xffff0000, v{56+j}")
        self(f"v_add_f32 v72, v{E}, v{E+1}\nv_add_f32 v73, v{E+2}, v{E+3}\nv_add_f32 v74, v{E+4}, v{E+5}\nv_add_f32 v75, v{E+6}, v{E+7}\nv_add_f32 v61, v{E+8}, v{E+9}")
        self("v_add_f32 v72, v72, v73\nv_add_f32 v74, v74, v75\nv_add_f32 v72, v72, v61\nv_add_f32 v72, v72, v74")
        self.wave_sum(72, 73)
        self(f"v_mul_f32 v72, {f2u(-1.0/640)}, v72")
        for j in range(10):
            self(f"v_add_f32 v{E+j}, v{E+j}, v72")
        self(f"v_mul_f32 v74, v{E}, v{E}\nv_mul_f32 v75, v{E+1}, v{E+1}")
        for j in range(2, 10):
            self(f"v_fmac_f32 v{74+(j&1)}, v{E+j}, v{E+j}")
        self("v_add_f32 v74, v74, v75")
        self.wave_sum(74, 75)
        self(f"v_mov_b32 v73, {f2u(1e-5)}")
        self(f"v_fmac_f32 v73, {f2u(1.0/640)}, v74")
        self("v_rsq_f32 v73, v73")
        self(f"s_lshl_b32 s{T0}, s{S_ROW}, 3\ns_add_u32 s{T0}, s{T0}, {STATS}")
        self("v_lshlrev_b32 v75, 26, v0")
        comp = self.a.lines; self.a = keep
        st = [f"buffer_store_dwordx2 v[72:73], v75, {srd(SW)}, s{T0} offen sc1"]
        return comp, st

    def stats(self, vm, typ):
        n = vm.wait(lambda t: t == "px")
        if n is not None:
            self(f"s_waitcnt vmcnt({n})")
        comp, st = self.stats_parts(typ)
        for l in comp: self(l)

    def chunks(self, lines, n):
        k = -(-len(lines) // n)
        return ["\n".join(lines[i:i + k]) + "\n.p2align 3" for i in range(0, len(lines), k)]

    def spin(self, cmp, reload, wave0=False, sleep=1):
        L = self.label(); Ld = self.label()
        s = ""
        if wave0:
            s += f"s_cmp_lg_u32 s3, 0\ns_cbranch_scc1 {Ld}\n"
        s += f"s_mov_b32 s{T0+19}, 0\n{L}:\n{cmp}\ns_nop 4\ns_cbranch_vccz {Ld}\n"
        s += f"s_addk_i32 s{T0+19}, 1\ns_cmp_ge_u32 s{T0+19}, {SPIN}\ns_cbranch_scc1 {Ld}\n"
        s += f"s_sleep {sleep}\n{reload}\ns_waitcnt vmcnt(0)\ns_branch {L}\n{Ld}:"
        self(s)

    def capture(self, fn):
        keep = self.a; self.a = Asm()
        fn()
        lines = self.a.lines; self.a = keep
        return lines

    def scc_chunks(self, lines, k=3):
        items = []; cur = []
        for i, l in enumerate(lines):
            cur.append(l)
            nxt = lines[i + 1:]
            live = False
            for m in nxt:
                if m.startswith("s_cselect") or m.startswith("s_cbranch"): live = True; break
                if m.startswith("s_cmp") or m.startswith("s_add") or m.startswith("s_sub") or m.startswith("s_ls") or m.startswith("s_and") or m.startswith("s_bitcmp"): break
            if len(cur) >= k and not live:
                items.append("\n".join(cur) + "\n.p2align 3"); cur = []
        if cur: items.append("\n".join(cur) + "\n.p2align 3")
        return items

    PK = (T0 + 6, T0 + 7, T0 + 8, T0 + 9, T0 + 10, T0 + 11, T0 + 12)

    def pack_params(self, rnd):
        u, _, _, base, al, be, ga = self.PK
        ks, Lc = T0 + 2 + 2 * rnd, T0 + 3 + 2 * rnd
        t = T0 + 13
        self(f"s_lshl3_add_u32 s{u}, s{S_MT}, s{S_C}\ns_mul_i32 s{ks}, s{u}, 6554\ns_lshr_b32 s{ks}, s{ks}, 16\ns_mul_i32 s{Lc}, s{ks}, 10\ns_sub_u32 s{Lc}, s{u}, s{Lc}")
        self(f"s_mul_i32 s{t}, s3, 12\ns_add_u32 s{ks}, s{ks}, s{t}\ns_cmp_ge_u32 s{u}, 120\ns_cselect_b32 s{ks}, 99, s{ks}")
        self(f"s_lshl_b32 s{base}, s{ks}, 5")
        self(f"s_sub_u32 s{al}, s{ks}, 48\ns_mul_i32 s{al}, s{al}, 40\ns_mov_b32 s{t}, {640*1280}")
        self(f"s_cmp_lt_u32 s{ks}, 48\ns_cselect_b32 s{base}, s{base}, s{al}\ns_cselect_b32 s{al}, 16, 8\ns_cselect_b32 s{ga}, 8, 20")
        self(f"s_cselect_b64 s[{SP}:{SP+1}], s[{P_WD}:{P_WD+1}], s[{P_WO}:{P_WO+1}]\ns_cselect_b32 s{SP+2}, {1536*1280}, s{t}\ns_mov_b32 s{be}, 4")
        self(f"s_sub_u32 s{t}, s{ks}, 64\ns_mul_i32 s{t}, s{t}, 160\ns_add_u32 s{t}, s{t}, 16\ns_cmp_ge_u32 s{ks}, 64")
        self(f"s_cselect_b32 s{base}, s{t}, s{base}\ns_cselect_b32 s{be}, 40, s{be}\ns_cselect_b32 s{al}, 80, s{al}")
        self(f"s_cmp_ge_u32 s{ks}, 68\ns_cselect_b32 s{SP+2}, 0, s{SP+2}\ns_mov_b32 s{SP+3}, 0x20000")
        self(f"s_mul_i32 s{base}, s{base}, 1280\ns_lshl_b32 s{t}, s{Lc}, 7\ns_add_u32 s{base}, s{base}, s{t}")
        self(f"s_mul_i32 s{al}, s{al}, 1280\ns_mul_i32 s{be}, s{be}, 1280")
        self(f"s_add_u32 s{al}, s{al}, s{base}\ns_add_u32 s{u}, s{al}, s{be}\ns_add_u32 s{be}, s{be}, s{base}")
        self(f"v_lshrrev_b32 v5, 5, v0\nv_mul_u32_u24 v5, s{ga}, v5\nv_and_b32 v7, 7, v0\nv_bfe_u32 v6, v0, 3, 2\nv_add_u32 v5, v5, v6")
        self("v_and_b32 v6, 2, v6\nv_xor_b32 v7, v7, v6")
        self("v_mul_u32_u24 v5, 1280, v5\nv_lshl_add_u32 v32, v7, 4, v5\nv_xor_b32 v33, 64, v32")

    def pack_dma(self, scr):
        u, lb, _, base, al, be, ga = self.PK
        return [(f"s_add_u32 m0, s{lb}, {lit(i*1024)}", f"buffer_load_dwordx4 v{32 + (i&1)}, {srd(SP)}, s{so} offen nt lds", "pk", False)
                for i, so in enumerate((base, be, al, u))]

    def pack_dst(self, rnd):
        u, _, _, base, al, be, ga = self.PK
        ks, Lc = T0 + 2 + 2 * rnd, T0 + 3 + 2 * rnd
        t = T0 + 13
        self(f"s_mul_i32 s{t}, s{ks}, 5120\ns_add_u32 s{t}, s{t}, {W2P}\ns_cmp_ge_u32 s{ks}, 68\ns_cselect_b32 s{t}, {OOB}, s{t}")
        for i, d in enumerate((base, be, al, u)):
            self(f"s_lshl2_add_u32 s{d}, s{Lc}, {i}\ns_mul_i32 s{ga}, s{d}, 52\ns_lshr_b32 s{ga}, s{ga}, 8\ns_lshl_b32 s{d}, s{d}, 10")
            self(f"s_mul_i32 s{ga}, s{ga}, {67*5120}\ns_add_u32 s{d}, s{d}, s{ga}\ns_add_u32 s{d}, s{d}, s{t}")

    def pack_tr_addr(self):
        lb = self.PK[1]
        self("v_lshrrev_b32 v5, 4, v0\nv_and_b32 v7, 3, v0\nv_bfe_u32 v6, v0, 2, 2\nv_lshl_add_u32 v4, v5, 3, v6")
        self(f"v_lshlrev_b32 v4, 7, v4\nv_lshlrev_b32 v7, 3, v7\nv_add3_u32 v4, v4, v7, s{lb}")
        self("v_lshrrev_b32 v6, 1, v6\nv_and_b32 v5, 1, v5\nv_lshl_or_b32 v6, v5, 1, v6\nv_lshl_add_u32 v26, v6, 5, v4")
        for i in range(1, 4):
            self(f"v_xor_b32 v{26+i}, {32*i}, v26")

    def pack_tr(self, R):
        out = []
        for i in range(4):
            r = R + i * 4
            out += [f"ds_read_b64_tr_b16 v[{r}:{r+1}], v{26+i}", f"ds_read_b64_tr_b16 v[{r+2}:{r+3}], v{26+i} offset:512"]
        return out

    def pack_stores(self, vm, R):
        u, _, _, base, al, be, ga = self.PK
        out = []
        for i, so in enumerate((base, be, al, u)):
            out.append(f"buffer_store_dwordx4 v[{R+4*i}:{R+3+4*i}], v2, {srd(SW)}, s{so} offen sc1"); vm.issue("early")
        return out

    @staticmethod
    def sched(ops, s, rate):
        out = []
        while ops and len(out) < rate and ops[0][0] <= s:
            out.append(ops.pop(0)[1])
        return out

    def interleave(self, mf, lists):
        items = []
        for idx, (L, lo, hi) in enumerate(lists):
            for i, it in enumerate(L):
                items.append((lo + (i + 0.5) / len(L) * (hi - lo), idx, i, it))
        items.sort(key=lambda z: z[:3])
        pos = [[] for _ in mf]
        for f, _, _, it in items:
            pos[min(len(mf) - 1, int(f * len(mf)))].append(it)
        out = []
        for i, m in enumerate(mf):
            out.append(m)
            out += pos[i]
        res = []
        for it in out:
            if isinstance(it, tuple):
                if res and not res[-1][1]:
                    prev = res.pop()
                    res += [(it[0], True), prev, (it[1], True)]
                else:
                    res += [(it[0], True), ("s_nop 0\ns_nop 0", True), (it[1], True)]
            else:
                res.append((it, isinstance(it, NH)))
        for it, _ in res:
            self(it)

    def a_addr(self, abase):
        self("v_and_b32 v4, 31, v0\nv_lshrrev_b32 v5, 5, v0\nv_bfe_u32 v6, v0, 1, 3\nv_xor_b32 v6, v6, v5")
        self(f"s_lshr_b32 s{T0+1}, s3, 2\ns_lshl_b32 s{T0+1}, s{T0+1}, 13")
        if abase:
            self(f"s_add_u32 s{T0+1}, s{T0+1}, {abase}")
        self(f"v_lshlrev_b32 v6, 4, v6\nv_lshl_add_u32 v6, v4, 7, v6\nv_add_u32 v8, s{T0+1}, v6")
        for q in range(1, 4):
            self(f"v_xor_b32 v{8+q}, {q<<5}, v8")

    def a_dma_addr(self):
        self(f"s_lshl_b32 s{T0+1}, s{S_MT}, 7\ns_lshl3_add_u32 s{T0+1}, s3, s{T0+1}")
        self(f"v_lshrrev_b32 v4, 3, v0\nv_add_u32 v4, s{T0+1}, v4\nv_mul_u32_u24 v4, 1280, v4")
        self(f"s_lshl_b32 s{T0+2}, s3, 2\nv_lshrrev_b32 v5, 4, v0\nv_add_u32 v5, s{T0+2}, v5\nv_xor_b32 v5, v5, v0\nv_and_b32 v5, 7, v5")
        self("v_lshl_add_u32 v12, v5, 4, v4")

    def div24(self, j, dk, du):
        self(f"v_add_u32 v{du}, {64*j}, v0\nv_mul_u32_u24 v{dk}, 2731, v{du}\nv_lshrrev_b32 v{dk}, 16, v{dk}")
        self(f"v_mul_u32_u24 v7, 24, v{dk}\nv_sub_u32 v{du}, v{du}, v7")

    def p2_params(self):
        t, u = T0 + 17, T0 + 18
        return [
            f"s_bfe_u32 s{S_M2}, s2, 0x30003", f"s_lshr_b32 s{S_N2}, s2, 6\ns_mul_i32 s{t}, s{S_N2}, 3",
            f"s_lshr_b32 s{t}, s{t}, 1\ns_add_u32 s{t}, s{t}, s{S_M2}",
            f"s_cmp_ge_u32 s{t}, 6\ns_cselect_b32 s{u}, 6, 0\ns_sub_u32 s{S_ROT}, s{t}, s{u if self.o.get('rot') else t}\ns_lshr_b32 s{t}, s{S_C}, 1",
            f"s_lshl3_add_u32 s{S_M2}, s{t}, s{S_M2}\ns_and_b32 s{t}, s{S_C}, 1",
            f"s_lshl2_add_u32 s{S_N2}, s{t}, s{S_N2}\ns_and_b32 s{t}, s3, 3",
            f"s_mul_i32 s{S_WB}, s{S_N2}, {68*5120}", f"s_add_u32 s{S_WB}, s{S_WB}, {W2P}", f"s_mul_i32 s{S_L5}, s{t}, 5120",
            f"s_add_u32 s{u}, s{S_ROT}, -1\ns_cmp_eq_u32 s{S_ROT}, 0\ns_cselect_b32 s{u}, 5, s{u}\ns_add_u32 s{S_ADDW}, s{t}, 47",
            f"s_cmp_eq_u32 s{t}, 0\ns_cselect_b32 s{S_ADDW}, s{u}, s{S_ADDW}\ns_cselect_b32 s{S_MULW}, 6, 2\ns_nop 0",
            f"s_cmp_eq_u32 s{t}, 3\ns_cselect_b32 s{S_ADDW}, 64, s{S_ADDW}\ns_cselect_b32 s{S_MULW}, 1, s{S_MULW}\ns_nop 0",
            f"s_mul_i32 s{S_ADDW}, s{S_ADDW}, 5120", f"s_mul_i32 s{S_MULW}, s{S_MULW}, 5120", f"s_add_u32 s{S_ADDW}, s{S_ADDW}, s{S_WB}\ns_nop 0",
        ]

    def w2_pair(self, b0, t0, b1, t1):
        so, lb, t = T0 + 14, T0 + 15, T0 + 16
        ops = [(None, f"s_cmp_lt_u32 s3, 4\ns_cselect_b32 s{so}, {t0}, {t1}\ns_cselect_b32 s{lb}, {b0}, {b1}\ns_mul_i32 s{t}, s{so}, s{S_MULW}", None),
               (None, f"s_mul_i32 s{lb}, s{lb}, 20480", None), (None, NH(f"s_add_u32 s{lb}, s{lb}, s{S_L5}\ns_add_u32 s{so}, s{t}, s{S_ADDW}"), None)]
        for tt in range(5):
            o = (tt % 4) * 1024
            pre = f"s_add_u32 m0, s{lb}, {lit(tt*1024 - o)}"
            if tt == 4:
                pre = f"s_add_u32 s{so}, s{so}, 4096\n" + pre
            ops.append((pre, f"buffer_load_dwordx4 v2, {srd(SW)}, s{so} offen offset:{o} sc1 lds", "W"))
        return ops

    def w2_reg(self, i):
        so, t = T0 + 14, T0 + 16
        ops = [(None, f"s_add_u32 s{t}, s{S_ROT}, {i}\ns_cmp_ge_u32 s{t}, 6\ns_cselect_b32 s{so}, 6, 0\ns_sub_u32 s{t}, s{t}, s{so}", None),
               (None, f"s_mul_i32 s{so}, s3, 6\ns_add_u32 s{t}, s{t}, s{so}", None), (None, f"s_mul_i32 s{t}, s{t}, 5120", None),
               (None, f"s_add_u32 s{so}, s{t}, s{S_WB}\ns_nop 0", None)]
        for tt in range(5):
            r = WR[i] + 4 * tt
            ld = f"buffer_load_dwordx4 v[{r}:{r+3}], v2, {srd(SW)}, s{so} offen offset:{(tt%4)*1024} sc1"
            if tt == 4:
                ld = f"s_add_u32 s{so}, s{so}, 4096\n" + ld
            ops.append((None, ld, "W"))
        return ops

    def take(self, vm, q, n=99):
        out = []
        while q and n > 0:
            pre, post, tag = q.pop(0)
            out.append((pre, post) if pre else post)
            if tag:
                vm.issue(tag); n -= 1
        return out

    def emit_items(self, items):
        for it in items:
            self(it[0] + "\ns_nop 0\n" + it[1] if isinstance(it, tuple) else it)

    def publish(self, vm):
        self(f"v_mov_b32 v4, s{S_N}\nv_mov_b32 v5, s{S_N+1}")
        n = vm.wait(lambda t: t == "st")
        self(f"s_waitcnt vmcnt({n})\ns_barrier")
        self.ts(6)
        self(f"buffer_store_dwordx2 v[4:5], v19, {srd(SW)}, s{S_FLAG} offen sc1")

    def emit_ops(self, vm, ds):
        for d in ds:
            if d[0]:
                self(d[0] + "\ns_nop 0")
            self(d[1]); vm.issue(d[2], d[3])

    def fill_ops(self, vm, ds):
        out = []
        for d in ds:
            out.append((d[0], d[1]) if d[0] else d[1]); vm.issue(d[2], d[3])
        return out

    def h_path(self):
        vm = VM()
        o = self.o
        BB = 65536
        CSL = 102400
        S_PQ = S_HM + 1
        apos = lambda S: ((S % 4) ^ 1) * 16384
        ant = lambda S: " nt" if S < o.get("ant", 0) else ""
        PXI = o.get("pxi", 1)
        AF = o.get("afirst", 0)
        self(f"s_memrealtime s[{T0+14}:{T0+15}]")
        self.px_pre(0)
        if AF:
            self.a_dma_addr()
        self(f"s_mov_b32 s{S_A2}, 81920\ns_lshl_b32 s{S_LA}, s3, 10\ns_mov_b32 s{S_HM}, 0")
        self(f"s_mov_b32 s{SX+2}, {2048*1280}\ns_mov_b32 s{SX+3}, 0x20000\ns_mov_b32 s{SA+2}, {640*3840}\ns_mov_b32 s{SA+3}, 0x20000")
        self("v_mul_u32_u24 v4, 43, v0\nv_lshrrev_b32 v4, 8, v4\nv_mul_u32_u24 v5, 6, v4\nv_sub_u32 v5, v0, v5")
        self("v_lshrrev_b32 v6, 1, v5\nv_and_b32 v5, 1, v5\nv_mul_u32_u24 v6, 1280, v6\nv_mul_u32_u24 v5, 156, v5")
        self("v_and_b32 v7, 4, v4\nv_mad_u32_u24 v4, v7, 15, v4")
        self("v_mul_u32_u24 v4, 3840, v4\nv_add3_u32 v4, v4, v5, v6")
        self(f"v_cmp_gt_u32 vcc, 48, v0\nv_mov_b32 v5, {OOB}")
        self(f"s_add_u32 s{S_PQ}, s3, 0\ns_lshl_b32 s{S_PQ}, s{S_PQ}, 5\ns_add_u32 s{S_PQ}, s{S_PQ}, s{S_MT}\ns_mul_i32 s{S_PQ}, s{S_PQ}, {4*3840}")
        self(f"s_mul_i32 s{T0+4}, s{S_C}, 160\ns_add_u32 s{S_PQ}, s{S_PQ}, s{T0+4}")
        self("v_cndmask_b32 v17, v5, v4, vcc")
        self("s_waitcnt lgkmcnt(0)")
        self(f"s_mov_b64 s[{SX}:{SX+1}], s[{P_X}:{P_X+1}]\ns_mov_b64 s[{SA}:{SA+1}], s[{P_QKV}:{P_QKV+1}]")
        self.ts(1)

        BN = o.get("hbn", 1)
        bslot = lambda s: [3, 0, 1, 3][s] if s < 4 else s % 4
        bfree = lambda s: {3: 0, 4: 1, 5: 2, 6: max(BN + 1, 2)}.get(s, s - 4)
        def dmaB(s):
            fl = " nt" if s < o.get("hnt", 20) else ""
            return [(f"s_add_u32 m0, s{S_LB}, {lit(BB + bslot(s)*24576 + j*1024)}",
                     f"buffer_load_dwordx4 v{13+j}, {srd(SB)}, s{S_KB} offen{fl} lds" + (f"\ns_add_u32 s{S_KB}, s{S_KB}, 98304" if j == 2 else ""),
                     ("B", s), False) for j in range(3)]
        def A(S):
            return [(f"s_add_u32 m0, s{S_LA}, {lit(apos(S) + i*8192)}",
                     f"buffer_load_dwordx4 v12, {srd(SX)}, s{S_A2 if i else S_HM} offen{ant(S)} lds\ns_addk_i32 s{S_A2 if i else S_HM}, 128\ns_nop 0",
                     ("A", S), False) for i in range(2)]
        def PQ(cond):
            L = self.label()
            return [(None, f"{cond}\ns_cbranch_scc0 {L}\nbuffer_load_dword v34, v17, {srd(SA)}, s{S_PQ} offen nt\n{L}:", "p", True)]
        NP0 = o.get("np0", 3)
        px = [(None, l, "px", False) for l in self.px_load(VM())]
        assert PXI and not AF
        self.emit_ops(vm, px)
        self.emit_ops(vm, PQ(f"s_cmp_lt_u32 s3, {NP0}"))
        Lp = self.label()
        self.pack_params(0)
        self(f"s_lshl_b32 s{self.PK[1]}, s3, 12\ns_add_u32 s{self.PK[1]}, s{self.PK[1]}, {BB + 2*24576}")
        self(f"s_cmp_ge_u32 s3, 6\ns_cbranch_scc1 {Lp}")
        self.emit_ops(vm, [d[:3] + (True,) for d in self.pack_dma(0)])
        self(f"{Lp}:")
        self.mk_srd(SD, P_DBG, 256)
        L0 = self.label()
        self(f"s_cmp_lg_u32 s{S_ROW}, 0\ns_cbranch_scc1 {L0}")
        self(f"v_mov_b32 v4, s{T0+14}\nv_mov_b32 v5, s{T0+15}\nv_lshlrev_b32 v6, 20, v0")
        self(f"buffer_store_dwordx2 v[4:5], v6, {srd(SD)}, 0 offen sc1\n{L0}:"); vm.issue("p", True)
        if o.get("codepf", 1):
            self(f"s_getpc_b64 s[{T0+4}:{T0+5}]")
            self(f"s_lshl3_add_u32 s{T0+8}, s{S_MT}, s3\ns_lshl_b32 s{T0+8}, s{T0+8}, 9")
            self(f"v_and_b32 v4, 3, v0\nv_lshlrev_b32 v4, 7, v4\nv_add_u32 v4, s{T0+8}, v4")
            self(f"v_min_u32 v4, CODE_SPAN, v4")
            self(f"global_load_dword v35, v4, s[{T0+4}:{T0+5}]"); vm.issue("p")
        self.tstep("a")
        self.pack_dst(0)
        self(f"s_and_b32 s{T0+1}, s3, 3\ns_mul_i32 s{T0+1}, s{T0+1}, {8*3072}\ns_mul_i32 s{T0+2}, s{S_C}, 384\ns_add_u32 s{T0+1}, s{T0+1}, s{T0+2}")
        self(f"s_and_b32 s{T0+2}, s3, 4")
        for j in range(3):
            self.div24(j, 4, 5)
            self(f"v_and_b32 v6, 2, v4\nv_or_b32 v6, s{T0+2}, v6\nv_xor_b32 v5, v5, v6")
            self(f"v_mul_u32_u24 v4, 3072, v4\nv_lshl_add_u32 v4, v5, 4, v4\nv_add_u32 v{13+j}, s{T0+1}, v4")
        self(f"s_mov_b32 s{S_KB}, 0\ns_mul_i32 s{S_LB}, s3, 3072")
        self(f"s_mov_b32 s{SB+2}, {640*3072}\ns_mov_b32 s{SB+3}, 0x20000\ns_cmp_lt_u32 s3, 4")
        self(f"s_cselect_b64 s[{SB}:{SB+1}], s[{P_WG}:{P_WG+1}], s[{P_WU}:{P_WU+1}]")
        if not AF:
            self.a_dma_addr()
            self("s_barrier")
            self.emit_ops(vm, A(0))
        self.emit_ops(vm, dmaB(0))
        self.tstep("e")
        self.misc_pre()
        self.pack_tr_addr()
        self.a_addr(0)
        self("v_bfe_u32 v4, v0, 4, 1\nv_lshrrev_b32 v5, 5, v0\nv_bfe_u32 v6, v0, 2, 2")
        self(f"v_lshl_add_u32 v5, v5, 3, v6\nv_mul_u32_u24 v5, 384, v5\nv_mul_u32_u24 v7, 12288, v4\nv_add_u32 v5, v5, v7\nv_add_u32 v5, {BB}, v5")
        self("v_and_b32 v7, 1, v0\nv_lshl_add_u32 v5, v7, 3, v5")
        self("v_and_b32 v6, 2, v6\nv_lshl_or_b32 v6, v4, 2, v6\nv_bfe_u32 v7, v0, 1, 1")
        self(f"s_and_b32 s{T0+1}, s3, 3\ns_mul_i32 s{T0+1}, s{T0+1}, 6\nv_add_u32 v7, s{T0+1}, v7")
        for n in range(3):
            self(f"v_add_u32 v4, {2*n}, v7\nv_xor_b32 v4, v4, v6\nv_lshl_add_u32 v{20+n}, v4, 4, v5\nv_add_u32 v{23+n}, 49152, v{20+n}")
        if o.get("hstpre", 1):
            self.stats(vm, 0)
        self.tstep("b")
        self("s_barrier")
        pre = dmaB(1) + A(1)
        npre0 = o.get("hpre", 4)
        self.emit_ops(vm, pre[:npre0])
        ops = [(-9, d) for d in pre[npre0:]]
        nb = NP0
        PKS = -9
        lead = o.get("alead", 1)
        nextA = 2
        for b_ in range(2, 20):
            if b_ % 2 == 1 or b_ == 2:
                pass
            ops += [(bfree(b_), d) for d in dmaB(b_)]
            if b_ % 2 == 0:
                while nextA <= min(9, b_ // 2 + lead):
                    ops += [(2 * (nextA - 4) + 1, d) for d in A(nextA)]
                    nextA += 1
                if b_ == o.get("hpxb", 4) and not PXI:
                    ops += [(-9, d) for d in px]
                if b_ == 6:
                    ops += [(-9, (None, self.nonce_load(), "nonce", False))]

        def reads(s, Y):
            S = s >> 1
            rd = []
            for sub in range(2):
                for m in range(2):
                    r = Y + (sub * 2 + m) * 4
                    rd.append(f"ds_read_b128 v[{r}:{r+3}], v{8 + (s&1)*2 + sub} offset:{apos(S) + m*4096}")
                for n in range(3):
                    r = Y + 16 + (sub * 3 + n) * 4
                    b = 20 + n + (3 if bslot(s) >= 2 else 0)
                    of = (bslot(s) % 2) * 24576 + sub * 6144
                    rd.append(f"ds_read_b64_tr_b16 v[{r}:{r+1}], v{b} offset:{of}")
                    rd.append(f"ds_read_b64_tr_b16 v[{r+2}:{r+3}], v{b} offset:{of+1536}")
            return rd
        def need(s):
            return lambda t: t == ("B", s) or t == ("A", s >> 1)
        self.ts(2)
        n = vm.wait(need(0))
        self(f"s_waitcnt vmcnt({n})\ns_barrier")
        self.ts(3); self.tstep("f")
        for r in reads(0, 80):
            self(r)
        self.emit_ops(vm, self.sched(ops, -1, o.get("hpost", 2)))
        self("s_waitcnt lgkmcnt(0)")
        self.align8()
        def csreg(n_, r):
            if n_ < 2: return [80, 96][n_] + r
            return (112 + r) if r < 8 else (r)
        ST = o.get("hst", 4)
        CK = o.get("hck", 15)
        EF = o.get("hef", 8)
        ST = -8 if o.get("hstpre", 1) else o.get("hst", 1)
        STS = o.get("hsts", 2) if ST < 0 else ST + 2
        wq = []
        for s in range(20):
            X = 80 + (s & 1) * 40; Y = 80 + ((s + 1) & 1) * 40
            extra = []
            also = {ST: ("px",), PKS: ("pk",), EF: ("early", "nonce"), CK: ("poll",), 18: ("cs",)}.get(s, ())
            p0 = need(s + 1)
            assert not any(p0(d[2]) or d[2] in also for _, d in ops), s
            n = vm.wait(lambda t: p0(t) or t in also)
            self(f"s_waitcnt vmcnt({n})" if n is not None else "s_nop 0")
            if s == CK:
                self.check_spin(26, 35)
            if s == EF:
                self.nonce_get()
            self("s_barrier")
            if s in (CK, EF):
                self.align8()
            self.tstep(s)
            fill = []
            extra2 = []
            if s in (ST, ST + 1):
                comp, st = self.stats_parts(0)
                ch = self.chunks(comp, 22)
                extra2 = ch[:11] if s == ST else ch[11:]
            if s == CK:
                for p in range(2):
                    fill.append(f"buffer_load_dwordx4 v[{56+4*p}:{59+4*p}], v30, {srd(SW)}, s{T0+2} offen offset:{16*p} sc1"); vm.issue("cs")
                for m in range(2):
                    fill.append(f"buffer_load_dwordx2 v[{26+2*m}:{27+2*m}], v31, {srd(SW)}, s{T0+5} offen offset:{m*256} sc1"); vm.issue("cs")
            SS = o.get("hss", 5)
            rate = {SS: 0, SS + 1: o.get("hthr", 3)}.get(s, o.get("hrate", 6))
            fill += self.fill_ops(vm, self.sched(ops, s, rate))
            tail = []
            if s == SS:
                for l in self.stats_parts(0)[1] + self.pack_stores(VM(), 36):
                    tail.append(l); vm.issue("early")
                if NP0 < 5:
                    tail += self.fill_ops(vm, PQ(f"s_sub_u32 s{T0+1}, s3, {NP0}\ns_nop 0\ns_cmp_lt_u32 s{T0+1}, {5 - NP0}"))
            if s == BN:
                extra += self.pack_tr(36)
            if s == EF:
                fill += self.early_flag(); vm.issue("ef")
            if s == 10:
                extra += self.p2_params()
            if s == 11:
                extra += self.check_addr(35)
            if s == CK - 2:
                fill.append(self.check_issue(26, 35)); vm.issue("poll", True)
            if s == 12:
                extra += [f"s_lshl_b32 s{T0+1}, s3, 8\nv_and_b32 v4, 31, v0", f"v_add_u32 v18, s{T0+1}, v3\nv_lshlrev_b32 v31, 3, v4",
                          f"s_mul_i32 s{T0+2}, s{S_C}, {8*1536}", f"s_add_u32 s{T0+2}, s{T0+2}, {CS}",
                          f"s_cmp_lt_u32 s3, 6\nv_lshlrev_b32 v30, 3, v18\ns_cselect_b32 s{T0+2}, s{T0+2}, {OOB}",
                          f"s_lshr_b32 s{T0+5}, s3, 2\ns_lshl1_add_u32 s{T0+5}, s{S_MT}, s{T0+5}", f"v_add_u32 v18, {CSL}, v18",
                          f"s_lshl_b32 s{T0+5}, s{T0+5}, 9\ns_nop 0", f"s_add_u32 s{T0+5}, s{T0+5}, {STATS}",
                          f"s_lshl_b32 s{S_LW}, s3, 2\ns_nop 0", f"s_lshr_b32 s{S_LW}, 0x76054132, s{S_LW}", f"s_and_b32 s{S_LW}, s{S_LW}, 7\ns_nop 0",
                          f"s_mul_i32 s{S_LW}, s{S_LW}, 20480"]
            if s == 13:
                extra += [f"s_and_b32 s{T0+6}, s3, 3\nv_lshrrev_b32 v5, 5, v0", f"s_mul_i32 s{T0+7}, s{T0+6}, 192", f"s_add_u32 s{T0+7}, s{T0+7}, {CSL}",
                          f"v_lshl_add_u32 v17, v5, 4, s{T0+7}",
                          "v_bfe_u32 v6, v0, 4, 1", "v_and_b32 v7, 15, v0\nv_lshlrev_b32 v6, 10, v6", "v_lshl_add_u32 v6, v5, 8, v6", "v_lshl_add_u32 v16, v7, 4, v6",
                          f"s_lshr_b32 s{T0+7}, s3, 2\ns_lshl1_add_u32 s{T0+7}, s{S_MT}, s{T0+7}", f"s_mul_i32 s{T0+7}, s{T0+7}, {68*4096}",
                          f"s_mul_i32 s{T0+8}, s{S_C}, {6*4096}", f"s_add_u32 s{T0+7}, s{T0+7}, s{T0+8}\ns_mul_i32 s{T0+6}, s{T0+6}, 3"]
            if s == 14:
                for n_ in range(3):
                    extra += [f"s_add_u32 s{T0+8}, s{T0+6}, {n_}\ns_lshr_b32 s{T0+9}, s{T0+8}, 1", f"s_lshl_b32 s{T0+9}, s{T0+9}, 12\ns_and_b32 s{T0+8}, s{T0+8}, 1",
                              f"s_lshl_b32 s{T0+8}, s{T0+8}, 9\ns_add_u32 s{T0+9}, s{T0+9}, s{T0+8}", f"s_add_u32 s{T0+10+n_}, s{T0+9}, s{T0+7}\ns_nop 0"]
            if s == 16:
                wq += self.w2_pair(2, 0, 3, 1)
            if s == 17:
                wq += self.w2_pair(1, 2, 4, 3) + self.w2_reg(0)
            if s == 19:
                wq += self.w2_reg(1)
            fill += self.take(vm, wq, o.get("hwr", 5))
            if s == 18:
                extra += ["v_add_f32 v56, v56, v57\nv_add_f32 v58, v58, v59", "v_add_f32 v60, v60, v61\nv_add_f32 v62, v62, v63",
                          "v_add_f32 v56, v56, v58\nv_add_f32 v60, v60, v62", "v_add_f32 v56, v56, v60\nv_mul_f32 v32, v27, v27",
                          f"ds_write_b32 v18, v56", "v_mul_f32 v34, v29, v29\nv_mov_b32 v33, v32",
                          "v_mov_b32 v35, v34\nv_mov_b32 v27, v26", "v_mov_b32 v29, v28\ns_nop 0"]
            if s < 19:
                rd = reads(s + 1, Y)
            else:
                rd = []
                for n_ in range(3):
                    for mat in range(2):
                        for a_ in range(2):
                            r = csreg(n_, (mat * 2 + a_) * 4)
                            rd.append(f"ds_read_b128 v[{r}:{r+3}], v17 offset:{n_*64 + a_*32 + mat*768}")
            mf = []
            for sub in range(2):
                for n_ in range(3):
                    for m in range(2):
                        c = 160 + (m * 3 + n_) * 16
                        cin = "0" if (s == 0 and sub == 0) else f"v[{c}:{c+15}]"
                        b = X + 16 + (sub * 3 + n_) * 4; a_ = X + (sub * 2 + m) * 4
                        mf.append(f"v_mfma_f32_32x32x16_bf16 v[{c}:{c+15}], v[{b}:{b+3}], v[{a_}:{a_+3}], {cin}")
            lists = [(rd, 0.0, 0.8)]
            if fill: lists.append((fill, 0.0, 0.6 if tail else 1.0))
            if tail: lists.append((tail, o.get("htl", 4) / 10, 1.0))
            if extra: lists.append((extra, 0.0, 0.9))
            if extra2: lists.append((extra2, 0.0, 1.0))
            self.interleave(mf, lists)
            self("s_waitcnt lgkmcnt(0)\ns_nop 0")
            assert s < 15 or not ops
        self.ts(4)
        self("s_nop 7\ns_nop 0")
        for n_ in range(3):
            for m in range(2):
                c = 160 + (m * 3 + n_) * 16
                nm = 26 + 2 * m
                for r in range(0, 16, 2):
                    k = csreg(n_, r)
                    self(f"v_pk_fma_f32 v[{c+r}:{c+r+1}], v[{nm}:{nm+1}], v[{k}:{k+1}], v[{c+r}:{c+r+1}]")
                for r in range(0, 8, 2):
                    self(f"v_pk_mul_f32 v[{c+r}:{c+r+1}], v[{c+r}:{c+r+1}], v[{32+2*m}:{33+2*m}]")
                for r in range(0, 8, 2):
                    self(f"v_pk_mul_f32 v[{c+r}:{c+r+1}], v[{c+r}:{c+r+1}], v[{c+8+r}:{c+9+r}]")
                for r in range(4):
                    self(f"v_cvt_pk_bf16_f32 v{c+8+r}, v{c+2*r}, v{c+2*r+1}")
                self(f"buffer_store_dwordx4 v[{c+8}:{c+11}], v16, {srd(SW)}, s{T0+10+n_} offen offset:{m*2048} sc1"); vm.issue("st")
        self.ts(5)
        assert all(not x[0] for x in wq)
        wq += self.w2_reg(2)
        npre = o.get("npre", 5)
        if npre:
            self("s_barrier")
        self.emit_items(self.take(vm, wq, npre))
        self.publish(vm)
        self.emit_items(self.take(vm, wq))
        self("s_branch P2_START")

    QS = 520
    QCSL = 75008
    QZ = 76800
    QST = 120832
    QAB = 65536
    QSCR = 122880

    def q_dmaA(self, S, wm):
        AB = self.QAB
        fl = " nt" if S < self.o.get("ant", 0) else ""
        out = [(f"s_add_u32 m0, s{S_LA}, {lit(AB + (S%3)*18432 + 2048 + i*8192 - S*128)}",
                f"buffer_load_dwordx4 v12, {srd(SX)}, {'s%d' % S_A2 if i else '0'} offen offset:{S*128}{fl} lds",
                ("A", S), False) for i in range(2)]
        if wm != 0:
            L = self.label()
            out.insert(0, (f"s_add_u32 m0, s{S_LA}, {lit(AB + (S%3)*18432 - 4096 - S*128)}",
                        f"s_mov_b64 exec, s[{S_HM}:{S_HM+1}]\ns_cbranch_execz {L}\nbuffer_load_dwordx4 v15, {srd(SX)}, 0 offen offset:{S*128}{fl} lds\n{L}:\ns_mov_b64 exec, -1\ns_nop 0",
                        ("A", S), True))
        return out

    def q_dmaB(self, s):
        fl = " nt" if s < self.o.get("qnt", 20) else ""
        return [(f"s_add_u32 m0, s{S_LB}, {lit((s%4)*16384 + j*1024)}",
                 f"buffer_load_dwordx4 v{13+j}, {srd(SB)}, s{S_KB} offen{fl} lds" + (f"\ns_add_u32 s{S_KB}, s{S_KB}, {32*3840}" if j == 1 else ""),
                 ("B", s), False) for j in range(2)]

    def q_path(self):
        vm = VM()
        AB, SCR = self.QAB, self.QSCR
        GS, GL = T0 + 14, T0 + 15
        self("Q_START:")
        self(f"s_lshr_b32 s{GS}, s{S_MT}, 1\ns_lshl3_add_u32 s{GS}, s3, s{GS}\ns_mul_i32 s{GS}, s{GS}, {8*3072}\ns_mul_i32 s{T0+2}, s{S_C}, 384\ns_add_u32 s{GS}, s{GS}, s{T0+2}")
        for j in range(3):
            self.div24(j, 4, 5)
            self(f"v_mul_u32_u24 v4, 3072, v4\nv_lshl_add_u32 v{23+j}, v5, 4, v4")
        self(f"s_mul_i32 s{GL}, s3, 3072\ns_add_u32 s{GL}, s{GL}, {SCR}")
        self(f"s_mov_b32 s{SA+2}, {640*3072}\ns_mov_b32 s{SA+3}, 0x20000\ns_mov_b32 s{SX+2}, {2048*1280}\ns_mov_b32 s{SX+3}, 0x20000")
        o = self.o
        PXI, AF, NG0 = o.get("pxi", 1), o.get("afirst", 0), o.get("ng0", 10)
        def apre():
            self.a_dma_addr()
            self("v_subrev_u32 v15, 61440, v12")
            self(f"s_mov_b32 s{S_A2}, 81920\ns_lshl_b32 s{S_LA}, s3, 10")
            self(f"s_mov_b64 s[{S_HM}:{S_HM+1}], 0\ns_cmp_eq_u32 s3, 5\ns_cselect_b64 s[{S_HM}:{S_HM+1}], -1, s[{S_HM}:{S_HM+1}]")
            self(f"s_cmp_eq_u32 s3, 4\ns_cselect_b32 s{S_HM}, 0xffffff00, s{S_HM}\ns_cselect_b32 s{S_HM+1}, -1, s{S_HM+1}")
        self.px_pre(1)
        if AF: apre()
        self(f"s_bitcmp0_b32 s{S_MT}, 0\ns_waitcnt lgkmcnt(0)")
        self(f"s_cselect_b64 s[{SA}:{SA+1}], s[{P_WG}:{P_WG+1}], s[{P_WU}:{P_WU+1}]\ns_mov_b64 s[{SX}:{SX+1}], s[{P_X}:{P_X+1}]")
        self.ts(1)
        assert PXI and not AF
        for l in self.px_load(vm): self(l)
        L = self.label()
        if NG0 == 4:
            self(f"s_cmp_ge_u32 s3, 4\ns_cbranch_scc1 {L}")
        for j in range(3):
            self(f"s_add_u32 m0, s{GL}, {j*1024}\ns_nop 0")
            self(f"buffer_load_dwordx4 v{23+j}, {srd(SA)}, s{GS} offen nt lds"); vm.issue("gu", NG0 == 4)
        self(f"{L}:")
        if NG0 == 10:
            L = self.label()
            self(f"s_and_b32 s{T0+1}, s3, 6\ns_cmp_lg_u32 s{T0+1}, 4\ns_cbranch_scc1 {L}\ns_add_u32 s{GS}, s{GS}, {4*64*3072}")
            for j in range(3):
                self(f"s_add_u32 m0, s{GL}, {4*3072 + j*1024}\ns_nop 0")
                self(f"buffer_load_dwordx4 v{23+j}, {srd(SA)}, s{GS} offen nt lds"); vm.issue("gu", True)
            self(f"{L}:")
        self.tstep("a")
        self.mk_srd(SB, P_QKV, 640 * 3840)
        self(f"s_lshl_b32 s{T0+1}, s3, 7\ns_mul_i32 s{T0+2}, s{S_C}, 160")
        for j in range(2):
            self(f"v_add_u32 v5, s{T0+1}, v0")
            if j: self("v_add_u32 v5, 64, v5")
            self("v_mul_u32_u24 v4, 2185, v5\nv_lshrrev_b32 v4, 16, v4\nv_mul_u32_u24 v6, 30, v4\nv_sub_u32 v5, v5, v6")
            self("v_cmp_gt_u32 vcc, 32, v4")
            self("v_and_b32 v6, 24, v4\nv_bfe_u32 v7, v4, 1, 2\nv_add_u32 v6, v6, v7\nv_and_b32 v7, 1, v4\nv_lshl_add_u32 v6, v7, 2, v6")
            self("v_mul_u32_u24 v6, 3840, v6\nv_lshl_add_u32 v6, v5, 4, v6")
            self("v_mul_u32_u24 v7, 26, v5\nv_lshrrev_b32 v7, 8, v7\nv_mul_u32_u24 v7, 1120, v7")
            self(f"v_add3_u32 v6, v6, v7, s{T0+2}\nv_mov_b32 v7, {OOB}\nv_cndmask_b32 v{13+j}, v7, v6, vcc")
        self(f"s_mov_b32 s{S_KB}, 0\ns_lshl_b32 s{S_LB}, s3, 11")
        if not AF:
            apre()
            self("s_barrier")
            self.emit_ops(vm, self.q_dmaA(0, 1))
        self.emit_ops(vm, self.q_dmaB(0))
        self.tstep("e")
        self.misc_pre()
        self.mk_srd(SD, P_DBG, 256)
        for r in range(4):
            self(f"v_mov_b32 v{76+r}, 0x3f803f80")
        self(f"v_lshrrev_b32 v4, 3, v0\nv_min_u32 v4, 2, v4\nv_mul_u32_u24 v4, 18432, v4\nv_and_b32 v5, 7, v0\nv_lshl_add_u32 v4, v5, 4, v4\nv_add_u32 v4, {AB}, v4")
        self("ds_write_b128 v4, v[76:79]")
        self.a_addr(AB)
        self("v_bfe_u32 v4, v0, 4, 1\nv_lshrrev_b32 v5, 5, v0\nv_bfe_u32 v6, v0, 2, 2\nv_and_b32 v7, 3, v0")
        self("v_lshlrev_b32 v7, 3, v7\nv_lshl_add_u32 v7, v4, 5, v7")
        self("v_lshlrev_b32 v4, 3, v5\nv_lshl_add_u32 v5, v6, 1, v4\nv_add_u32 v4, v4, v6")
        self(f"s_and_b32 s{T0+1}, s3, 3\ns_lshl_b32 s{T0+1}, s{T0+1}, 7\ns_lshl_b32 s{T0+2}, s3, 6\ns_add_u32 s{T0+2}, s{T0+2}, {SCR}")
        self(f"v_mul_u32_u24 v5, 480, v5\nv_add3_u32 v20, v5, v7, s{T0+1}")
        self(f"v_mul_u32_u24 v4, 384, v4\nv_add3_u32 v21, v4, v7, s{T0+2}")
        self(f"s_and_b32 s{T0+2}, s{S_MT}, 1\ns_lshl1_add_u32 s{T0+1}, s{S_C}, s{T0+2}\ns_mul_i32 s{T0+1}, s{T0+1}, {192*32}")
        self(f"s_lshr_b32 s{T0+2}, s{S_MT}, 1\ns_lshl2_add_u32 s{T0+1}, s{T0+2}, s{T0+1}")
        self(f"s_lshl_b32 s{T0+2}, s3, 10\ns_add_u32 s{T0+1}, s{T0+1}, s{T0+2}\ns_add_u32 s{T0+1}, s{T0+1}, {CS}")
        self(f"s_cmp_lt_u32 s3, 6\ns_cselect_b32 s{T0+1}, s{T0+1}, {OOB}")
        self("v_lshrrev_b32 v22, 5, v0\nv_lshlrev_b32 v4, 5, v0\nv_lshl_add_u32 v22, v22, 26, v4")
        self(f"s_xor_b32 s{S_LW}, s3, 4\ns_mul_i32 s{S_LW}, s{S_LW}, 20480")
        self.stats(vm, 1)
        self.tstep("b")
        assert NG0 == 10
        n = vm.wait(lambda t: t == "gu")
        self(f"s_waitcnt vmcnt({n})\ns_barrier")
        self.tstep("c")
        for sub in range(5):
            r = 36 + sub * 4
            self(f"ds_read_b64_tr_b16 v[{r}:{r+1}], v21 offset:{sub*6144}\nds_read_b64_tr_b16 v[{r+2}:{r+3}], v21 offset:{sub*6144+1536}")
        self("s_cmp_ge_u32 s3, 4\ns_cbranch_scc1 Q_WM1")
        vm1 = copy.deepcopy(vm)
        self.q_main(vm, 0)
        self("s_branch Q_ATT")
        self("Q_WM1:")
        self.q_main(vm1, 1)
        self("Q_ATT:")
        self.attention()

    def q_main(self, vm, wm):
        o = self.o
        QS, CSL, QZ, QST, AB = self.QS, self.QCSL, self.QZ, self.QST, self.QAB
        GS, GL = T0 + 14, T0 + 15
        NM = 3 if wm == 0 else 2
        toff = [0, 2048, 6144] if wm == 0 else [2048, 6144]
        dmaB = self.q_dmaB
        dmaA = lambda S: self.q_dmaA(S, wm)
        pre = dmaB(1) + dmaA(1)
        npre0 = o.get("qpre", 3) + wm
        self.emit_ops(vm, pre[:npre0])
        self("s_waitcnt lgkmcnt(0)")
        for sub in range(5):
            r = 36 + sub * 4
            self(f"v_mfma_f32_32x32x16_bf16 v[56:71], v[76:79], v[{r}:{r+3}], {'0' if sub == 0 else 'v[56:71]'}")
        ops = [(-9, d) for d in pre[npre0:]]
        PD = -9
        BN = -9
        CSs = o.get("qcs", 6)
        ST = o.get("qst", 3)
        AT = o.get("qat", 7)
        CK = o.get("qck", 15)
        PXI, NG0 = o.get("pxi", 1), o.get("ng0", 10)
        ST = -8
        CSs = -9
        STS = o.get("qsts", 4)
        wq = []
        px = [(None, l, "px", False) for l in self.px_load(VM())]
        gu1 = [(f"s_add_u32 m0, s{GL}, {lit(j*1024)}", f"buffer_load_dwordx4 v{23+j}, {srd(SA)}, s{GS} offen nt lds", "gu", False) for j in range(3)]
        gu2 = []
        for j in range(3):
            L = self.label()
            gu2.append(((f"s_add_u32 s{GS}, s{GS}, {4*64*3072}\n" if j == 0 else "") + f"s_add_u32 m0, s{GL}, {lit(4*3072 + j*1024)}",
                        f"s_cmp_ge_u32 s3, 6\ns_cbranch_scc1 {L}\nbuffer_load_dwordx4 v{23+j}, {srd(SA)}, s{GS} offen nt lds\n{L}:", "gu", True))
        if wm == 1 and NG0 == 4:
            ops += [(-9, d) for d in gu1]
        for b_ in range(2, 20):
            ops += [(b_ - 4, d) for d in dmaB(b_)]
            if b_ == PD:
                ops += [(-9, d) for d in self.pack_dma(0)]
            if b_ % 2 == 1 and b_ // 2 + 1 < 10:
                S_ = b_ // 2 + 1
                ops += [(2 * (S_ - 3) + 1, d) for d in dmaA(S_)]
                if b_ == 7:
                    ops += [(-9, (None, self.nonce_load(), "nonce", False))]
                if b_ == 3:
                    if not PXI:
                        ops += [(-9, d) for d in px]
                if b_ == 5 and wm == 1:
                    if NG0 != 10:
                        ops += [(-9, d) for d in gu2]
        def reads(s, Y):
            S = s >> 1
            rd = []
            for sub in range(2):
                for m in range(NM):
                    r = Y + (sub * 3 + m) * 4
                    rd.append(f"ds_read_b128 v[{r}:{r+3}], v{8 + (s&1)*2 + sub} offset:{(S%3)*18432 + toff[m]}")
                for n in range(2):
                    r = Y + 24 + (sub * 2 + n) * 4
                    of = (s % 4) * 16384 + sub * 7680 + n * 64
                    rd.append(f"ds_read_b64_tr_b16 v[{r}:{r+1}], v20 offset:{of}")
                    rd.append(f"ds_read_b64_tr_b16 v[{r+2}:{r+3}], v20 offset:{of+480}")
            return rd
        def need(s):
            return lambda t: t == ("B", s) or t == ("A", s >> 1)
        self.ts(2)
        n = vm.wait(need(0))
        self(f"s_waitcnt vmcnt({n}) lgkmcnt(0)\ns_barrier")
        self.ts(3); self.tstep("f")
        for r in reads(0, 80):
            self(r)
        self.emit_ops(vm, self.sched(ops, -1, o.get("qpost", 2)))
        self("s_waitcnt lgkmcnt(0)")
        self.align8()
        sc = 20 ** -0.5 * 1.4426950408889634
        for s in range(20):
            X = 80 + (s & 1) * 40; Y = 80 + ((s + 1) & 1) * 40
            also = ()
            for k_, t_ in ((ST, "px"), (BN, "pk"), (CSs, "gu"), (AT, "early"), (AT, "nonce"), (CK, "poll"), (CK + 2, "stat")):
                if s == k_: also += (t_,)
            p0 = need(s + 1)
            assert not any(p0(d[2]) or d[2] in also for _, d in ops), (s, wm)
            n = vm.wait(lambda t: p0(t) or t in also)
            self(f"s_waitcnt vmcnt({n})" if n is not None else "s_nop 0")
            if s == CK:
                self.check_spin(26, 35)
            if s == AT:
                self.nonce_get()
            self("s_barrier")
            if s in (CK, AT):
                self.align8()
            self.tstep(s)
            fill = []; extra = []; extra2 = []; mfx = []
            if s in (ST, ST + 1):
                comp, st = self.stats_parts(1)
                ch = self.chunks(comp, 16)
                extra2 = ch[:8] if s == ST else ch[8:]
            if s == ST + 2:
                for l in self.stats_parts(1)[1]:
                    fill.append(l); vm.issue("early")
            if s == BN - 1:
                assert not any(d[2] == "pk" for _, d in ops)
                extra += self.scc_chunks(self.capture(lambda: self.pack_dst(0)), 4)
            if s == BN:
                extra += self.pack_tr(36)
            if s == CSs:
                for sub in range(5):
                    r = 36 + sub * 4
                    extra += [f"ds_read_b64_tr_b16 v[{r}:{r+1}], v21 offset:{sub*6144}", f"ds_read_b64_tr_b16 v[{r+2}:{r+3}], v21 offset:{sub*6144+1536}"]
            if s == CSs + 1:
                for sub in range(5):
                    r = 36 + sub * 4
                    mfx.append(f"v_mfma_f32_32x32x16_bf16 v[56:71], v[76:79], v[{r}:{r+3}], {'0' if sub == 0 else 'v[56:71]'}")
            if s == CSs + 2:
                fill.append(f"buffer_store_dword v56, v22, {srd(SW)}, s{T0+1} offen sc1"); vm.issue("early")
            if s == CK:
                fill.append(f"buffer_load_dwordx2 v[30:31], v6, {srd(SW)}, s{T0+5} offen sc1"); vm.issue("stat")
            fill += self.fill_ops(vm, self.sched(ops, s, o.get("qthr", 0) if s == STS else o.get("qrate", 5) + wm * o.get("qrate1", 1)))
            if s == STS:
                fill += [self.stats_parts(1)[1][0], f"buffer_store_dword v56, v22, {srd(SW)}, s{T0+1} offen sc1"]; vm.issue("early"); vm.issue("early")
            if s in (BN + 1, BN + 2):
                k_ = 2 * (s - BN - 1)
                fill += self.pack_stores(VM(), 36)[k_:k_ + 2]; vm.issue("early"); vm.issue("early")
            if s == AT:
                fill += self.early_flag(); vm.issue("ef")
            if s == 9:
                extra += self.p2_params()
            if s == 10:
                extra += self.check_addr(35)
            if s == 11:
                zq = QZ - 16 * QS
                extra += ["v_and_b32 v4, 15, v0\nv_lshrrev_b32 v5, 4, v0", f"s_mul_i32 s{T0+1}, s3, {16*QS}", f"v_mul_u32_u24 v6, {QS}, v4",
                          f"v_add_u32 v7, s{T0+1}, v6\nv_add_u32 v34, v7, v6", "v_lshl_add_u32 v25, v5, 3, v34", "v_lshl_add_u32 v6, v5, 3, v7",
                          f"v_mov_b32 v4, {zq}",
                          f"s_mov_b32 vcc_lo, 0x55555555\ns_mov_b32 vcc_hi, 0x55555555\nv_cndmask_b32 v21, v4, v6, vcc\nv_cndmask_b32 v23, v6, v4, vcc",
                          f"s_mov_b64 vcc, 0x5555\nv_cndmask_b32 v22, v4, v7, vcc\ns_nop 0", f"s_mov_b64 vcc, 0xaaaa\nv_cndmask_b32 v24, v4, v7, vcc\ns_nop 0"]
            if s == 12:
                extra += ["v_lshrrev_b32 v6, 2, v0\nv_and_b32 v7, 3, v0", f"v_mul_u32_u24 v6, {2*QS}, v6", f"v_add_u32 v6, s{T0+1}, v6\ns_nop 0",
                          "v_lshl_add_u32 v1, v7, 3, v6", "v_mad_u32_u24 v18, v7, 40, v6",
                          f"s_and_b32 s{T0+6}, s3, 3\nv_lshrrev_b32 v5, 5, v0", f"s_lshl_b32 s{T0+7}, s{T0+6}, 8\nv_and_b32 v4, 15, v0", f"s_add_u32 s{T0+7}, s{T0+7}, {CSL}",
                          f"v_lshl_add_u32 v17, v5, 4, s{T0+7}", "v_lshlrev_b32 v6, 8, v5\nv_lshlrev_b32 v4, 4, v4", "v_bfe_u32 v7, v0, 4, 1",
                          "v_lshl_add_u32 v7, v7, 26, v6", "v_add_u32 v16, v7, v4\ns_nop 0"]
            if s == 13:
                extra += [f"s_lshr_b32 s{T0+1}, s3, 2\ns_lshl1_add_u32 s{T0+1}, s{S_MT}, s{T0+1}", f"s_mul_i32 s{T0+1}, s{T0+1}, {68*4096}",
                          f"s_and_b32 s{T0+2}, s3, 3\ns_lshl_b32 s{T0+2}, s{T0+2}, 10", f"s_add_u32 s{T0+1}, s{T0+1}, s{T0+2}\ns_lshl_b32 s{T0+2}, s{S_C}, 13",
                          f"s_add_u32 s{T0+2}, s{T0+2}, s{T0+1}\ns_lshr_b32 s{T0+12}, s{S_C}, 1", f"s_add_u32 s{T0+2}, s{T0+2}, {48*4096}", f"s_add_u32 s{T0+3}, s{T0+2}, 4096",
                          f"s_lshl_b32 s{T0+12}, s{T0+12}, 12\ns_add_u32 s{T0+1}, s{T0+1}, s{T0+12}",
                          f"s_and_b32 s{T0+12}, s{S_C}, 1\ns_lshl_b32 s{T0+12}, s{T0+12}, 9", f"s_add_u32 s{T0+1}, s{T0+1}, s{T0+12}\ns_nop 0", f"s_add_u32 s{T0+1}, s{T0+1}, {64*4096}"]
            if s == CK - 2:
                fill.append(self.check_issue(26, 35)); vm.issue("poll", True)
            if s == CK - 1:
                extra += [f"s_lshl_b32 s{T0+5}, s3, 6\ns_lshl_b32 s{T0+4}, s{S_MT}, 7", f"v_add_u32 v4, s{T0+5}, v0\ns_sub_u32 s{T0+4}, s{T0+4}, 16",
                          "v_min_u32 v4, 143, v4", f"v_add_u32 v5, s{T0+4}, v4\nv_max_i32 v5, 0, v5",
                          f"v_lshlrev_b32 v6, 3, v5\nv_lshlrev_b32 v4, 3, v4", f"v_add_u32 v32, {QST}, v4", f"s_mov_b32 s{T0+5}, {STATS}",
                          f"s_cmp_lt_u32 s3, 3\ns_nop 0\ns_cselect_b32 s{T0+5}, s{T0+5}, {OOB}"]
            if s == 16:
                wq += self.w2_pair(6, 2, 7, 3) + self.w2_reg(0)
                extra += [f"s_or_b32 s{T0+4}, s{S_MT}, s3\ns_cmp_eq_u32 s{T0+4}, 0\ns_cselect_b32 s{T0+4}, 8, 0\nv_lshrrev_b32 v5, 4, v0",
                          "v_bfe_u32 v6, v0, 1, 3", f"v_add_u32 v7, 1, v6\nv_max_u32 v7, s{T0+4}, v7", f"v_add_u32 v6, 8, v6\nv_lshlrev_b32 v5, 2, v5",
                          "v_sub_u32 v6, v6, v7\nv_sub_u32 v5, v5, v7", f"v_mov_b32 v4, {f2u(-1e30)}"]
                for r in range(4):
                    extra += [f"v_add_u32 v7, {r}, v5\nv_cmp_ge_u32 vcc, v6, v7\ns_nop 1\ns_nop 0\nv_cndmask_b32_e64 v{12+r}, v4, 0, vcc"]
            if s == 17:
                assert CK + 2 <= 17
                if wm == 0:
                    L = self.label()
                    extra += [f"s_cmp_ge_u32 s3, 3\ns_cbranch_scc1 {L}\nds_write_b64 v32, v[30:31]\n{L}:"]
                extra += [f"s_and_b32 s{T0+6}, s3, 3\nv_and_b32 v4, 31, v0", f"v_mul_u32_u24 v6, {QS}, v4", f"s_lshl_b32 s{T0+6}, s{T0+6}, 7\nv_lshrrev_b32 v5, 5, v0",
                          f"v_lshlrev_b32 v5, 3, v5\nv_lshlrev_b32 v4, 3, v4", f"v_add3_u32 v35, v6, v5, s{T0+6}",
                          f"v_add_u32 v4, {QST}, v4", f"s_lshl_b32 s{T0+4}, s3, 7\nv_lshrrev_b32 v5, 4, v0", f"s_add_u32 s{T0+4}, s{T0+4}, {QST}",
                          "v_and_b32 v6, 15, v0\nv_and_b32 v7, 1, v0", f"v_lshl_add_u32 v6, v6, 3, s{T0+4}", f"v_lshl_add_u32 v7, v7, 3, s{T0+4}",
                          "v_lshl_add_u32 v7, v5, 6, v7"]
                for h in range(1, 4):
                    extra.append(f"v_cmp_eq_u32_e64 s[{T0+4+2*h}:{T0+5+2*h}], {h}, v5")
            if s == 18:
                rowoff = [0, 16, 48] if wm == 0 else [80, 112]
                for m in range(NM):
                    extra.append(f"ds_read_b32 v{26+m}, v4 offset:{rowoff[m]*8}")
                extra.append(f"ds_read_b32 v29, v6 offset:{16*8+4}")
                for r in range(4):
                    extra.append(f"ds_read_b32 v{30+r}, v7 offset:{4+16*r}")
            if s == 19:
                wq += self.w2_pair(4, 0, 5, 1) + self.w2_reg(1)
            fill += self.take(vm, wq, o.get("qwr", 4))
            def mfma(sub, n_, m):
                c = 160 + (m * 2 + n_) * 16
                cin = "0" if (s == 0 and sub == 0) else f"v[{c}:{c+15}]"
                b = X + 24 + (sub * 2 + n_) * 4; a_ = X + (sub * 3 + m) * 4
                return f"v_mfma_f32_32x32x16_bf16 v[{c}:{c+15}], v[{b}:{b+3}], v[{a_}:{a_+3}], {cin}"
            if s < 19:
                mf = mfx + [mfma(sub, n_, m) for sub in range(2) for n_ in range(2) for m in range(NM)]
                lists = [(reads(s + 1, Y), 0.0, 0.8)]
                if fill: lists.append((fill, 0.5 if s == STS else 0.0, 1.0))
                if extra: lists.append((extra, 0.0, 0.9))
                if extra2: lists.append((extra2, 0.0, 0.9))
                self.interleave(mf, lists)
                self("s_waitcnt lgkmcnt(0)\ns_nop 0")
            else:
                mf = [mfma(sub, n_, m) for m in range(NM) for sub in range(2) for n_ in range(2)]
                extra = ["v_and_b32 v6, 1, v0\nv_mov_b32 v4, 0", "v_add_u32 v8, -1, v6\nv_sub_u32 v9, 0, v6",
                         f"v_add_u32 v5, {QZ}, v3", "ds_write_b32 v5, v4",
                         f"v_mul_f32 v29, {f2u(sc)}, v29", "v_mul_f32 v76, v29, v30\nv_mul_f32 v77, v29, v31", "v_mul_f32 v78, v29, v32\nv_mul_f32 v79, v29, v33",
                         "v_mov_b32 v10, v27\nv_mov_b32 v11, v27", "v_mov_b32 v27, v26\nv_mov_b32 v29, v28"]
                self.interleave(mf[:-4], [(fill, 0.0, 1.0), (extra, 0.0, 1.0)])
                if wm == 0:
                    self("s_nop 7\ns_mov_b32 exec_lo, 1\ns_mov_b32 exec_hi, 1\ns_nop 0")
                    for n_ in range(2):
                        for a_ in range(4):
                            c = 160 + n_ * 16 + a_ * 4
                            self(f"ds_write_b128 v17, v[{c}:{c+3}] offset:{n_*128 + a_*32}")
                    self("s_mov_b64 exec, -1\ns_nop 0")
                self(mf[-4]); self(mf[-3])
                self("s_waitcnt lgkmcnt(0)\ns_barrier")
                for n_ in range(2):
                    for a_ in range(4):
                        r = 80 + n_ * 16 + a_ * 4
                        self(f"ds_read_b128 v[{r}:{r+3}], v17 offset:{n_*128 + a_*32}")
                self(mf[-2]); self(mf[-1])
            assert s < 15 or not ops
        self.ts(4)
        wq += self.w2_reg(2)
        w2 = self.take(vm, wq, o.get("qwf", 4))
        self.q_rest = wq
        self("s_waitcnt lgkmcnt(0)\ns_nop 0")
        rowoff = [0, 16, 48] if wm == 0 else [80, 112]
        body = []
        for m in range(NM):
            pr = [26, 10, 28][m]
            for n_ in range(2):
                c = 160 + (m * 2 + n_) * 16
                for a_ in range(4):
                    for r in (4 * a_, 4 * a_ + 2):
                        body.append(f"v_pk_fma_f32 v[{c+r}:{c+r+1}], v[{pr}:{pr+1}], v[{80+n_*16+r}:{81+n_*16+r}], v[{c+r}:{c+r+1}]")
                for a_ in range(4):
                    body.append(f"v_cvt_pk_bf16_f32 v{c+4*a_}, v{c+4*a_}, v{c+4*a_+1}\nv_cvt_pk_bf16_f32 v{c+4*a_+1}, v{c+4*a_+2}, v{c+4*a_+3}")
                    body.append(f"ds_write_b64 v35, v[{c+4*a_}:{c+4*a_+1}] offset:{rowoff[m]*QS + n_*64 + a_*16}")
        if o.get("qw2fold", 1):
            self.interleave(body, [(w2, 0.0, 1.0)])
        else:
            for it in body + w2: self(it)

    def attention(self):
        QS = self.QS
        vm = VM()
        self("s_waitcnt lgkmcnt(0)\ns_barrier")
        self.ts(5)
        Qe, Qo, Ke, Ko, Vf, Vr = 160, 176, 192, 208, 224, 96
        Sx, Pf, O, R = 240, 80, 160, 176
        for h in range(4):
            self(f"ds_read_b64 v[{Qe+4*h}:{Qe+4*h+1}], v21 offset:{16*QS + 40*h}")
            self(f"ds_read_b64 v[{Qe+4*h+2}:{Qe+4*h+3}], v22 offset:{16*QS + 40*h + 32}")
            self(f"ds_read_b64 v[{Ke+4*h}:{Ke+4*h+1}], v25 offset:{160 + 40*h}")
            self(f"ds_read_b64 v[{Ke+4*h+2}:{Ke+4*h+3}], v34 offset:{160 + 40*h + 32}")
        for h in range(4):
            self(f"ds_read_b64 v[{Qo+4*h}:{Qo+4*h+1}], v23 offset:{16*QS + 40*h}")
            self(f"ds_read_b64 v[{Qo+4*h+2}:{Qo+4*h+3}], v24 offset:{16*QS + 40*h + 32}")
            self(f"ds_read_b64 v[{Ko+4*h}:{Ko+4*h+1}], v25 offset:{QS + 160 + 40*h}")
            self(f"ds_read_b64 v[{Ko+4*h+2}:{Ko+4*h+3}], v34 offset:{QS + 160 + 40*h + 32}")
        wq = self.q_rest
        na = self.o.get("qwa", 2)
        self.emit_items(self.take(vm, wq, na))
        self("s_waitcnt lgkmcnt(0)" if self.instr else "s_waitcnt lgkmcnt(15)")
        self.align8()
        for h in range(4):
            self(f"v_mfma_f32_16x16x32_bf16 v[{Sx+4*h}:{Sx+4*h+3}], v[{Ke+4*h}:{Ke+4*h+3}], v[{Qe+4*h}:{Qe+4*h+3}], v[12:15]")
        self("s_waitcnt lgkmcnt(0)\ns_nop 0")
        for h in range(4):
            self(f"v_mfma_f32_16x16x32_bf16 v[{Sx+4*h}:{Sx+4*h+3}], v[{Ko+4*h}:{Ko+4*h+3}], v[{Qo+4*h}:{Qo+4*h+3}], v[{Sx+4*h}:{Sx+4*h+3}]")
        for h in range(4):
            self(f"ds_read_b64_tr_b16 v[{Vf+4*h}:{Vf+4*h+1}], v1 offset:{320 + 40*h}")
            self(f"ds_read_b64_tr_b16 v[{Vf+4*h+2}:{Vf+4*h+3}], v1 offset:{QS + 320 + 40*h}")
        self(f"ds_read_b64_tr_b16 v[{Vr}:{Vr+1}], v18 offset:{320 + 32}")
        self(f"ds_read_b64_tr_b16 v[{Vr+2}:{Vr+3}], v18 offset:{QS + 320 + 32}")
        M = 4
        for h in range(4):
            s = Sx + 4 * h
            self(f"v_pk_mul_f32 v[{s}:{s+1}], v[{s}:{s+1}], v[76:77]\nv_pk_mul_f32 v[{s+2}:{s+3}], v[{s+2}:{s+3}], v[78:79]")
        for h in range(4):
            s = Sx + 4 * h
            self(f"v_max3_f32 v{M+h}, v{s}, v{s+1}, v{s+2}")
        for h in range(4):
            s = Sx + 4 * h
            self(f"v_max_f32 v{M+h}, v{M+h}, v{s+3}")
        def red(op, post):
            self(f"s_nop 1\nv_permlane16_swap_b32 v{M}, v{M+1}\nv_permlane16_swap_b32 v{M+2}, v{M+3}\ns_nop 0")
            self(f"{op} v{M}, v{M}, v{M+1}\n{op} v{M+2}, v{M+2}, v{M+3}\ns_nop 1\nv_permlane32_swap_b32 v{M}, v{M+2}\ns_nop 0\n{op} v{M}, v{M}, v{M+2}")
            if post: self(post)
            self(f"v_mov_b32 v{M+2}, v{M}\ns_nop 1\nv_permlane32_swap_b32 v{M}, v{M+2}\ns_nop 0")
            self(f"v_mov_b32 v{M+1}, v{M}\nv_mov_b32 v{M+3}, v{M+2}\ns_nop 1\nv_permlane16_swap_b32 v{M}, v{M+1}\nv_permlane16_swap_b32 v{M+2}, v{M+3}\ns_nop 0")
        red("v_max_f32", None)
        self.emit_items(self.take(vm, wq, na))
        for h in range(4):
            for r in range(4):
                self(f"v_sub_f32 v{Sx+4*h+r}, v{Sx+4*h+r}, v{M+h}")
        for h in range(4):
            for r in range(4):
                self(f"v_exp_f32 v{Sx+4*h+r}, v{Sx+4*h+r}")
        self("s_nop 0")
        for h in range(4):
            s = Sx + 4 * h
            self(f"v_add_f32 v{M+h}, v{s}, v{s+1}\nv_add_f32 v10, v{s+2}, v{s+3}\nv_add_f32 v{M+h}, v{M+h}, v10")
        self.align8()
        for h in range(4):
            s = Sx + 4 * h
            self(f"v_pk_mul_f32 v[{s}:{s+1}], v[{s}:{s+1}], v[30:31]\nv_pk_mul_f32 v[{s+2}:{s+3}], v[{s+2}:{s+3}], v[32:33]")
        red("v_add_f32", f"v_rcp_f32 v{M}, v{M}\ns_nop 0")
        assert all(not x[0] for x in wq)
        for h in range(4):
            s = Sx + 4 * h
            for r in range(4):
                self(f"v_mul_f32 v{s+r}, v{s+r}, v{M+h}")
            self(f"v_cvt_pk_bf16_f32 v{s}, v{s}, v{s+1}\nv_cvt_pk_bf16_f32 v{s+1}, v{s+2}, v{s+3}")
            p = Pf + 4 * h
            self(f"v_and_b32 v{p}, v{s}, v8\nv_and_b32 v{p+1}, v{s+1}, v8\nv_and_b32 v{p+2}, v{s}, v9\nv_and_b32 v{p+3}, v{s+1}, v9")
        self("s_waitcnt lgkmcnt(0)\ns_nop 0")
        for h in range(4):
            self(f"v_mfma_f32_16x16x32_bf16 v[{O+4*h}:{O+4*h+3}], v[{Vf+4*h}:{Vf+4*h+3}], v[{Pf+4*h}:{Pf+4*h+3}], 0")
        for h in range(4):
            self(f"v_mfma_f32_16x16x32_bf16 v[{R+4*h}:{R+4*h+3}], v[{Vr}:{Vr+3}], v[{Pf+4*h}:{Pf+4*h+3}], 0")
        self("s_nop 3")
        for k in range(2):
            d = 192 + 4 * k
            for q in range(4):
                self(f"v_cvt_pk_bf16_f32 v{d+q}, v{O+8*k+2*q}, v{O+8*k+2*q+1}")
            self(f"buffer_store_dwordx4 v[{d}:{d+3}], v2, {srd(SW)}, s{T0+2+k} offen sc1"); vm.issue("st")
        for h in range(1, 4):
            for r in range(4):
                self(f"v_cndmask_b32_e64 v{R+r}, v{R+r}, v{R+4*h+r}, s[{T0+4+2*h}:{T0+5+2*h}]")
        self(f"v_cvt_pk_bf16_f32 v200, v{R}, v{R+1}\nv_cvt_pk_bf16_f32 v201, v{R+2}, v{R+3}")
        self("v_mov_b32 v202, v200\nv_mov_b32 v203, v201\ns_nop 1\nv_permlane16_swap_b32 v200, v202\nv_permlane16_swap_b32 v201, v203\ns_nop 0")
        self(f"buffer_store_dwordx4 v[200:203], v16, {srd(SW)}, s{T0+1} offen sc1"); vm.issue("st")
        if self.o.get("tsa"): self.ts(2)
        self.emit_items(self.take(vm, wq))
        self.publish(vm)

    def p2(self):
        vm = VM()
        o = self.o
        self("P2_START:")
        PH, t, so, fo = T0 + 3, T0 + 5, T0 + 6, T0 + 4
        LW = S_LW
        KS = T0 + 7
        KL = 4
        self.emit_items(self.take(vm, self.w2_reg(3)))
        self(f"s_lshr_b32 s{fo}, s{S_M2}, 1\ns_lshl_b32 s{fo}, s{fo}, 11\ns_add_u32 s{fo}, s{fo}, {FLAGS}")
        self(f"s_lshl_b32 s{t}, s3, 8\ns_add_u32 s{PH}, s{t}, 128")
        self(f"v_mov_b32 v12, s{PH}\nv_writelane_b32 v12, s{t}, 0")
        self(f"s_lshl1_add_u32 s{t}, s{t}, 128\ns_cmp_lt_u32 s3, 4\ns_cselect_b32 s{t}, s{t}, s{PH}\nv_writelane_b32 v12, s{t}, 2")
        self(f"s_cselect_b32 s{PH}, 256, 0\ns_add_u32 s{t}, s{t}, s{PH}\nv_writelane_b32 v12, s{t}, 3")
        poll = f"buffer_load_dwordx2 v[14:15], v12, {srd(SW)}, s{fo} offen sc1"
        self(poll)
        self(f"s_mul_i32 s{t}, s3, 6")
        for i in range(6):
            self(f"s_add_u32 s{KS+i}, s{S_ROT}, {i}\ns_cmp_ge_u32 s{KS+i}, 6\ns_cselect_b32 s{so}, 6, 0\ns_sub_u32 s{KS+i}, s{KS+i}, s{so}\ns_add_u32 s{KS+i}, s{KS+i}, s{t}")
        self(f"s_lshl1_add_u32 s{KS+6}, s3, 48\ns_add_u32 s{KS+7}, s{KS+6}, 1\ns_add_u32 s{KS+8}, s3, 64")
        for k, i in enumerate((5, 6, 7, 4)):
            self(f"s_mul_i32 s{KL+k}, s{KS+i}, 5120\ns_add_u32 s{KL+k}, s{KL+k}, s{S_WB}")
        self(f"s_mul_i32 s{t}, s{S_M2}, {68*4096}")
        for i in range(9):
            self(f"s_lshl_b32 s{KS+i}, s{KS+i}, 12\ns_add_u32 s{KS+i}, s{KS+i}, s{t}")
        ACC = 176
        self(f"v_add_u32 v11, s{LW}, v2\nv_add_u32 v13, 4096, v2")
        self.mk_srd(SA, P_OUT, 2048 * 1280)
        self(f"s_lshl_b32 s{t}, s{S_M2}, 6\ns_lshl3_add_u32 s{t}, s3, s{t}\ns_mul_i32 s{t}, s{t}, 1280\ns_mul_i32 s{PH}, s{S_N2}, 160\ns_add_u32 s{PH}, s{PH}, s{t}")
        for rnd in range(3):
            self(f"v_add_u32 v16, {64*rnd}, v0\nv_mul_u32_u24 v17, 3277, v16\nv_lshrrev_b32 v17, 16, v17\nv_mul_u32_u24 v18, 20, v17\nv_sub_u32 v16, v16, v18")
            self("v_bfe_u32 v18, v17, 1, 2\nv_xor_b32 v16, v16, v18\nv_mul_u32_u24 v17, 1280, v17")
            self(f"v_lshl_add_u32 v{4+rnd}, v16, 3, v17")
        self("v_lshrrev_b32 v16, 5, v0\nv_lshl_add_u32 v6, v16, 26, v6")
        self("v_and_b32 v16, 15, v0\nv_lshrrev_b32 v17, 4, v0\nv_bfe_u32 v18, v0, 1, 2\nv_xor_b32 v17, v17, v18\nv_mul_u32_u24 v16, 320, v16")
        self(f"v_lshl_add_u32 v16, v17, 4, v16\nv_add_u32 v7, s{LW}, v16")
        self(f"s_mul_i32 s{t}, s3, 2560\nv_add_u32 v8, s{t}, v2\nv_add_u32 v9, 61440, v8\nv_add_u32 v10, 122880, v8")
        self("s_waitcnt vmcnt(0)")
        vm = VM()
        cmpn = f"v_cmp_ne_u64 vcc, s[{S_N}:{S_N+1}], v[14:15]"
        self.spin(cmpn + "\ns_nop 1\ns_and_b64 vcc, vcc, 1", poll, False, o.get("psl", 2))
        self.ts(7)
        NB = 3
        AR = lambda i: [80, 160, 20][i % NB]
        def ldA(i):
            return [f"buffer_load_dwordx4 v[{AR(i)+4*m}:{AR(i)+4*m+3}], v2, {srd(SW)}, s{KS+i} offen offset:{m*1024} sc1" for m in range(4)]
        for i in range(NB):
            for l in ldA(i):
                self(l); vm.issue(("A", i))
        XR = WR[4]
        def variant(vm, late):
            NS = 8 if late else 9
            for i in range(NS):
                also = [("W", i), ("L", i - 4)]
                chk = i == 6 - NB + 1
                if chk: also.append("poll")
                n = vm.wait(lambda t: t == ("A", i) or t in also)
                self(f"s_waitcnt vmcnt({n}) lgkmcnt(0)\ns_nop 0")
                if chk:
                    self.spin(cmpn, poll, False, o.get("psl", 2)); self.align8()
                mf = []
                for m in range(4):
                    for tt in range(5):
                        c = ACC + (m * 5 + tt) * 4
                        w = WR[i % 5] + 4 * tt
                        mf.append(f"v_mfma_f32_16x16x32_bf16 v[{c}:{c+3}], v[{w}:{w+3}], v[{AR(i)+4*m}:{AR(i)+4*m+3}], {'0' if i == 0 else 'v[%d:%d]' % (c, c+3)}")
                fill = []
                if i == 0:
                    for tt in range(5):
                        r = WR[4] + 4 * tt
                        fill.append(f"buffer_load_dwordx4 v[{r}:{r+3}], v{13 if tt == 4 else 2}, {srd(SW)}, s{KL+3} offen offset:{(tt%4)*1024} sc1"); vm.issue(("W", 4))
                if i == 1:
                    fill.append(poll); vm.issue("poll")
                j = i - 1 + NB
                if i >= 1 and j < NS:
                    fill += ldA(j)
                    for _ in range(4): vm.issue(("A", j))
                if late and 1 <= i <= 3:
                    k = i - 1
                    for tt in range(5):
                        of = (tt % 4) * 1024
                        fill.append((f"s_add_u32 m0, s{LW}, {lit(k*5120 + tt*1024 - of)}",
                                     f"buffer_load_dwordx4 v{13 if tt == 4 else 2}, {srd(SW)}, s{KL+k} offen offset:{of} sc1 lds")); vm.issue(("L", k))
                if i == 6:
                    for rnd in range(3):
                        fill.append(f"buffer_load_dwordx2 v[{XR+2*rnd}:{XR+2*rnd+1}], v{4+rnd}, {srd(SX)}, s{PH} offen"); vm.issue("x")
                rl = []
                k = (i - 4) if late else (i - 1)
                if 0 <= k < NS - 5:
                    rl = [f"ds_read_b128 v[{WR[k]+4*tt}:{WR[k]+4*tt+3}], v11 offset:{k*5120 + tt*1024}" for tt in range(5)]
                if i < NS - 1:
                    lists = []
                    if fill: lists.append((fill, 0.0, 0.9))
                    if rl: lists.append((rl, 0.0, 0.6))
                    self.interleave(mf, lists)
                else:
                    assert not fill and not rl
                    wr = [f"ds_write_b128 v7, v[{ACC+(m*5+tt)*4}:{ACC+(m*5+tt)*4+3}] offset:{m*5120 + tt*64}" for m in range(4) for tt in range(5)]
                    LAG = 8
                    for k in range(20 + LAG):
                        if k < 20: self(mf[k])
                        if k == 20: self("s_nop 1\ns_nop 0")
                        if k >= LAG: self(wr[k - LAG])
        self("s_cmp_ge_u32 s3, 4\ns_cbranch_scc1 P2_B")
        self.align8()
        vm2 = copy.deepcopy(vm)
        variant(vm, False)
        self("s_branch P2_RED")
        self.align8()
        self("P2_B:")
        variant(vm2, True)
        self("P2_RED:")
        self.ts(8)
        self("s_waitcnt lgkmcnt(0)\ns_barrier")
        RB = [36, 120, 176]
        for rnd in range(3):
            for src in range(8):
                r = RB[rnd] + src * 4
                self(f"ds_read_b128 v[{r}:{r+3}], v{8 + src//3} offset:{(src%3)*20480 + rnd*1024}")
        self("s_waitcnt vmcnt(0)\ns_nop 0")
        ofl = {0: "", 1: " sc1", 2: " nt", 3: " sc0 sc1"}[self.o.get("ost", 0)]
        for rnd in range(3):
            b = RB[rnd]
            x = XR + 2 * rnd
            self(f"v_lshlrev_b32 v{XR+8}, 16, v{x}\nv_lshlrev_b32 v{XR+10}, 16, v{x+1}\nv_and_b32 v{XR+9}, 0xffff0000, v{x}\nv_and_b32 v{XR+11}, 0xffff0000, v{x+1}")
            self("s_waitcnt lgkmcnt(0)\ns_nop 0" if self.instr else f"s_waitcnt lgkmcnt({[15,8,0][rnd]})\ns_nop 0")
            for st in (4, 8, 16):
                for k in range(0, 32, 2 * st):
                    for r in (0, 2):
                        self(f"v_pk_add_f32 v[{b+k+r}:{b+k+r+1}], v[{b+k+r}:{b+k+r+1}], v[{b+k+st+r}:{b+k+st+r+1}]")
            for r in (0, 2):
                self(f"v_pk_add_f32 v[{b+r}:{b+r+1}], v[{b+r}:{b+r+1}], v[{XR+8+r}:{XR+9+r}]")
            self(f"v_cvt_pk_bf16_f32 v{b}, v{b}, v{b+1}\nv_cvt_pk_bf16_f32 v{b+1}, v{b+2}, v{b+3}")
            self(f"buffer_store_dwordx2 v[{b}:{b+1}], v{4+rnd}, {srd(SA)}, s{PH} offen{ofl}")
        if self.instr:
            self("s_waitcnt vmcnt(0)")
            self.ts(9)
            self(f"s_memrealtime s[{T0+2}:{T0+3}]\ns_waitcnt lgkmcnt(0)")
            if "ampj" in self.o:
                i_, j_, K_ = self.o.get("ampi", 0), self.o["ampj"], self.o.get("ampk", 1)
                self(f"s_sub_u32 s{T0+4}, s{TSB+2*j_}, s{TSB+2*i_}\ns_mul_i32 s{T0+4}, s{T0+4}, {K_}")
                if not self.o.get("rt"):
                    self(f"s_mul_i32 s{T0+4}, s{T0+4}, 6554\ns_lshr_b32 s{T0+4}, s{T0+4}, 16")
                if "ampt" in self.o:
                    self(f"s_bitcmp{self.o['ampt']}_b32 s2, 3\ns_cselect_b32 s{T0+4}, s{T0+4}, 0")
                if "ampx" in self.o:
                    self(f"s_and_b32 s{T0+5}, s2, 7\ns_cmp_eq_u32 s{T0+5}, {self.o['ampx']}\ns_cselect_b32 s{T0+4}, s{T0+4}, 0")
                if "xcc" in self.o:
                    self(f"s_getreg_b32 s{T0+4}, hwreg(HW_REG_XCC_ID)\ns_sub_u32 s{T0+4}, s{T0+4}, s2\ns_and_b32 s{T0+4}, s{T0+4}, 7")
                    if self.o["xcc"]:
                        self(f"s_sub_u32 s{T0+4}, 7, s{T0+4}")
                    self(f"s_mul_i32 s{T0+4}, s{T0+4}, 200")
                self(f"s_min_u32 s{T0+4}, s{T0+4}, 20000")
                self(f"LAMP:\ns_memrealtime s[{T0+6}:{T0+7}]\ns_waitcnt lgkmcnt(0)\ns_sub_u32 s{T0+5}, s{T0+6}, s{T0+2}\ns_cmp_lt_u32 s{T0+5}, s{T0+4}\ns_cbranch_scc1 LAMP")
                return
            for i in range(1, 10):
                self(f"s_sub_u32 s{T0}, s{TSB+2*i}, s{TSB}\nv_mov_b32 v{20+i}, s{T0}")
            self(f"v_mov_b32 v20, s100\nv_mov_b32 v30, s{T0+2}\nv_mov_b32 v31, 0")
            self(f"s_lshl3_add_u32 s{T0}, s2, s3\ns_lshl_b32 s{T0}, s{T0}, 6\ns_add_u32 s{T0}, s{T0}, {TS}\nv_lshlrev_b32 v12, 26, v0")
            for q in range(3):
                self(f"buffer_store_dwordx4 v[{20+4*q}:{23+4*q}], v12, {srd(SW)}, s{T0} offen offset:{16*q}")

    def build(self):
        k = NAME + "_kernel"
        self(header([f"@launch grid=(256,1,1) block=(512,1,1) lds={160*1024}"]))
        self(kbegin(k))
        self.ts(0)
        if self.instr:
            self("s_memrealtime s[100:101]")
        self("s_load_dwordx16 s[4:19], s[0:1], 0\ns_load_dwordx4 s[20:23], s[0:1], 64")
        self("v_lshrrev_b32 v1, 6, v0\nv_and_b32 v0, 63, v0")
        self("s_cmp_ge_u32 s2, 256\ns_cbranch_scc1 K_END")
        self("v_readfirstlane_b32 s3, v1")
        self(f"s_and_b32 s{S_C}, s2, 7\ns_lshr_b32 s{S_MT}, s2, 4")
        self("s_bitcmp1_b32 s2, 3\ns_cbranch_scc1 Q_START")
        self.h_path()
        self.q_path()
        self.p2()
        self("K_END:\ns_endpgm")
        self("K_LAST:")
        self(f".set CODE_SPAN, K_LAST - {k} - 1024")
        self(kdesc(k, 256, 102, 256))
        return self.a.text()

if __name__ == "__main__":
    out = sys.argv[1]
    instr = "instr" in sys.argv[2:]
    opts = {}
    for x in sys.argv[2:]:
        if "=" in x:
            kk, vv = x.split("="); opts[kk] = int(vv)
    open(out, "w").write(G(instr, opts).build())
```
